```python
import torch

def _softmax(x, axis=-1):
    return torch.softmax(x, dim=axis)
def _gelu(x):
    return torch.nn.functional.gelu(x, approximate="tanh")
def _silu(x):
    return torch.nn.functional.silu(x)
def _sigmoid(x):
    return torch.sigmoid(x)
def _layernorm(x, axis=-1, eps=1e-5):
    m = x.mean(dim=axis, keepdim=True)
    v = x.var(dim=axis, keepdim=True, unbiased=False)
    return (x - m) / torch.sqrt(v + eps)
def _scatter_add(tgt, idx, src, axis=0):
    return tgt.clone().index_add_(axis, idx, src)
def _segment_sum(src, seg, n):
    out = torch.zeros((n,) + src.shape[1:], dtype=src.dtype)
    return out.index_add_(0, seg, src)
def _pad(x, pw):
    flat = tuple(v for pair in reversed(pw) for v in pair)
    return torch.nn.functional.pad(x, flat)

kernel_name = 'parallel_sum__softmax_full_mha__glu_gated_swiglu__prompt'

def setup_inputs():

    _w = (lambda a: (lambda t: t.to(torch.bfloat16) if t.is_floating_point() else t)(torch.as_tensor(a)))
    def _A_setup():
        B, S, D = 1, 2048, 640
        return {
            "x": _w((lambda *s: torch.randn(*s, dtype=torch.bfloat16) * 0.05)(B, S, D)),
            "wqkv": _w((lambda *s: torch.randn(*s, dtype=torch.bfloat16) * 0.05)(D, 3 * D)),
            "wo": _w((lambda *s: torch.randn(*s, dtype=torch.bfloat16) * 0.05)(D, D)),
        }
    _A_in = _A_setup()

    def _B_setup():
        B, S, D, F = 1, 2048, 640, 1536
        return {
            "x": _w((lambda *s: torch.randn(*s, dtype=torch.bfloat16) * 0.05)(B, S, D)),
            "w1": _w((lambda *s: torch.randn(*s, dtype=torch.bfloat16) * 0.4)(D, F) * (2.0 / D) ** 0.5),
            "w3": _w((lambda *s: torch.randn(*s, dtype=torch.bfloat16) * 0.4)(D, F) * (2.0 / D) ** 0.5),
            "w2": _w((lambda *s: torch.randn(*s, dtype=torch.bfloat16) * 0.4)(F, D) * (2.0 / F) ** 0.5),
        }
    _B_in = _B_setup()

    return {
        "A_x": _A_in["x"],
        "A_wqkv": _A_in["wqkv"],
        "A_wo": _A_in["wo"],
        "B_x": _B_in["x"],
        "B_w1": _B_in["w1"],
        "B_w3": _B_in["w3"],
        "B_w2": _B_in["w2"],
    }

def reference(A_x, A_wqkv, A_wo, B_x, B_w1, B_w3, B_w2):
    def _A_ref(x, wqkv, wo):
        B, S, D = x.shape
        H = 32; Dh = D // H
        qkv = (lambda x, *d: x.permute(*d))((x @ wqkv).reshape(B, S, 3, H, Dh), 2, 0, 3, 1, 4)
        q, k, v = qkv[0], qkv[1], qkv[2]
        scale = Dh ** -0.5
        scores = torch.einsum("bhqd,bhkd->bhqk", q, k) * scale
        p = _softmax(scores, axis=-1)
        o = torch.einsum("bhqk,bhkd->bhqd", p, v)
        return (lambda x, *d: x.permute(*d))(o, 0, 2, 1, 3).reshape(B, S, D) @ wo

    def _B_ref(x, w1, w3, w2):
        gate = torch.einsum("bsd,df->bsf", x, w1)
        up = torch.einsum("bsd,df->bsf", x, w3)
        h = _silu(gate) * up
        out = torch.einsum("bsf,fd->bsd", h, w2)
        return out

    x = A_x
    xn = _layernorm(x, axis=-1)
    return x + _A_ref(xn, A_wqkv, A_wo) + _B_ref(xn, B_w1, B_w3, B_w2)
```

```python
import re

TRANS = ("v_exp_f32", "v_log_f32", "v_rcp_f32", "v_rsq_f32", "v_sqrt_f32", "v_sin_f32", "v_cos_f32", "v_exp_f16", "v_rcp_iflag_f32")

def regs_of(tok):
    tok = tok.strip()
    tok = re.sub(r"^-", "", tok)
    m = re.match(r"^abs\((.*)\)$", tok)
    if m: tok = m.group(1)
    m = re.match(r"^\|(.*)\|$", tok)
    if m: tok = m.group(1)
    m = re.match(r"^([vsa])(\d+)$", tok)
    if m: return [(m.group(1), int(m.group(2)))]
    m = re.match(r"^([vsa])\[(\d+):(\d+)\]$", tok)
    if m: return [(m.group(1), i) for i in range(int(m.group(2)), int(m.group(3)) + 1)]
    if tok == "vcc": return [("s", 106), ("s", 107)]
    if tok == "vcc_lo": return [("s", 106)]
    if tok == "vcc_hi": return [("s", 107)]
    if tok == "exec": return [("s", 126), ("s", 127)]
    if tok == "m0": return [("s", 124)]
    return []

class Ins:
    __slots__ = ("text", "op", "ops", "kind", "wr", "rd", "srcc", "srcab", "passes", "states", "label", "target", "wide_store_data")
    def __init__(self, text):
        self.text = text
        self.label = None; self.target = None
        self.wr = []; self.rd = []; self.srcc = []; self.srcab = []
        self.passes = 0; self.states = 1; self.kind = "other"; self.op = ""; self.ops = []
        self.wide_store_data = []
        t = text.split(";")[0].strip()
        if not t or t.startswith("."):
            self.kind = "none"; self.states = 0; return
        if t.endswith(":"):
            self.kind = "label"; self.label = t[:-1]; self.states = 0; return
        parts = t.split(None, 1)
        op = parts[0]; self.op = op
        rest = parts[1] if len(parts) > 1 else ""
        ops = []; depth = 0; cur = ""
        for ch in rest:
            if ch in "[(": depth += 1
            if ch in "])": depth -= 1
            if ch == "," and depth == 0:
                ops.append(cur.strip()); cur = ""
            else: cur += ch
        if cur.strip(): ops.append(cur.strip())
        mods = ""
        if ops:
            sp = ops[-1].split(None, 1)
            ops[-1] = sp[0]
            mods = sp[1] if len(sp) > 1 else ""
        self.ops = ops
        base = re.sub(r"_(e32|e64|sdwa|dpp)$", "", op)
        R = lambda i: regs_of(ops[i]) if i < len(ops) else []
        allr = lambda a: [r for i in range(a, len(ops)) for r in R(i)]
        if op == "s_nop":
            self.kind = "nop"; self.states = int(ops[0], 0) + 1
        elif op.startswith("s_cbranch") or op == "s_branch":
            self.kind = "branch"; self.target = ops[0]
        elif op.startswith("v_mfma"):
            self.kind = "mfma"; self.wr = R(0); self.srcab = R(1) + R(2); self.srcc = R(3); self.rd = self.srcab + self.srcc
            self.passes = 8 if "32x32x16" in op else (4 if "16x16x32" in op else 16)
        elif op.startswith("v_cmp"):
            self.kind = "valu"; self.wr = R(0); self.rd = allr(1)
            if op.startswith("v_cmpx"): self.wr = self.wr + regs_of("exec")
        elif base in ("v_readfirstlane_b32", "v_readlane_b32"):
            self.kind = "readlane"; self.wr = R(0); self.rd = allr(1)
        elif op.startswith("v_permlane"):
            self.kind = "permlane"; self.wr = R(0) + R(1); self.rd = R(0) + R(1)
        elif op.startswith("v_"):
            self.kind = "trans" if base in TRANS else ("dot" if op.startswith("v_dot") else "valu")
            self.wr = R(0); self.rd = allr(1)
            if base in ("v_fmac_f32", "v_pk_fmac_f16", "v_dot2c_f32_bf16"): self.rd = self.rd + R(0)
            if base in ("v_add_co_u32", "v_sub_co_u32", "v_addc_co_u32", "v_subb_co_u32"):
                self.wr = R(0) + R(1); self.rd = allr(2)
            if "dpp" in op or "row_" in mods or "quad_perm" in mods: self.kind = "dpp"
        elif op.startswith("buffer_") or op.startswith("global_"):
            self.kind = "vmem"
            if "lds" in mods.split() or "_lds_" in op:
                self.rd = allr(0) + regs_of("m0"); self.kind = "vmem_lds"
            elif "load" in op:
                self.wr = R(0); self.rd = allr(1)
            else:
                self.rd = allr(0)
                if "atomic" in op and "sc0" in mods.split(): self.wr = R(0)
                if "x3" in op or "x4" in op:
                    self.wide_store_data = R(0) if op.startswith("buffer_") else R(1)
        elif op.startswith("ds_"):
            self.kind = "ds"
            if "read" in op or "rtn" in op or "permute" in op or "swizzle" in op:
                self.wr = R(0); self.rd = allr(1)
            else:
                self.rd = allr(0)
        elif op.startswith("s_"):
            self.kind = "salu"
            if op.startswith("s_cmp") or op in ("s_waitcnt", "s_barrier", "s_endpgm", "s_setprio", "s_sleep"):
                self.rd = allr(0)
            else:
                self.wr = R(0); self.rd = allr(1)
                if "saveexec" in op: self.wr = self.wr + regs_of("exec")

VALU_KINDS = ("valu", "trans", "dot", "readlane", "permlane", "dpp")

def need(prod, cons):
    n = 0
    pw = set(prod.wr); cr = set(cons.rd); cw = set(cons.wr)
    pv = {r for r in pw if r[0] in "va"}; ps = {r for r in pw if r[0] == "s"}
    if prod.kind in VALU_KINDS:
        if ps & cr:
            if cons.kind in ("vmem", "vmem_lds"): n = max(n, 5)
            if cons.kind in VALU_KINDS or cons.kind == "mfma": n = max(n, 4 if cons.kind == "readlane" else 2)
            if cons.kind == "salu": n = max(n, 1)
        if ("s", 126) in ps:
            if cons.kind in ("readlane", "permlane", "mfma"): n = max(n, 4)
            if cons.kind == "dpp": n = max(n, 5)
        if pv & cr:
            if cons.kind == "readlane": n = max(n, 1)
            if cons.kind in ("permlane", "dpp"): n = max(n, 2)
            if cons.kind == "mfma": n = max(n, 2)
            if prod.kind == "trans" and cons.kind != "trans": n = max(n, 1)
            if prod.kind == "trans" and cons.kind == "trans": n = max(n, 1)
        if prod.kind == "dot" and (pv & (cr | cw)):
            same = cons.op == prod.op
            if same and len(cons.ops) == 4 and not (pv & set(regs_of(cons.ops[1]) + regs_of(cons.ops[2]))):
                pass
            else: n = max(n, 3)
    if prod.kind == "salu" and ("s", 124) in ps and cons.kind == "vmem_lds": n = max(n, 1)
    if prod.kind == "mfma":
        p = prod.passes
        tA = {2: 5, 4: 8, 8: 12, 16: 20}[p]
        tC = {2: 4, 4: 6, 8: 10, 16: 18}[p]
        if cons.kind == "mfma":
            if pv & set(cons.srcab): n = max(n, tA)
            if pv & set(cons.srcc):
                if not (cons.srcc == prod.wr and cons.passes == p): n = max(n, tC)
            elif pv & cw:
                n = max(n, tC)
        elif cons.kind in VALU_KINDS or cons.kind in ("vmem", "vmem_lds", "ds"):
            if pv & (cr | cw): n = max(n, tA)
        if cons.kind in VALU_KINDS and set(prod.srcc) & cw:
            n = max(n, {2: 1, 4: 3, 8: 7, 16: 15}[p])
    if prod.wide_store_data and set(prod.wide_store_data) & cw:
        n = max(n, 2 if cons.kind in VALU_KINDS else 1)
    return n

WINDOW = 22

def pad_hazards(lines, verbose=False):
    ins = [Ins(l) for l in lines]
    npad = 0
    for _pass in range(3):
        labels = {x.label: i for i, x in enumerate(ins) if x.kind == "label"}
        i = 0; changed = False
        while i < len(ins):
            p = ins[i]
            if p.kind in ("none", "label", "nop", "branch", "ds", "vmem_lds") or not (p.wr or p.wide_store_data or p.srcc) or \
               (p.kind == "salu" and ("s", 124) not in p.wr) or (p.kind == "vmem" and not p.wide_store_data):
                i += 1; continue
            win = WINDOW if p.kind == "mfma" else 6
            stack = [(i + 1, 0)]; seen = set(); fix = None
            while stack and fix is None:
                j, d = stack.pop()
                while j < len(ins) and d < win:
                    if (j, d) in seen: break
                    seen.add((j, d))
                    c = ins[j]
                    if c.kind in ("none", "label"):
                        j += 1; continue
                    nd = need(p, c)
                    if nd > d:
                        fix = (j, nd - d); break
                    if c.op == "s_endpgm": break
                    if c.kind == "branch":
                        if c.target in labels: stack.append((labels[c.target], d + c.states))
                        if c.op == "s_branch": break
                    d += c.states; j += 1
            if fix:
                j, k = fix
                if verbose: print(f"pad {k} before [{ins[j].text.strip()}] after [{p.text.strip()}]")
                while k > 0:
                    kk = min(k, 16)
                    ins.insert(j, Ins(f"    s_nop {kk-1}")); k -= kk
                    if j <= i: i += 1
                npad += 1; changed = True
                labels = {x.label: q for q, x in enumerate(ins) if x.kind == "label"}
                continue
            i += 1
        if not changed: break
    return [x.text for x in ins], npad

class Asm:
    def __init__(self):
        self.lines = []
    def __call__(self, s):
        for l in s.split("\n"):
            l = l.strip()
            if not l: continue
            if l.endswith(":") or l.startswith("."): self.lines.append(l)
            else: self.lines.append("    " + l)
    def label(self, n): self.lines.append(n + ":")
    def text(self, verbose=False):
        out, n = pad_hazards(self.lines, verbose)
        return "\n".join(out) + "\n"

def vr(a, n=1):
    return f"v{a}" if n == 1 else f"v[{a}:{a+n-1}]"
def sr(a, n=1):
    return f"s{a}" if n == 1 else f"s[{a}:{a+n-1}]"

def kernel_text(name, body, nvgpr, nsgpr=102, accum=None):
    accum = accum if accum is not None else (nvgpr + 3) // 4 * 4
    return f""".text
.globl {name}
.p2align 8
.type {name},@function
{name}:
{body}.section .rodata,"a"
.p2align 6
.amdhsa_kernel {name}
  .amdhsa_next_free_vgpr {nvgpr}
  .amdhsa_next_free_sgpr {nsgpr}
  .amdhsa_accum_offset {accum}
  .amdhsa_group_segment_fixed_size 0
  .amdhsa_kernarg_size 80
  .amdhsa_user_sgpr_count 2
  .amdhsa_user_sgpr_kernarg_segment_ptr 1
  .amdhsa_system_sgpr_workgroup_id_x 1
.end_amdhsa_kernel
"""

class VM:
    def __init__(self, a):
        self.a = a; self.q = []
    def issue(self, text, tag):
        self.a(text); self.q.append(tag)
    def wait(self, *tags, extra=""):
        idx = max((i for i, t in enumerate(self.q) if t in tags), default=-1)
        if idx < 0:
            if extra: self.a(f"s_waitcnt {extra}")
            return
        n = len(self.q) - 1 - idx
        assert n <= 63, n
        self.a(f"s_waitcnt vmcnt({n}) {extra}".strip())
        self.q = self.q[idx + 1:]
    def wait_all(self, extra=""):
        self.a(f"s_waitcnt vmcnt(0) {extra}".strip()); self.q = []
```

```python
import sys, importlib
sys.path.insert(0, "gen")
NAME = "parallel_sum__softmax_full_mha__glu_gated_swiglu__prompt"
def header():
    ref = open(f"cdna_kernels/{NAME}.s.ref").read().splitlines()
    out = []
    for l in ref:
        if l.startswith("; Override") or l.startswith("; grid=ceil") or "@launch" in l: continue
        if not l.startswith(";"): break
        out.append(l)
    return "\n".join(out) + "\n"
def build(kernels, path, single=False):
    s = header()
    for n, g, b, lds, t in kernels:
        if single: s += f"; @launch grid=({g},1,1) block=({b},1,1) lds={lds}\n"
        else: s += f"; @launch kernel={n} grid=({g},1,1) block=({b},1,1) lds={lds}\n"
    s += '.amdgcn_target "amdgcn-amd-amdhsa--gfx950"\n'
    seen = set()
    for n, g, b, lds, t in kernels:
        if n in seen: continue
        seen.add(n); s += t
    open(path, "w").write(s)
```

```python
from asmlib import *
from layout import *

def srd(a, base, lo, nbytes):
    a(f"s_mov_b32 s{base}, s{lo}")
    a(f"s_and_b32 s{base+1}, s{lo+1}, 0xffff")
    a(f"s_mov_b32 s{base+2}, {nbytes}")
    a(f"s_mov_b32 s{base+3}, 0x00020000")

K1_LDS = 131072 + 2048
ST_M = 131072
ST_RS = 131072 + 512
ST_CS = 131072 + 1024

STAMP_OFF = 64 << 20
def stamp(a, i, on):
    if on == "rt": a(f"s_memrealtime s[{60+2*i}:{61+2*i}]")
    elif on: a(f"s_memtime s[{60+2*i}:{61+2*i}]")
def stamp_flush(a, n, on, wreg, srdbase, nwaves=16):
    if not on: return
    a("s_waitcnt lgkmcnt(0)")
    a(f"s_mov_b32 s{srdbase+2}, 0x10000000")
    a(f"s_lshl_b32 s58, s2, 4")
    a(f"s_add_u32 s58, s58, s{wreg}")
    a(f"s_lshl_b32 s58, s58, 6")
    a(f"s_add_u32 s58, s58, {STAMP_OFF}")
    a("v_mov_b32 v1, 0")
    for i in range(n):
        a(f"v_mov_b32 v2, s{60+2*i}")
        a(f"buffer_store_dword v2, v1, s[{srdbase}:{srdbase+3}], s58 offen offset:{4*i}")

def gen_k1(name="k1_kernel", st=False, nodots=False, norot=False):
    a = Asm()
    stamp(a, 0, st)
    L = lambda s: f"{name}_{s}"
    TB, CG, W, STG, ONES = 10, 11, 12, 13, 14
    SX, SW, SO = 16, 20, 24
    a(f"""
    s_cmp_ge_u32 s2, 256
    s_cbranch_scc1 {L('end')}
    s_load_dwordx4 s[4:7], s[0:1], 0
    s_load_dwordx2 s[8:9], s[0:1], 72
    s_and_b32 s3, s2, 3
    s_lshl_b32 s3, s3, 2
    s_bfe_u32 s15, s2, 0x20003
    s_add_u32 s{TB}, s3, s15
    s_bfe_u32 s3, s2, 0x10002
    s_lshl_b32 s3, s3, 3
    s_lshr_b32 s{CG}, s2, 5
    s_add_u32 s{CG}, s{CG}, s3
    s_mul_i32 s3, s15, 3
    s_add_u32 s{STG}, s{CG}, s3         ; start stage (mod 10)
    s_cmp_ge_u32 s{STG}, 10
    s_cselect_b32 s3, 10, 0
    s_sub_u32 s{STG}, s{STG}, s3
    s_cmp_ge_u32 s{STG}, 10
    s_cselect_b32 s3, 10, 0
    s_sub_u32 s{STG}, s{STG}, s3
    v_lshrrev_b32 v1, 6, v0
    v_and_b32 v0, 63, v0
    v_readfirstlane_b32 s{W}, v1
    s_mov_b32 s{ONES}, 0x3f803f80
    s_waitcnt lgkmcnt(0)
    """)
    srd(a, SX, 4, 2048 * 1280)
    srd(a, SW, 6, 640 * 3840)
    srd(a, SO, 8, WS_USED)
    a(f"""
    s_cmp_ge_u32 s{CG}, 15
    s_cbranch_scc1 {L('zero')}
    s_cmp_ge_u32 s{W}, 4
    s_cbranch_scc1 {L('loader')}
    """)
    TW, FW = 28, 29
    XA = 2
    WA = 10
    XS, XQ, CS = 12, 13, 14
    XS2, XQ2, CS2 = 15, 48, 49
    BUF = [16, 32]
    ACC = 64
    a(f"""
    s_lshr_b32 s{TW}, s{W}, 1
    s_and_b32 s{FW}, s{W}, 1
    v_and_b32 v50, 31, v0
    v_lshrrev_b32 v51, 5, v0            ; h
    v_bfe_u32 v52, v0, 1, 3             ; f
    s_lshl_b32 s3, s{W}, 12             ; (tw*64+fw*32)*128
    v_lshl_add_u32 v53, v50, 7, s3
    """)
    for ks in range(4):
        a(f"""
        v_or_b32 v54, {2*ks}, v51
        v_xor_b32 v54, v54, v52
        v_lshl_add_u32 v{XA+ks}, v54, 4, v53
        v_xor_b32 v{XA+4+ks}, 0x1000, v{XA+ks}
        """)
    a(f"""
    v_bfe_u32 v54, v0, 2, 2             ; r
    v_lshl_add_u32 v55, v51, 3, v54     ; 8h+r
    v_lshlrev_b32 v55, 8, v55
    s_lshl_b32 s3, s{FW}, 1
    s_or_b32 s3, s3, s{TW}
    v_xor_b32 v54, s3, v54
    v_lshl_add_u32 v55, v54, 6, v55
    v_bfe_u32 v54, v0, 4, 1
    v_lshl_add_u32 v55, v54, 5, v55
    v_and_b32 v54, 3, v0
    v_lshl_add_u32 v55, v54, 3, v55
    v_add_u32 v{WA}, 0x4000, v55
    v_xor_b32 v{WA+1}, 64, v{WA}
    """)
    for r in (XS, XQ, CS, XS2, XQ2, CS2): a(f"v_mov_b32 v{r}, 0")
    for i in range(64): a(f"v_mov_b32 v{ACC+i}, 0")

    def reads(buf, par, ks):
        b = BUF[buf]; o = par * 32768
        wo = o + ks * 4096
        return [
            f"ds_read_b64_tr_b16 {vr(b+8,2)}, v{WA} offset:{wo}",
            f"ds_read_b64_tr_b16 {vr(b+10,2)}, v{WA} offset:{wo+1024}",
            f"ds_read_b128 {vr(b,4)}, v{XA+ks} offset:{o}",
            f"ds_read_b128 {vr(b+4,4)}, v{XA+4+ks} offset:{o}",
            f"ds_read_b64_tr_b16 {vr(b+12,2)}, v{WA+1} offset:{wo}",
            f"ds_read_b64_tr_b16 {vr(b+14,2)}, v{WA+1} offset:{wo+1024}",
        ]
    def mf(buf, fi, ti, vmode):
        b = BUF[buf]; acc = ACC + 16 * (fi * 2 + ti)
        wv = vr(b + 8 + 4 * fi, 4); xv = vr(b + 4 * ti, 4)
        A, B = (xv, wv) if vmode else (wv, xv)
        return f"v_mfma_f32_32x32x16_bf16 {vr(acc,16)}, {A}, {B}, {vr(acc,16)}"
    def dots(buf):
        b = BUF[buf]; d = []
        if nodots: return []
        for i in range(4):
            d.append(f"v_dot2_f32_bf16 v{XS if i%2==0 else XS2}, v{b+i}, s{ONES}, v{XS if i%2==0 else XS2}")
            d.append(f"v_dot2_f32_bf16 v{XQ if i%2==0 else XQ2}, v{b+i}, v{b+i}, v{XQ if i%2==0 else XQ2}")
            d.append(f"v_dot2_f32_bf16 v{CS if i%2==0 else CS2}, v{b+8+i}, s{ONES}, v{CS if i%2==0 else CS2}")
        return d
    def kstep(cur, rd, vmode, last=False, toggle=False):
        d = dots(cur)
        if last:
            a("s_waitcnt lgkmcnt(0)")
            a("s_barrier")
            if toggle:
                for r in list(range(XA, XA + 8)) + [WA, WA + 1]: a(f"v_xor_b32 v{r}, 0x10000, v{r}")
            a(mf(cur, 0, 0, vmode)); [a(x) for x in rd[0:3]]
            a(mf(cur, 0, 1, vmode)); [a(x) for x in rd[3:6]]
        else:
            a("s_waitcnt lgkmcnt(3)")
            a(mf(cur, 0, 0, vmode)); [a(x) for x in rd[0:3]]
            a("s_waitcnt lgkmcnt(5)")
            a(mf(cur, 0, 1, vmode)); [a(x) for x in rd[3:6]]
            a("s_waitcnt lgkmcnt(6)")
        a(mf(cur, 1, 0, vmode)); [a(x) for x in d[0:6]]
        a(mf(cur, 1, 1, vmode)); [a(x) for x in d[6:12]]
    def mainloop(vmode, tag):
        a("s_mov_b32 s30, 5")
        a(".p2align 6")
        a.label(L("loop" + tag))
        for par in range(2):
            kstep(0, reads(1, par, 1), vmode)
            kstep(1, reads(0, par, 2), vmode)
            kstep(0, reads(1, par, 3), vmode)
            kstep(1, reads(0, 1 - par, 0), vmode, last=True, toggle=(par == 1))
        a(f"""
        s_sub_u32 s30, s30, 1
        s_cmp_lg_u32 s30, 0
        s_cbranch_scc1 {L('loop'+tag)}
        """)
    def stats():
        a(f"""
        s_waitcnt lgkmcnt(0)
        v_add_f32 v{XS}, v{XS}, v{XS2}
        v_add_f32 v{XQ}, v{XQ}, v{XQ2}
        v_add_f32 v{CS}, v{CS}, v{CS2}
        v_mov_b32 v{XS2}, v{XS}
        v_mov_b32 v{XQ2}, v{XQ}
        v_mov_b32 v{CS2}, v{CS}
        v_permlane32_swap_b32 v{XS}, v{XS2}
        v_permlane32_swap_b32 v{XQ}, v{XQ2}
        v_permlane32_swap_b32 v{CS}, v{CS2}
        v_add_f32 v{XS}, v{XS}, v{XS2}
        v_add_f32 v{XQ}, v{XQ}, v{XQ2}
        v_add_f32 v{CS}, v{CS}, v{CS2}
        v_mul_f32 v{XS}, {f2u(1/640):#x}, v{XS}          ; mean
        v_mul_f32 v{XQ}, {f2u(1/640):#x}, v{XQ}
        v_fma_f32 v{XQ}, -v{XS}, v{XS}, v{XQ}            ; var
        v_max_f32 v{XQ}, 0, v{XQ}
        v_cvt_pk_bf16_f32 v{XS2}, v{XS}, v{XQ}
        v_lshlrev_b32 v{XS}, 16, v{XS2}
        v_and_b32 v{XQ}, 0xffff0000, v{XS2}
        v_add_f32 v{XQ}, {f2u(1e-5):#x}, v{XQ}
        v_cvt_pk_bf16_f32 v{XQ}, v{XQ}, v{XQ}
        v_and_b32 v{XQ}, 0xffff0000, v{XQ}
        v_sqrt_f32 v{XQ}, v{XQ}
        v_cvt_pk_bf16_f32 v{XQ}, v{XQ}, v{XQ}
        v_and_b32 v{XQ}, 0xffff0000, v{XQ}
        v_rcp_f32 v{XQ}, v{XQ}                           ; rstd
        s_lshl_b32 s3, s{W}, 7
        v_lshl_add_u32 v54, v50, 2, s3
        v_add_u32 v54, {ST_M}, v54
        s_lshl_b32 s3, s{FW}, 1
        s_or_b32 s3, s3, s{TW}
        s_lshl_b32 s3, s3, 7
        v_lshl_add_u32 v55, v50, 2, s3
        v_add_u32 v55, {ST_M}, v55
        ds_write_b32 v54, v{XS}
        ds_write_b32 v54, v{XQ} offset:512
        ds_write_b32 v55, v{CS} offset:1024
        s_waitcnt lgkmcnt(0)
        s_barrier
        """)
    stamp(a, 1, st)
    a("s_barrier")
    stamp(a, 2, st)
    for x in reads(0, 0, 0): a(x)
    a(f"""
    s_cmp_ge_u32 s{CG}, 10
    s_cbranch_scc1 {L('vpath')}
    """)
    mainloop(False, "qk")
    stamp(a, 3, st)
    stats()
    stamp(a, 4, st)
    a(f"""
    v_xor_b32 v54, 128, v54
    ds_read_b32 v{XS2}, v54
    ds_read_b32 v{XQ2}, v54 offset:512
    s_lshl_b32 s3, s{FW}, 1
    s_or_b32 s3, s3, s{TW}
    s_lshl_b32 s3, s3, 7
    v_lshl_add_u32 v55, v51, 4, s3
    v_add_u32 v55, {ST_CS}, v55
    v_xor_b32 v56, 128, v55
    """)
    for j in range(4): a(f"ds_read_b128 {vr(16+4*j,4)}, v55 offset:{32*j}")
    for j in range(4): a(f"ds_read_b128 {vr(32+4*j,4)}, v56 offset:{32*j}")
    a(f"""
    s_cmp_lt_u32 s{CG}, 5
    s_cselect_b32 s31, {f2u(QSCALE):#x}, 1.0
    s_cselect_b32 s32, 0, 5
    s_cselect_b32 s33, {QK_OFF}, {QK_OFF+QK_TYPE}
    s_sub_u32 s32, s{CG}, s32           ; cgt
    s_lshl_b32 s32, s32, 4
    s_lshl_b32 s3, s{FW}, 1
    s_or_b32 s3, s3, s{TW}
    s_lshl_b32 s3, s3, 2
    s_add_u32 s32, s32, s3
    s_lshl_b32 s32, s32, 15
    s_add_u32 s33, s33, s32
    s_lshl_b32 s3, s{TB}, 2
    s_add_u32 s3, s3, s{W}
    s_lshl_b32 s3, s3, 9                ; toktile(slot0)*512
    s_add_u32 s33, s33, s3
    v_lshlrev_b32 v57, 3, v0
    s_waitcnt lgkmcnt(0)
    v_mul_f32 v{XQ}, s31, v{XQ}
    v_mul_f32 v{XQ2}, s31, v{XQ2}
    v_sub_f32 v2, 0, v{XS}
    v_mov_b32 v4, v{XQ}
    v_sub_f32 v6, 0, v{XS2}
    v_mov_b32 v8, v{XQ2}
    """)
    for fi in range(2):
        for ti in range(2):
            acc = ACC + 16 * (fi * 2 + ti)
            cs = 16 + 16 * fi
            m = 2 + 4 * ti; rs = 4 + 4 * ti
            a(f"s_xor_b32 s34, s33, {fi*4*32768 + ti*512}")
            for j in range(4):
                for p in range(2):
                    r = acc + 4 * j + 2 * p
                    a(f"v_pk_fma_f32 {vr(r,2)}, {vr(cs+4*j+2*p,2)}, {vr(m,2)}, {vr(r,2)} op_sel_hi:[1,0,1]")
                for p in range(2):
                    r = acc + 4 * j + 2 * p
                    a(f"v_pk_mul_f32 {vr(r,2)}, {vr(r,2)}, {vr(rs,2)} op_sel_hi:[1,0]")
                for p in range(2):
                    r = acc + 4 * j + 2 * p
                    a(f"v_cvt_pk_bf16_f32 v{acc+4*j+p}, v{r}, v{r+1}")
                a(f"buffer_store_dwordx2 {vr(acc+4*j,2)}, v57, {sr(SO,4)}, s34 offen")
                if j < 3: a(f"s_add_u32 s34, s34, 32768")
    stamp(a, 5, st)
    if st: a("s_waitcnt vmcnt(0)")
    stamp(a, 6, st)
    stamp_flush(a, 7, st, W, SO)
    a("s_endpgm")
    a.label(L("vpath"))
    mainloop(True, "v")
    stamp(a, 3, st)
    stats()
    stamp(a, 4, st)
    a(f"""
    v_xor_b32 v55, 128, v55
    ds_read_b32 v{CS2}, v55 offset:1024
    s_lshl_b32 s3, s{W}, 7
    v_lshl_add_u32 v54, v51, 4, s3
    v_add_u32 v54, {ST_M}, v54
    v_xor_b32 v56, 128, v54
    """)
    MR = [16, 128]; RR = [32, 144]
    for j in range(4): a(f"ds_read_b128 {vr(MR[0]+4*j,4)}, v54 offset:{32*j}")
    for j in range(4): a(f"ds_read_b128 {vr(RR[0]+4*j,4)}, v54 offset:{512+32*j}")
    for j in range(4): a(f"ds_read_b128 {vr(MR[1]+4*j,4)}, v56 offset:{32*j}")
    for j in range(4): a(f"ds_read_b128 {vr(RR[1]+4*j,4)}, v56 offset:{512+32*j}")
    a(f"""
    s_sub_u32 s32, s{CG}, 10
    s_lshl_b32 s32, s32, 2
    s_lshl_b32 s3, s{FW}, 1
    s_or_b32 s3, s3, s{TW}
    s_add_u32 s32, s32, s3
    s_lshl_b32 s35, s{TB}, 2
    s_add_u32 s35, s35, s{W}
    v_mul_u32_u24 v57, 10240, v51
    v_lshl_add_u32 v57, v50, 4, v57
    s_waitcnt lgkmcnt(0)
    v_sub_f32 v2, 0, v{CS}
    v_sub_f32 v4, 0, v{CS2}
    """)
    for fi in range(2):
        for ti in range(2):
            acc = ACC + 16 * (fi * 2 + ti)
            a(f"""
            s_xor_b32 s3, s32, {fi}
            s_lshl_b32 s3, s3, 9
            s_xor_b32 s34, s35, {ti}
            s_mul_i32 s34, s34, 40960
            s_add_u32 s34, s34, s3
            s_add_u32 s34, s34, {VT_OFF}
            """)
            for kb in range(2):
                for p in range(4):
                    r = acc + 8 * kb + 2 * p
                    a(f"v_pk_fma_f32 {vr(r,2)}, {vr(MR[ti]+8*kb+2*p,2)}, {vr(2+2*fi,2)}, {vr(r,2)} op_sel_hi:[1,0,1]")
                for p in range(4):
                    r = acc + 8 * kb + 2 * p
                    a(f"v_pk_mul_f32 {vr(r,2)}, {vr(r,2)}, {vr(RR[ti]+8*kb+2*p,2)}")
                for p in range(4):
                    r = acc + 8 * kb + 2 * p
                    a(f"v_cvt_pk_bf16_f32 v{acc+8*kb+p}, v{r}, v{r+1}")
                a(f"buffer_store_dwordx4 {vr(acc+8*kb,4)}, v57, {sr(SO,4)}, s34 offen")
                if kb == 0: a("s_add_u32 s34, s34, 20480")
    stamp(a, 5, st)
    if st: a("s_waitcnt vmcnt(0)")
    stamp(a, 6, st)
    stamp_flush(a, 7, st, W, SO)
    a("s_endpgm")
    a.label(L("loader"))
    LW = 28
    a(f"""
    s_sub_u32 s{LW}, s{W}, 4
    v_lshrrev_b32 v1, 3, v0             ; lane>>3
    v_lshrrev_b32 v2, 4, v0             ; lane>>4
    v_and_b32 v3, 7, v0
    v_xor_b32 v3, v3, v2
    s_lshl_b32 s3, s{TB}, 7
    s_lshl_b32 s29, s{LW}, 5
    s_add_u32 s3, s3, s29
    v_add_u32 v1, s3, v1
    v_mul_u32_u24 v1, 1280, v1
    v_lshl_add_u32 v4, v3, 4, v1        ; i=0
    v_xor_b32 v3, 4, v3
    v_lshl_add_u32 v5, v3, 4, v1
    v_add_u32 v5, {8*1280}, v5          ; i=1
    v_add_u32 v6, {16*1280}, v4         ; i=2
    v_add_u32 v7, {16*1280}, v5         ; i=3
    s_lshl_b32 s3, s{LW}, 4
    v_add_u32 v1, s3, v2
    v_mul_u32_u24 v1, 3840, v1
    v_and_b32 v3, 15, v0
    v_lshlrev_b32 v2, 2, v2
    v_xor_b32 v3, v3, v2
    v_lshl_add_u32 v8, v3, 4, v1
    s_lshl_b32 s3, s{CG}, 8
    v_add_u32 v8, s3, v8
    v_add_u32 v9, {4*3840}, v8
    v_add_u32 v10, {8*3840}, v8
    v_add_u32 v11, {12*3840}, v8
    s_lshl_b32 s29, s{LW}, 12
    s_mov_b32 s30, 0
    """)
    def issue():
        a(f"""
        s_lshl_b32 s31, s{STG}, 7
        s_mul_i32 s32, s{STG}, {64*3840}
        s_add_u32 s33, s29, s30
        """)
        for i in range(4):
            a(f"s_add_u32 m0, s33, {16384 + i*1024}")
            a(f"buffer_load_dwordx4 v{8+i}, {sr(SW,4)}, s32 offen lds")
            a(f"s_add_u32 m0, s33, {i*1024}")
            a(f"buffer_load_dwordx4 v{4+i}, {sr(SX,4)}, s31 offen lds")
        a(f"""
        s_add_u32 s30, s30, 32768
        s_and_b32 s30, s30, 0x1ffff
        s_add_u32 s{STG}, s{STG}, 1
        s_cmp_eq_u32 s{STG}, 10
        s_cselect_b32 s{STG}, 0, s{STG}
        """)
    stamp(a, 1, st)
    if norot: a(f"s_mov_b32 s{STG}, 0")
    a("s_mov_b32 s34, 3")
    a.label(L("lpro"))
    issue()
    a(f"""
    s_sub_u32 s34, s34, 1
    s_cmp_lg_u32 s34, 0
    s_cbranch_scc1 {L('lpro')}
    s_mov_b32 s34, 7
    """)
    stamp(a, 2, st)
    if st:
        a("s_waitcnt vmcnt(23)")
        stamp(a, 3, st)
        a("s_waitcnt vmcnt(16)")
        stamp(a, 4, st)
    a.label(L("lloop"))
    a("s_waitcnt vmcnt(16)")
    a("s_barrier")
    issue()
    a(f"""
    s_sub_u32 s34, s34, 1
    s_cmp_lg_u32 s34, 0
    s_cbranch_scc1 {L('lloop')}
    s_waitcnt vmcnt(16)
    s_barrier
    s_waitcnt vmcnt(8)
    s_barrier
    s_waitcnt vmcnt(0)
    s_barrier
    """)
    stamp(a, 5, st)
    stamp_flush(a, 6, st, W, SO)
    a(f"""
    v_and_b32 v1, 31, v0
    v_lshrrev_b32 v2, 5, v0
    v_bfe_u32 v3, v0, 1, 3
    v_lshl_add_u32 v4, v1, 7, s29
    """)
    for ks in range(4):
        a(f"""
        v_or_b32 v5, {2*ks}, v2
        v_xor_b32 v5, v5, v3
        v_lshl_add_u32 v5, v5, 4, v4
        ds_read_b128 {vr(16+4*ks,4)}, v5 offset:32768
        """)
    a(f"""
    s_lshl_b32 s3, s{LW}, 7
    v_lshl_add_u32 v6, v1, 2, s3
    v_add_u32 v6, {ST_M}, v6
    s_add_u32 s{STG}, s{STG}, 9
    s_cmp_ge_u32 s{STG}, 10
    s_cselect_b32 s3, 10, 0
    s_sub_u32 s{STG}, s{STG}, s3
    s_lshl_b32 s3, s{TB}, 2
    s_add_u32 s3, s3, s{LW}
    s_mul_i32 s3, s3, 40960
    s_lshl_b32 s31, s{STG}, 12
    s_add_u32 s31, s31, s3
    s_add_u32 s31, s31, {XN_OFF}
    v_lshlrev_b32 v7, 4, v0
    s_barrier
    s_barrier
    s_cmp_ge_u32 s{CG}, 10
    s_cbranch_scc1 {L('end')}
    ds_read_b32 v8, v6
    ds_read_b32 v10, v6 offset:512
    s_waitcnt lgkmcnt(0)
    v_mul_f32 v8, v8, v10
    v_sub_f32 v8, 0, v8                  ; -m*rs
    """)
    for ks in range(4):
        for i in range(4):
            s = 16 + 4 * ks + i
            a(f"""
            v_lshlrev_b32 v12, 16, v{s}
            v_and_b32 v13, 0xffff0000, v{s}
            v_pk_fma_f32 v[12:13], v[12:13], v[10:11], v[8:9] op_sel_hi:[1,0,0]
            v_cvt_pk_bf16_f32 v{s}, v12, v13
            """)
        a(f"buffer_store_dwordx4 {vr(16+4*ks,4)}, v7, {sr(SO,4)}, s31 offen offset:{ks*1024}")
    a("s_endpgm")
    a.label(L("zero"))
    a(f"""
    s_lshl_b32 s3, s{TB}, 8
    s_add_u32 s3, s3, {FLG_OFF}
    v_lshlrev_b32 v1, 2, v0
    v_mov_b32 v2, 0
    buffer_store_dword v2, v1, {sr(SO,4)}, s3 offen
    """)
    a.label(L("end"))
    a("s_endpgm")
    return kernel_text(name, a.text(), 160, 100 if st else 40)

if __name__ == "__main__":
    print(gen_k1())
```

```python
from asmlib import *
from layout import *
from k1 import srd, stamp, stamp_flush
from k3 import row192

KV_SLOT = 16384
EX_OFF = 0
FB = 32768
FSLOT = 61504
FW1 = 24576
FW3D = 18432 + 32
FLAG_OFF = FB + 2 * FSLOT
K2_LDS = FLAG_OFF + 64

def gen_k2(name="k2_kernel", st=False, lowat=(1, 1), bar_after=(1, 4, 7, 10, 13, 16, 18, 19), rot_up=(5, 10), rot_dn=(3, 6)):
    a = Asm()
    L = lambda s: f"{name}_{s}"
    HEAD, QB, W = 10, 11, 12
    SO = 16
    stamp(a, 0, st)
    a(f"""
    s_cmp_ge_u32 s2, 256
    s_cbranch_scc1 {L('end')}
    s_load_dwordx2 s[8:9], s[0:1], 72
    s_load_dwordx4 s[52:55], s[0:1], 32
    s_load_dwordx2 s[56:57], s[0:1], 48
    s_and_b32 s3, s2, 7
    s_lshl_b32 s3, s3, 2
    s_bfe_u32 s{HEAD}, s2, 0x20003
    s_add_u32 s{HEAD}, s{HEAD}, s3
    s_lshr_b32 s{QB}, s2, 5
    v_lshrrev_b32 v1, 6, v0
    v_and_b32 v0, 63, v0
    v_readfirstlane_b32 s{W}, v1
    s_lshr_b32 s3, s{HEAD}, 1
    s_mul_i32 s3, s3, 5
    s_and_b32 s13, s{HEAD}, 1           ; odd
    s_mul_i32 s14, s13, 3
    s_add_u32 s20, s3, s14
    s_add_u32 s21, s20, 1
    s_add_u32 s22, s3, 2
    s_lshl_b32 s20, s20, 15
    s_lshl_b32 s21, s21, 15
    s_lshl_b32 s22, s22, 15
    s_waitcnt lgkmcnt(0)
    """)
    srd(a, SO, 8, WS_USED)
    a(f"""
    s_cmp_ge_u32 s{W}, 8
    s_cbranch_scc1 {L('loader')}
    """)
    KA, VA = 2, 3
    M = [4, 5]
    QM = [8, 16]; QT = [12, 20]
    KM = [24, 32]; KT = [28, 36]
    V = [40, 48]
    P = [56, 64]
    S = [72, 88]
    O = [104, 120]
    QG, KH, MODE, CNT = 24, 25, 26, 27
    a(f"""
    s_setprio 1
    s_and_b32 s{QG}, s{W}, 3
    s_lshr_b32 s{KH}, s{W}, 2
    s_lshl_b32 s28, s{QB}, 3
    s_lshl_b32 s3, s{QG}, 1
    s_add_u32 s28, s28, s3
    s_add_u32 s28, s28, s{KH}
    v_lshlrev_b32 v6, 3, v0
    """)
    for i in range(2):
        a(f"""
        s_xor_b32 s3, s28, {i}
        s_lshl_b32 s3, s3, 9
        s_add_u32 s29, s3, s20
        s_add_u32 s30, s3, s21
        s_add_u32 s31, s3, s22
        buffer_load_dwordx2 {vr(QM[i],2)}, v6, {sr(SO,4)}, s29 offen
        buffer_load_dwordx2 {vr(QM[i]+2,2)}, v6, {sr(SO,4)}, s30 offen
        buffer_load_dwordx2 {vr(QT[i],2)}, v6, {sr(SO,4)}, s31 offen
        """)
    a(f"""
    s_lshl_b32 s3, s{KH}, 13
    v_add_u32 v{KA}, s3, v6
    v_lshlrev_b32 v{VA}, 4, v0
    v_add_u32 v{VA}, s3, v{VA}
    v_mov_b32 v{KT[0]+2}, 0x3f803f80
    v_mov_b32 v{KT[0]+3}, 0x3f80
    v_mov_b32 v{KT[1]+2}, 0x3f803f80
    v_mov_b32 v{KT[1]+3}, 0x3f80
    v_lshrrev_b32 v7, 5, v0             ; h
    v_cmp_eq_u32 vcc, s13, v7
    s_mov_b32 s{MODE}, 0
    s_waitcnt vmcnt(0)
    """)
    for i in range(2):
        a(f"""
        v_cndmask_b32 v{QT[i]}, 0, v{QT[i]}, vcc
        v_cndmask_b32 v{QT[i]+1}, 0, v{QT[i]+1}, vcc
        v_mov_b32 v{QT[i]+2}, 0
        v_mov_b32 v{QT[i]+3}, 0
        """)
    def rdK(b, t):
        return [f"ds_read2st64_b64 {vr(KM[b],4)}, v{KA} offset0:{t} offset1:{2+t}",
                f"ds_read_b64 {vr(KT[b],2)}, v{KA} offset:{(4+t)*512}"]
    def rdV(b, t):
        return [f"ds_read_b128 {vr(V[b],4)}, v{VA} offset:{3072+t*2048}",
                f"ds_read_b128 {vr(V[b]+4,4)}, v{VA} offset:{3072+t*2048+1024}"]
    def qk(kb, q):
        return [f"v_mfma_f32_32x32x16_bf16 {vr(S[q],16)}, {vr(KM[kb],4)}, {vr(QM[q],4)}, 0",
                f"v_mfma_f32_32x32x16_bf16 {vr(S[q],16)}, {vr(KT[kb],4)}, {vr(QT[q],4)}, {vr(S[q],16)}"]
    def pv(vb, q):
        return [f"v_mfma_f32_32x32x16_bf16 {vr(O[q],16)}, {vr(V[vb],4)}, {vr(P[q],4)}, {vr(O[q],16)}",
                f"v_mfma_f32_32x32x16_bf16 {vr(O[q],16)}, {vr(V[vb]+4,4)}, {vr(P[q]+4,4)}, {vr(O[q],16)}"]
    def rowmax(q, dst, init):
        s = S[q]
        if init:
            a(f"v_max3_f32 v{dst}, v{s}, v{s+1}, v{s+2}"); rest = list(range(3, 16))
        else:
            rest = list(range(16))
        while len(rest) >= 2:
            a(f"v_max3_f32 v{dst}, v{dst}, v{s+rest[0]}, v{s+rest[1]}"); rest = rest[2:]
        if rest: a(f"v_max_f32 v{dst}, v{dst}, v{s+rest[0]}")
    def set_shift():
        a("v_cmp_eq_u32 vcc, 0, v7")
        for i in range(2):
            a(f"""
            v_mov_b32 v1, v{M[i]}
            v_permlane32_swap_b32 v{M[i]}, v1
            v_max_f32 v{M[i]}, v{M[i]}, v1
            v_sub_f32 v1, 0, v{M[i]}
            v_and_b32 v6, 0xffff0000, v1
            v_sub_f32 v1, v1, v6
            v_and_b32 v{P[0]}, 0xffff0000, v1   ; mid
            v_sub_f32 v1, v1, v{P[0]}
            v_lshrrev_b32 v6, 16, v6
            v_or_b32 v6, v6, v{P[0]}
            v_lshrrev_b32 v1, 16, v1
            v_cndmask_b32 v{QT[i]+2}, 0, v6, vcc
            v_cndmask_b32 v{QT[i]+3}, 0, v1, vcc
            """)
    stamp(a, 1, st)
    a("s_barrier")
    stamp(a, 2, st)
    for x in rdK(0, 0): a(x)
    a("s_waitcnt lgkmcnt(0)")
    for x in qk(0, 0) + qk(0, 1): a(x)
    rowmax(0, M[0], True); rowmax(1, M[1], True)
    set_shift()
    a.label(L("restart"))
    for x in rdK(1, 1) + rdV(0, 0): a(x)
    for x in qk(0, 0): a(x)
    for i in range(16):
        a(f"v_mov_b32 v{O[0]+i}, 0"); a(f"v_mov_b32 v{O[1]+i}, 0")
    for i in range(8):
        a(f"v_mov_b32 v{P[1]+i}, 0"); a(f"v_mov_b32 v{V[1]+i}, 0")
    a(f"s_mov_b32 s{CNT}, 16")
    def phase(q, mf, extra=None, pre=None):
        extra = extra or {}
        for g in range(4):
            if pre and g in pre:
                for x in pre[g]: a(x)
            a(mf[g])
            for x in extra.get(g, []): a(x)
            for i in range(4): a(f"v_exp_f32 v{S[q]+4*g+i}, v{S[q]+4*g+i}")
            for i in range(2): a(f"v_cvt_pk_bf16_f32 v{P[q]+2*g+i}, v{S[q]+4*g+2*i}, v{S[q]+4*g+2*i+1}")
    a(".p2align 6")
    a.label(L("loop"))
    lo0 = {lowat[1]: ["s_setprio 1"]} if lowat and lowat[0] == 0 else {}
    lo1 = {lowat[1]: ["s_setprio 1"]} if lowat and lowat[0] == 1 else {}
    hi = ["s_setprio 2"] if lowat else []
    phase(0, qk(0, 1) + pv(1, 1), pre=lo0)
    phase(1, qk(1, 0) + pv(0, 0), extra={0: rdV(1, 1)}, pre={**lo1, 0: lo1.get(0, []) + ["s_waitcnt lgkmcnt(0)"]})
    phase(0, qk(1, 1) + pv(0, 1),
          pre={0: ["s_waitcnt lgkmcnt(0)", "s_barrier"] + hi + [f"v_xor_b32 v{KA}, {KV_SLOT}, v{KA}", f"v_xor_b32 v{VA}, {KV_SLOT}, v{VA}"]},
          extra={0: rdK(0, 0)})
    phase(1, qk(0, 0) + pv(1, 0), pre={0: ["s_waitcnt lgkmcnt(0)"]}, extra={0: rdK(1, 1), 1: rdV(0, 0)})
    a(f"""
    s_sub_u32 s{CNT}, s{CNT}, 1
    s_cmp_lg_u32 s{CNT}, 0
    s_cbranch_scc1 {L('loop')}
    """)
    for x in pv(1, 1): a(x)
    stamp(a, 3, st)
    a(f"""
    s_waitcnt lgkmcnt(0)
    s_lshl_b32 s3, s{W}, 12
    v_lshlrev_b32 v6, 4, v0
    v_add_u32 v6, s3, v6
    v_add_u32 v6, {EX_OFF}, v6
    v_mov_b32 v1, 0x5d800000
    v_mov_b32 v{O[1]+12}, v{M[1]}
    v_cmp_nle_f32 vcc, v{O[0]+8}, v1
    v_cmp_nle_f32 s[30:31], v{O[1]+8}, v1
    s_or_b32 s30, s31, vcc_hi
    ds_write_b128 v6, {vr(O[1],4)}
    ds_write_b128 v6, {vr(O[1]+4,4)} offset:1024
    ds_write_b128 v6, {vr(O[1]+8,4)} offset:2048
    ds_write_b32 v6, v{O[1]+12} offset:3072
    s_cmp_eq_u32 s30, 0
    s_cbranch_scc1 {L('noflag')}
    v_mov_b32 v1, {FLAG_OFF}
    v_mov_b32 v{P[0]}, 1
    ds_write_b32 v1, v{P[0]}
    """)
    a.label(L("noflag"))
    a(f"""
    s_waitcnt lgkmcnt(0)
    s_barrier
    v_mov_b32 v1, {FLAG_OFF}
    ds_read_b32 v1, v1
    v_xor_b32 v6, 0x4000, v6
    ds_read_b128 {vr(S[0],4)}, v6
    ds_read_b128 {vr(S[0]+4,4)}, v6 offset:1024
    ds_read_b128 {vr(S[0]+8,4)}, v6 offset:2048
    ds_read_b32 v{S[0]+12}, v6 offset:3072
    s_waitcnt lgkmcnt(4)
    v_readfirstlane_b32 s30, v1
    s_andn2_b32 s30, s30, s{MODE}
    s_cmp_lg_u32 s30, 0
    s_cbranch_scc1 {L('slow')}
    s_waitcnt lgkmcnt(0)
    v_max_f32 v1, v{M[0]}, v{S[0]+12}
    v_sub_f32 v{P[0]}, v{M[0]}, v1
    v_sub_f32 v{P[0]+2}, v{S[0]+12}, v1
    v_exp_f32 v{P[0]}, v{P[0]}
    v_exp_f32 v{P[0]+2}, v{P[0]+2}
    """)
    for i in range(0, 12, 2):
        a(f"v_pk_mul_f32 {vr(O[0]+i,2)}, {vr(O[0]+i,2)}, {vr(P[0],2)} op_sel_hi:[1,0]")
        a(f"v_pk_fma_f32 {vr(O[0]+i,2)}, {vr(S[0]+i,2)}, {vr(P[0]+2,2)}, {vr(O[0]+i,2)} op_sel_hi:[1,0,1]")
    a(f"""
    v_mov_b32 v1, v{O[0]+8}
    v_mov_b32 v6, v{O[0]+8}
    v_permlane32_swap_b32 v1, v6
    v_rcp_f32 v{P[0]}, v6
    s_lshl_b32 s3, s28, 5
    s_add_u32 s3, s3, s{HEAD}
    s_lshl_b32 s29, s3, 10
    s_add_u32 s29, s29, {OM_OFF}
    s_lshl_b32 s30, s3, 8
    s_add_u32 s30, s30, {OT_OFF}
    v_lshlrev_b32 v1, 4, v0
    v_lshlrev_b32 v6, 3, v0
    """)
    for i in range(0, 12, 2):
        a(f"v_pk_mul_f32 {vr(O[0]+i,2)}, {vr(O[0]+i,2)}, {vr(P[0],2)} op_sel_hi:[1,0]")
    for i in range(6):
        a(f"v_cvt_pk_bf16_f32 v{S[0]+i}, v{O[0]+2*i}, v{O[0]+2*i+1}")
    a(f"""
    buffer_store_dwordx4 {vr(S[0],4)}, v1, {sr(SO,4)}, s29 offen
    s_mov_b32 exec_hi, 0
    buffer_store_dwordx2 {vr(S[0]+4,2)}, v6, {sr(SO,4)}, s30 offen
    s_mov_b64 exec, -1
    """)
    stamp(a, 4, st)
    if st: a("s_waitcnt vmcnt(0)")
    stamp(a, 5, st)
    stamp_flush(a, 6, st, W, SO)
    a("s_endpgm")
    a.label(L("slow"))
    a(f"""
    s_mov_b32 s{MODE}, 1
    s_waitcnt lgkmcnt(0)
    """)
    for i in range(2):
        a(f"v_mov_b32 v{QT[i]+2}, 0"); a(f"v_mov_b32 v{QT[i]+3}, 0"); a(f"v_mov_b32 v{M[i]}, 0xff800000")
    a(f"s_mov_b32 s{CNT}, 16")
    a.label(L("maxloop"))
    a("s_barrier")
    for x in rdK(0, 0) + rdK(1, 1): a(x)
    a(f"v_xor_b32 v{KA}, {KV_SLOT}, v{KA}")
    a("s_waitcnt lgkmcnt(0)")
    for t in range(2):
        for x in qk(t, 0) + qk(t, 1): a(x)
        rowmax(0, M[0], False); rowmax(1, M[1], False)
    a(f"""
    s_sub_u32 s{CNT}, s{CNT}, 1
    s_cmp_lg_u32 s{CNT}, 0
    s_cbranch_scc1 {L('maxloop')}
    s_barrier
    """)
    set_shift()
    a("s_barrier")
    for x in rdK(0, 0): a(x)
    a("s_waitcnt lgkmcnt(0)")
    a(f"s_branch {L('restart')}")
    a.label(L("loader"))
    vm = VM(a)
    LW = 24
    SWU, SXN, SW2 = 40, 44, 48
    TB, FBK, TK, CB = 4, 5, 6, 7
    a(f"""
    s_sub_u32 s{LW}, s{W}, 8
    s_lshr_b32 s25, s{LW}, 1
    s_and_b32 s26, s{LW}, 1
    v_lshlrev_b32 v2, 4, v0             ; lane*16
    v_lshrrev_b32 v1, 5, v0             ; h
    v_mul_u32_u24 v3, 10240, v1
    v_and_b32 v4, 31, v0
    v_lshl_add_u32 v3, v4, 4, v3        ; V voffset
    s_lshl_b32 s3, s25, 14
    s_add_u32 s3, s3, {QK_OFF+QK_TYPE}
    s_cmp_eq_u32 s26, 0
    s_cselect_b32 s28, s20, s22
    s_cselect_b32 s29, s21, s22
    s_cselect_b32 s27, 1024, 0
    s_cselect_b32 s{SWU}, s52, s54
    s_cselect_b32 s{SWU+1}, s53, s55
    s_add_u32 s28, s28, s3
    s_add_u32 s29, s29, s3
    s_lshl_b32 s3, s25, 6
    s_lshl_b32 s30, s26, 1
    s_add_u32 s3, s3, s30
    s_mul_i32 s3, s3, 20480
    s_mul_i32 s30, s{HEAD}, 320
    s_add_u32 s30, s30, s3
    s_add_u32 s30, s30, {VT_OFF}
    s_lshl_b32 s31, s25, 13
    s_lshl_b32 s3, s26, 11
    s_add_u32 s31, s31, s3
    s_mov_b32 s32, 0
    s_lshl_b32 s33, s{QB}, 11
    s_mul_i32 s34, s33, 80
    """)
    def kv_issue(tag="kv", track=True):
        iss = (lambda t: vm.issue(t, tag)) if track else a
        a(f"""
        s_add_u32 s3, s28, s33
        s_add_u32 s35, s31, s32
        s_mov_b32 m0, s35
        """)
        iss(f"buffer_load_dwordx4 v2, {sr(SO,4)}, s3 offen lds")
        a(f"""
        s_add_u32 s3, s29, s33
        s_add_u32 m0, s35, s27
        """)
        iss(f"buffer_load_dwordx4 v2, {sr(SO,4)}, s3 offen lds")
        a(f"""
        s_add_u32 s3, s30, s34
        s_add_u32 m0, s35, 3072
        s_mov_b32 exec_lo, 0x000fffff
        s_mov_b32 exec_hi, 0x000fffff
        """)
        iss(f"buffer_load_dwordx4 v3, {sr(SO,4)}, s3 offen lds")
        a(f"""
        s_add_u32 s3, s3, 20480
        s_add_u32 m0, s35, 4096
        """)
        iss(f"buffer_load_dwordx4 v3, {sr(SO,4)}, s3 offen lds")
        a(f"""
        s_mov_b64 exec, -1
        s_xor_b32 s32, s32, {KV_SLOT}
        s_add_u32 s33, s33, 1024
        s_and_b32 s33, s33, 0x3fff
        s_mul_i32 s34, s33, 80
        """)
    def fill_ones(tag):
        a(f"""
        s_cmp_lg_u32 s{LW}, 0
        s_cbranch_scc1 {L('nofill'+tag)}
        v_and_b32 v164, 7, v0
        v_lshlrev_b32 v164, 9, v164
        v_bfe_u32 v165, v0, 3, 2
        v_lshl_add_u32 v164, v165, 13, v164
        v_mov_b32 v160, 0x3f803f80
        v_mov_b32 v161, 0x3f803f80
        v_mov_b32 v162, 0x3f803f80
        v_mov_b32 v163, 0x3f803f80
        ds_write_b128 v164, v[160:163] offset:{3072+320}
        """)
        a.label(L("nofill" + tag))
    kv_issue()
    fill_ones("a")
    a(f"""
    v_mov_b32 v5, {FLAG_OFF}
    v_mov_b32 v6, 0
    ds_write_b32 v5, v6
    s_and_b32 s{SWU+1}, s{SWU+1}, 0xffff
    s_mov_b32 s{SWU+2}, {640*3072}
    s_mov_b32 s{SWU+3}, 0x00020000
    """)
    srd(a, SXN, 8, WS_USED)
    srd(a, SW2, 56, 1536 * 1280)
    UP = 5; DN = 8
    row192(a, UP, 3072, 11, 12)
    a(f"""
    s_and_b32 s3, s2, 1
    s_lshl_b32 s3, s3, 3
    s_bfe_u32 s{TB}, s2, 0x30003
    s_add_u32 s{TB}, s{TB}, s3           ; tb
    s_bfe_u32 s3, s2, 0x20001
    s_lshl_b32 s3, s3, 2
    s_lshr_b32 s{FBK}, s2, 6
    s_add_u32 s{FBK}, s{FBK}, s3         ; fb
    s_lshl_b32 s36, s{TB}, 2
    s_add_u32 s36, s36, s{LW}
    s_mul_i32 s36, s36, 40960
    s_add_u32 s36, s36, {XN_OFF}
    s_mul_i32 s37, s{FBK}, 192
    s_bfe_u32 s3, s2, 0x30003
    s_mul_i32 s3, s3, {rot_up[0]}
    s_lshr_b32 s56, s2, 6
    s_mul_i32 s56, s56, {rot_up[1]}
    s_add_u32 s56, s56, s3
    s_cmp_ge_u32 s56, 40
    s_cselect_b32 s3, 40, 0
    s_sub_u32 s56, s56, s3
    s_mul_i32 s38, s{LW}, 6144
    s_add_u32 s38, s38, {FB}
    s_mul_i32 s39, s26, {FW3D}
    s_add_u32 s39, s39, {FB+FW1}
    """)
    def f_dmas(nks):
        per = nks // 2
        g = []
        pre = [f"s_mul_i32 s54, s25, {per}", "s_add_u32 s54, s54, s56",
               f"s_mul_i32 s59, s25, {per*3072}", "s_add_u32 s59, s59, s39"]
        xs = []
        for ks in range(nks):
            xs.append([f"s_add_u32 s57, s56, {ks}", "s_cmp_ge_u32 s57, 40", "s_cselect_b32 s3, 40, 0", "s_sub_u32 s57, s57, s3",
                       "s_lshl_b32 s57, s57, 10", "s_add_u32 s57, s57, s36",
                       f"s_add_u32 m0, s38, {ks*1024}", ("f", f"buffer_load_dwordx4 v2, {sr(SXN,4)}, s57 offen lds")])
        wsx = []
        for k in range(per):
            for p in range(3):
                it = [f"s_add_u32 m0, s59, {k*3072+p*1024}", ("f", f"buffer_load_dwordx4 v{UP+p}, {sr(SWU,4)}, s58 offen lds")]
                if p == 0:
                    it = [f"s_add_u32 s58, s54, {k}", "s_cmp_ge_u32 s58, 40", "s_cselect_b32 s3, 40, 0", "s_sub_u32 s58, s58, s3",
                          f"s_mul_i32 s58, s58, {16*3072}", "s_add_u32 s58, s58, s37"] + it
                wsx.append(it)
        wsx[0] = pre + wsx[0]
        while xs or wsx:
            if wsx: g.append(wsx.pop(0))
            if xs: g.append(xs.pop(0))
            if wsx and len(wsx) > len(xs): g.append(wsx.pop(0))
        g[-1] = g[-1] + [f"s_add_u32 s56, s56, {nks}", "s_cmp_ge_u32 s56, 40", "s_cselect_b32 s3, 40, 0", "s_sub_u32 s56, s56, s3", "s_add_u32 s38, s38, s23", "s_add_u32 s39, s39, s23", "s_sub_u32 s23, 0, s23"]
        return g
    def emit_group(grp, track=True):
        for x in grp:
            if isinstance(x, tuple):
                if track: vm.issue(x[1], x[0])
                else: a(x[1])
            else: a(x)
    a(f"s_mov_b32 s23, {FSLOT}")
    for g in f_dmas(4): emit_group(g)
    XA, WA, HA, W2A = 13, 14, 15, 16
    FBUF = [24, 44]
    ACC = 64
    row192(a, DN, 1280, 11, 12)
    a(f"""
    s_mul_i32 s3, s25, 12288
    s_add_u32 s3, s3, {FB}
    v_add_u32 v{XA}, s3, v2
    v_bfe_u32 v11, v0, 2, 2              ; r
    v_lshl_add_u32 v12, v1, 3, v11       ; 8h+r
    v_mul_u32_u24 v12, 192, v12
    v_and_b32 v17, 3, v0
    v_lshl_add_u32 v12, v17, 3, v12
    v_bfe_u32 v18, v0, 4, 1              ; m
    v_mul_u32_u24 v19, {FW3D}, v18
    v_add_u32 v12, v12, v19
    s_mul_i32 s3, s26, 96
    s_add_u32 s3, s3, {FB+FW1}
    v_add_u32 v{WA}, s3, v12
    s_mul_i32 s15, s{LW}, 30720
    s_add_u32 s15, s15, {FB}
    v_add_u32 v{HA}, s15, v2
    v_lshl_add_u32 v12, v1, 2, v11       ; 4h+r
    v_mul_u32_u24 v12, 192, v12
    v_lshl_add_u32 v12, v17, 3, v12
    v_lshl_add_u32 v12, v18, 5, v12
    v_add_u32 v12, 2048, v12
    v_add_u32 v{W2A}, s15, v12
    s_mov_b32 s14, {FSLOT}
    """)
    for i in range(96): a(f"v_mov_b32 v{ACC+i}, 0")
    stamp(a, 1, st)
    vm.wait("kv", extra="lgkmcnt(0)")
    a("s_barrier")
    kv_issue()
    vm.wait_all()
    a("s_barrier")
    def up_reads(b, ks):
        f = FBUF[b]; out = []
        out.append(f"ds_read_b128 {vr(f,4)}, v{XA} offset:{ks*1024}")
        for ft in range(3):
            for half in range(2):
                out.append(f"ds_read_b64_tr_b16 {vr(f+8+4*ft+2*half,2)}, v{WA} offset:{ks*3072 + half*768 + ft*32}")
            if ft == 0: out.append(f"ds_read_b128 {vr(f+4,4)}, v{XA} offset:{6144+ks*1024}")
        return out
    def mfmas(b, first=False):
        f = FBUF[b]; out = []
        for ft in range(3):
            for tt in range(2):
                acc = ACC + 16 * (ft * 2 + tt)
                c = "0" if first else vr(acc, 16)
                out.append(f"v_mfma_f32_32x32x16_bf16 {vr(acc,16)}, {vr(f+8+4*ft,4)}, {vr(f+4*tt,4)}, {c}")
        return out
    def kstep(b, nxt, groups, track, first=False):
        a("s_waitcnt lgkmcnt(0)")
        m = mfmas(b, first)
        for i in range(6):
            a(m[i])
            if i < 4:
                for x in nxt[2*i:2*i+2]: a(x)
            if i >= 2 and groups: emit_group(groups.pop(0), track)
    def up_stage(nks, track):
        kv_issue(track=track)
        groups = f_dmas(6)
        for x in up_reads(0, 0): a(x)
        for ks in range(nks):
            nxt = up_reads((ks + 1) % 2, ks + 1) if ks + 1 < nks else []
            kstep(ks % 2, nxt, groups, track)
        while groups: emit_group(groups.pop(0), track)
        a(f"""
        v_add_u32 v{XA}, s14, v{XA}
        v_add_u32 v{WA}, s14, v{WA}
        s_sub_u32 s14, 0, s14
        s_waitcnt vmcnt(0)
        s_barrier
        """)
    up_stage(4, False)
    a("s_mov_b32 s13, 6")
    a(".p2align 6")
    a.label(L("uploop"))
    a(f"""
    s_cmp_eq_u32 s13, 1
    s_cselect_b32 s{SWU+2}, 0, s{SWU+2}
    s_cselect_b32 s{SXN+2}, 0, s{SXN+2}
    """)
    up_stage(6, False)
    a(f"""
    s_sub_u32 s13, s13, 1
    s_cmp_lg_u32 s13, 0
    s_cbranch_scc1 {L('uploop')}
    """)
    stamp(a, 2, st)
    kv_issue()
    a(f"""
    s_mov_b32 s58, {f2u(-1.4426950408889634):#x}
    s_mov_b32 s59, s58
    s_mov_b32 s52, 1.0
    s_mov_b32 s53, 1.0
    s_lshl_b32 s3, s{TB}, 2
    s_lshl_b32 s36, s25, 1
    s_add_u32 s3, s3, s36
    s_mul_i32 s36, s3, 96                ; toktile*96
    s_mul_i32 s3, s{FBK}, 6
    s_add_u32 s36, s36, s3
    s_mul_i32 s3, s26, 3
    s_add_u32 s36, s36, s3
    s_lshl_b32 s36, s36, 10
    s_add_u32 s36, s36, {H_OFF}
    s_add_u32 s37, s36, {96*1024}
    """)
    for ft in range(3):
        for tt in range(2):
            g = ACC + 16 * (ft * 2 + tt); u = g + 8
            T = 24 + 8 * ((ft * 2 + tt) % 2)
            for i in range(0, 8, 2): a(f"v_pk_mul_f32 {vr(T+i,2)}, {vr(g+i,2)}, s[58:59]")
            for i in range(8): a(f"v_exp_f32 v{T+i}, v{T+i}")
            for i in range(0, 8, 2): a(f"v_pk_mul_f32 {vr(g+i,2)}, {vr(g+i,2)}, {vr(u+i,2)}")
            for i in range(0, 8, 2): a(f"v_pk_add_f32 {vr(T+i,2)}, {vr(T+i,2)}, s[52:53]")
            for i in range(8): a(f"v_rcp_f32 v{T+i}, v{T+i}")
            for i in range(0, 8, 2): a(f"v_pk_mul_f32 {vr(g+i,2)}, {vr(g+i,2)}, {vr(T+i,2)}")
            for i in range(4): a(f"v_cvt_pk_bf16_f32 v{u+i}, v{g+2*i}, v{g+2*i+1}")
            vm.issue(f"buffer_store_dwordx4 {vr(u,4)}, v2, {sr(SO,4)}, s{36+tt} offen offset:{ft*1024} sc1", "hs")
    a(f"""
    s_lshl_b32 s3, s{TB}, 4
    s_add_u32 s3, s3, s{FBK}
    s_lshl_b32 s3, s3, 2
    s_add_u32 s3, s3, s{LW}
    s_lshl_b32 s3, s3, 2
    s_add_u32 s3, s3, {FLG_OFF}
    v_mov_b32 v11, 0
    v_mov_b32 v12, 1
    """)
    a("s_mov_b32 s55, s3")
    stamp(a, 3, st)
    vm.wait("kv")
    a("s_barrier")
    kv_issue()
    def flag_store():
        a("s_mov_b64 exec, 1")
        vm.issue(f"buffer_store_dword v12, v11, {sr(SO,4)}, s55 offen sc1", "fl")
        a("s_mov_b64 exec, -1")
    vm.wait("hs")
    flag_store()
    a(f"""
    s_lshr_b32 s3, s2, 3
    s_cmp_ge_u32 s3, 28
    s_cbranch_scc1 {L('idle')}
    s_lshr_b32 s{CB}, s3, 2
    s_and_b32 s3, s3, 3
    s_and_b32 s{TK}, s2, 7
    s_lshl_b32 s{TK}, s{TK}, 2
    s_add_u32 s{TK}, s{TK}, s3
    s_mul_i32 s38, s{LW}, {24*16*1280}
    s_mul_i32 s3, s{CB}, 192
    s_add_u32 s38, s38, s3               ; w2 source
    s_mul_i32 s36, s{TK}, 192
    s_mul_i32 s3, s{LW}, 24
    s_add_u32 s36, s36, s3
    s_lshl_b32 s36, s36, 10
    s_add_u32 s36, s36, {H_OFF}
    s_mul_i32 s56, s{CB}, {rot_dn[0]}
    s_and_b32 s3, s{TK}, 3
    s_mul_i32 s3, s3, {rot_dn[1]}
    s_add_u32 s56, s56, s3
    s_cmp_ge_u32 s56, 24
    s_cselect_b32 s3, 24, 0
    s_sub_u32 s56, s56, s3
    s_mov_b32 s57, s56
    s_lshr_b32 s3, s{TK}, 1
    s_lshl_b32 s3, s3, 8
    s_lshl_b32 s39, s{LW}, 6
    s_add_u32 s39, s39, s3
    s_add_u32 s39, s39, {FLG_OFF}
    """)
    def w2_groups(j):
        o = (j % 6) * 5120 + 2048; g = []
        for p in range(3):
            it = [f"s_add_u32 m0, s15, {o+p*1024}", (f"d{j}", f"buffer_load_dwordx4 v{DN+p}, {sr(SW2,4)}, s58 offen lds")]
            if p == 0: it = [f"s_mul_i32 s58, s56, {16*1280}", "s_add_u32 s58, s58, s38"] + it
            if p == 2: it += ["s_add_u32 s56, s56, 1", "s_cmp_eq_u32 s56, 24", "s_cselect_b32 s56, 0, s56"]
            g.append(it)
        return g
    def h_groups(j):
        o = (j % 6) * 5120
        return [["s_lshl_b32 s59, s57, 10", "s_add_u32 s59, s59, s36", f"s_add_u32 m0, s15, {o}", (f"d{j}", f"buffer_load_dwordx4 v2, {sr(SO,4)}, s59 offen sc1 lds")],
                [f"s_add_u32 s59, s59, {96*1024}", f"s_add_u32 m0, s15, {o+1024}", (f"d{j}", f"buffer_load_dwordx4 v2, {sr(SO,4)}, s59 offen sc1 lds"),
                 "s_add_u32 s57, s57, 1", "s_cmp_eq_u32 s57, 24", "s_cselect_b32 s57, 0, s57"]]
    for j in range(6):
        for g in w2_groups(j): emit_group(g)
    nbar = 10
    a(f"""
    v_and_b32 v11, 15, v0
    v_lshlrev_b32 v11, 2, v11
    s_mov_b32 s13, 0x100000
    """)
    a.label(L("poll"))
    a(f"""
    buffer_load_dword v12, v11, {sr(SO,4)}, s39 offen sc1
    s_sub_u32 s13, s13, 1
    s_cmp_eq_u32 s13, 0
    s_cbranch_scc1 {L('polled')}
    s_waitcnt vmcnt(0)
    v_cmp_ne_u32 vcc, 1, v12
    s_nop 4
    s_cbranch_vccnz {L('poll')}
    """)
    a.label(L("polled"))
    vm.wait_all()
    for j in range(6):
        for g in h_groups(j): emit_group(g)
    stamp(a, 4, st)
    def dn_reads(b, j):
        f = FBUF[b]; o = (j % 6) * 5120; out = []
        out.append(f"ds_read_b128 {vr(f,4)}, v{HA} offset:{o}")
        for ct in range(3):
            for half in range(2):
                out.append(f"ds_read_b64_tr_b16 {vr(f+8+4*ct+2*half,2)}, v{W2A} offset:{o + half*1536 + ct*64}")
            if ct == 0: out.append(f"ds_read_b128 {vr(f+4,4)}, v{HA} offset:{o+1024}")
        return out
    def slowcheck(tag):
        a(f"""
        v_mov_b32 v160, {FLAG_OFF}
        ds_read_b32 v160, v160
        s_waitcnt lgkmcnt(0)
        v_readfirstlane_b32 s3, v160
        s_mov_b32 s13, {tag}
        s_cmp_lg_u32 s3, 0
        s_cbranch_scc1 {L('service')}
        """)
        a.label(L(f"back{tag}"))
    vm.wait("d0")
    for x in dn_reads(0, 0): a(x)
    for j in range(24):
        nxt = []
        if j + 1 < 24:
            vm.wait(f"d{j+1}")
            nxt = dn_reads((j + 1) % 2, j + 1)
        groups = []
        if j + 6 < 24:
            hg = h_groups(j + 6); wg_ = w2_groups(j + 6)
            groups = [hg[0] + wg_[0], hg[1], wg_[1], wg_[2]]
        kstep(j % 2, nxt, groups, True, first=(j == 0))
        while j in bar_after[nbar - 10:nbar - 9]:
            vm.wait("kv")
            a("s_barrier")
            if nbar <= 14: kv_issue()
            if nbar == 17: slowcheck(0)
            nbar += 1
    assert nbar == 18, nbar
    stamp(a, 5, st)
    a(f"""
    v_mul_u32_u24 v11, 400, v4
    v_lshl_add_u32 v11, v1, 4, v11
    v_add_u32 v11, s15, v11
    """)
    for ct in range(3):
        for tt in range(2):
            for j in range(4):
                a(f"ds_write_b128 v11, {vr(ACC+16*(ct*2+tt)+4*j,4)} offset:{tt*12800 + ct*128 + j*32}")
    a(f"""
    s_lshl_b32 s3, s{LW}, 6
    v_add_u32 v17, s3, v0
    """)
    for n in range(3):
        a(f"""
        v_add_u32 v11, {256*n}, v17
        v_mul_u32_u24 v12, 0xaab, v11
        v_lshrrev_b32 v12, 15, v12
        v_mul_u32_u24 v13, 12, v12
        v_sub_u32 v11, v11, v13
        v_mul_u32_u24 v13, 400, v12
        v_lshl_add_u32 v{18+n}, v11, 5, v13
        v_add_u32 v{18+n}, {FB}, v{18+n}
        v_add_u32 v{21+n}, 61440, v{18+n}
        """)
    a(f"""
    s_mul_i32 s39, s2, 24576
    s_add_u32 s39, s39, {PART_OFF}
    v_lshlrev_b32 v17, 5, v17
    s_waitcnt lgkmcnt(0)
    s_barrier
    """)
    for n in range(3):
        for w in range(4):
            ad = f"v{18+n}" if w < 2 else f"v{21+n}"
            for hf in range(2):
                a(f"ds_read_b128 {vr(ACC+32*n+8*w+4*hf,4)}, {ad} offset:{(w%2)*30720 + hf*16}")
    for n in range(3):
        a(f"s_waitcnt lgkmcnt({min(15, 8*(2-n))})")
        b = ACC + 32 * n
        for i in range(0, 8, 2):
            a(f"v_pk_add_f32 {vr(b+i,2)}, {vr(b+i,2)}, {vr(b+8+i,2)}")
            a(f"v_pk_add_f32 {vr(b+16+i,2)}, {vr(b+16+i,2)}, {vr(b+24+i,2)}")
        for i in range(0, 8, 2):
            a(f"v_pk_add_f32 {vr(b+i,2)}, {vr(b+i,2)}, {vr(b+16+i,2)}")
        if n: a("s_add_u32 s39, s39, 8192")
        a(f"buffer_store_dwordx4 {vr(b,4)}, v17, {sr(SO,4)}, s39 offen")
        a(f"buffer_store_dwordx4 {vr(b+4,4)}, v17, {sr(SO,4)}, s39 offen offset:16")
    stamp(a, 6, st)
    if st: a("s_waitcnt vmcnt(0)")
    stamp(a, 7, st)
    stamp_flush(a, 8, st, W, SO)
    a("s_endpgm")
    a.label(L("idle"))
    a("s_mov_b32 s13, 5")
    a.label(L("idleloop"))
    a("s_waitcnt vmcnt(0)")
    a("s_barrier")
    kv_issue(track=False)
    a(f"""
    s_sub_u32 s13, s13, 1
    s_cmp_lg_u32 s13, 0
    s_cbranch_scc1 {L('idleloop')}
    s_waitcnt vmcnt(0)
    s_barrier
    s_barrier
    s_barrier
    """)
    slowcheck(1)
    a("s_endpgm")
    a.label(L("service"))
    a("s_mov_b32 s52, 2")
    fill_ones("b")
    a.label(L("stream"))
    kv_issue(track=False)
    a("s_mov_b32 s53, 15")
    a.label(L("lloop"))
    a("s_waitcnt vmcnt(0) lgkmcnt(0)")
    a("s_barrier")
    kv_issue(track=False)
    a(f"""
    s_sub_u32 s53, s53, 1
    s_cmp_lg_u32 s53, 0
    s_cbranch_scc1 {L('lloop')}
    s_waitcnt vmcnt(0)
    s_barrier
    s_barrier
    s_sub_u32 s52, s52, 1
    s_cmp_lg_u32 s52, 0
    s_cbranch_scc1 {L('stream')}
    s_barrier
    s_cmp_eq_u32 s13, 0
    s_cbranch_scc1 {L('back0')}
    """)
    a.label(L("end"))
    a("s_endpgm")
    return kernel_text(name, a.text(), 168, 100 if st else 60)

if __name__ == "__main__":
    print(gen_k2())
```

```python
from asmlib import *
from layout import *
from k1 import srd, stamp, stamp_flush

K3_LDS = 4 * 30720

def row192(a, dst, stride, tmp, tmp2):
    for p in range(3):
        a(f"""
        v_add_u32 v{tmp}, {64*p}, v0
        v_mul_u32_u24 v{tmp2}, 0xaab, v{tmp}
        v_lshrrev_b32 v{tmp2}, 15, v{tmp2}       ; row = G/12
        v_mul_u32_u24 v{dst+p}, 12, v{tmp2}
        v_sub_u32 v{tmp}, v{tmp}, v{dst+p}
        v_mul_u32_u24 v{tmp2}, {stride}, v{tmp2}
        v_lshl_add_u32 v{dst+p}, v{tmp}, 4, v{tmp2}
        """)

def tile_map(a, TK, CB, endlabel):
    a(f"""
    s_lshr_b32 s3, s2, 3
    s_cmp_ge_u32 s3, 28
    s_cbranch_scc1 {endlabel}
    s_lshr_b32 s{CB}, s3, 2
    s_and_b32 s3, s3, 3
    s_and_b32 s{TK}, s2, 7
    s_lshl_b32 s{TK}, s{TK}, 2
    s_add_u32 s{TK}, s{TK}, s3
    """)

def gen_k3(name="k3_kernel", st=False):
    a = Asm(); vm = VM(a)
    L = lambda s: f"{name}_{s}"
    TK, CB, W = 10, 11, 12
    SO, SW, SX, SD = 16, 20, 24, 28
    stamp(a, 0, st)
    a(f"""
    s_load_dwordx2 s[4:5], s[0:1], 0
    s_load_dwordx2 s[6:7], s[0:1], 16
    s_load_dwordx2 s[8:9], s[0:1], 72
    s_load_dwordx2 s[14:15], s[0:1], 56
    """)
    tile_map(a, TK, CB, L("end"))
    a(f"""
    v_mov_b32 v23, v0
    v_lshrrev_b32 v1, 6, v0
    v_and_b32 v0, 63, v0
    v_readfirstlane_b32 s{W}, v1
    """)
    WV = 2
    row192(a, WV, 1280, 5, 6)
    OF = 24
    OTL = OF + 64
    WF = [104, 116]
    ACC = 128
    a(f"""
    v_lshlrev_b32 v7, 4, v0              ; lane*16
    v_and_b32 v8, 31, v0
    v_lshlrev_b32 v8, 3, v8
    v_lshrrev_b32 v9, 5, v0              ; h
    v_lshl_add_u32 v8, v9, 9, v8
    v_bfe_u32 v10, v0, 2, 2              ; r
    v_bfe_u32 v11, v0, 4, 1
    v_lshlrev_b32 v11, 5, v11
    v_and_b32 v12, 3, v0
    v_lshl_add_u32 v11, v12, 3, v11      ; m*32 + c*8
    s_mul_i32 s32, s{W}, 30720
    v_add_u32 v11, s32, v11
    v_lshl_add_u32 v12, v9, 2, v10       ; 4h + r
    v_mul_u32_u24 v12, 192, v12
    v_add_u32 v12, v12, v11
    v_mul_u32_u24 v13, 40, v9
    v_add_u32 v13, v13, v10
    v_mul_u32_u24 v13, 192, v13
    v_add_u32 v13, v13, v11
    s_mul_i32 s33, s{W}, {160*1280}
    s_mul_i32 s3, s{CB}, 192
    s_add_u32 s33, s33, s3
    s_lshl_b32 s34, s{TK}, 6
    s_lshl_b32 s3, s{W}, 3
    s_add_u32 s34, s34, s3               ; (tk*2)*32 + 8w
    s_lshl_b32 s35, s34, 8
    s_add_u32 s35, s35, {OT_OFF}
    s_lshl_b32 s34, s34, 10
    s_add_u32 s34, s34, {OM_OFF}
    s_add_u32 s36, s34, 32768
    s_add_u32 s37, s35, 8192
    s_waitcnt lgkmcnt(0)
    """)
    srd(a, SX, 4, 2048 * 1280); srd(a, SW, 6, 640 * 1280); srd(a, SO, 8, WS_USED); srd(a, SD, 14, 2048 * 1280)
    stamp(a, 1, st)
    nw = 0
    def wdma(n):
        nonlocal nw
        for _ in range(n):
            if nw >= 30: return
            a(f"s_add_u32 m0, s32, {nw*1024}")
            vm.issue(f"buffer_load_dwordx4 v{WV + nw % 3}, {sr(SW,4)}, s33 offen lds", f"w{nw}")
            if nw % 3 == 2: a(f"s_add_u32 s33, s33, {16*1280}")
            nw += 1
    for hd in range(8):
        if hd == 4:
            a("s_add_u32 s34, s34, 4096"); a("s_add_u32 s36, s36, 4096")
        vm.issue(f"buffer_load_dwordx4 {vr(OF+8*hd,4)}, v7, {sr(SO,4)}, s34 offen offset:{(hd%4)*1024}", f"o{hd}")
        vm.issue(f"buffer_load_dwordx4 {vr(OF+8*hd+4,4)}, v7, {sr(SO,4)}, s36 offen offset:{(hd%4)*1024}", f"o{hd}")
        wdma(4)
        if hd % 4 == 3:
            g = hd // 4
            for tt in range(2):
                for k in range(2):
                    vm.issue(f"buffer_load_dwordx2 {vr(OTL+8*g+4*tt+2*k,2)}, v8, {sr(SO,4)}, s{35 if tt==0 else 37} offen offset:{g*1024+k*256}", f"t{g}")
    XR = 224
    a(f"""
    s_mul_i32 s38, s{TK}, {64*1280}
    s_mul_i32 s3, s{CB}, 192
    s_add_u32 s38, s38, s3
    """)
    for n in range(3):
        a(f"""
        v_add_u32 v5, {256*n}, v23
        v_mul_u32_u24 v6, 0xaab, v5
        v_lshrrev_b32 v6, 15, v6             ; token = t/12
        v_mul_u32_u24 v14, 12, v6
        v_sub_u32 v5, v5, v14                ; g
        v_mul_u32_u24 v14, 1280, v6
        v_lshl_add_u32 v{15+n}, v5, 4, v14
        v_mul_u32_u24 v14, 400, v6
        v_lshl_add_u32 v{18+n}, v5, 5, v14
        s_cmp_eq_u32 s{CB}, 6
        s_cselect_b32 s3, 8, 12
        v_cmp_gt_u32 vcc, s3, v5
        v_mov_b32 v14, 0x7f000000
        v_cndmask_b32 v{15+n}, v14, v{15+n}, vcc
        """)
    steps = [("m", 0), ("m", 1), ("m", 2), ("m", 3), ("t", 0), ("m", 4), ("m", 5), ("m", 6), ("m", 7), ("t", 1)]
    def wneed(s):
        k, i = s
        lastrow = 20 * i + 15 if k == "m" else 80 * i + 79
        return f"w{(lastrow * 12 + 11) // 64}"
    def rd(s, b):
        k, i = s; out = []
        for ct in range(3):
            for half in range(2):
                if k == "m": ad, off = 12, 20 * i * 192 + half * 1536 + ct * 64
                else: ad, off = 13, (80 * i + 16 + 20 * half) * 192 + ct * 64
                out.append(f"ds_read_b64_tr_b16 {vr(WF[b]+4*ct+2*half,2)}, v{ad} offset:{off}")
        return out
    vm.wait(wneed(steps[0]))
    for x in rd(steps[0], 0): a(x)
    for j, s in enumerate(steps):
        k, i = s
        if j + 1 < len(steps):
            vm.wait(wneed(steps[j + 1]), f"{'o' if k=='m' else 't'}{i}", extra="lgkmcnt(0)")
            for x in rd(steps[j + 1], (j + 1) % 2): a(x)
        else:
            vm.wait(f"t{i}", extra="lgkmcnt(0)")
        if j == 5:
            for n in range(3):
                vm.issue(f"buffer_load_dwordx4 {vr(XR+4*n,4)}, v{15+n}, {sr(SX,4)}, s38 offen", "x")
        ob = (OF + 8 * i) if k == "m" else (OTL + 8 * i)
        for ct in range(3):
            for tt in range(2):
                acc = ACC + 16 * (ct * 2 + tt)
                c = "0" if j == 0 else vr(acc, 16)
                a(f"v_mfma_f32_32x32x16_bf16 {vr(acc,16)}, {vr(WF[j%2]+4*ct,4)}, {vr(ob+4*tt,4)}, {c}")
        if j == 6:
            a(f"""
            s_mul_i32 s39, s2, 24576
            s_add_u32 s39, s39, {PART_OFF}
            v_lshlrev_b32 v5, 5, v23
            """)
            for n in range(3):
                if n: a(f"s_add_u32 s39, s39, 8192")
                vm.issue(f"buffer_load_dwordx4 {vr(OF+8*n,4)}, v5, {sr(SO,4)}, s39 offen", "p")
                vm.issue(f"buffer_load_dwordx4 {vr(OF+8*n+4,4)}, v5, {sr(SO,4)}, s39 offen offset:16", "p")
    stamp(a, 2, st)
    a(f"""
    v_and_b32 v5, 31, v0
    v_mul_u32_u24 v5, 400, v5
    v_lshl_add_u32 v5, v9, 4, v5
    v_add_u32 v5, s32, v5
    """)
    for ct in range(3):
        for tt in range(2):
            for j in range(4):
                a(f"ds_write_b128 v5, {vr(ACC+16*(ct*2+tt)+4*j,4)} offset:{tt*12800 + ct*128 + j*32}")
    a("s_waitcnt lgkmcnt(0)")
    a("s_barrier")
    stamp(a, 3, st)
    R = ACC
    for n in range(3):
        a(f"v_add_u32 v6, 61440, v{18+n}")
        for w in range(4):
            ad = f"v{18+n}" if w < 2 else "v6"
            for hf in range(2):
                a(f"ds_read_b128 {vr(R+32*n+8*w+4*hf,4)}, {ad} offset:{(w%2)*30720 + hf*16}")
    vm.wait_all()
    for n in range(3):
        a(f"s_waitcnt lgkmcnt({min(15, 8*(2-n))})")
        b = R + 32 * n; p = OF + 8 * n; x = XR + 4 * n
        for i in range(0, 8, 2):
            a(f"v_pk_add_f32 {vr(b+i,2)}, {vr(b+i,2)}, {vr(b+8+i,2)}")
            a(f"v_pk_add_f32 {vr(b+16+i,2)}, {vr(b+16+i,2)}, {vr(b+24+i,2)}")
            a(f"v_lshlrev_b32 v{b+8+i}, 16, v{x+i//2}")
            a(f"v_and_b32 v{b+9+i}, 0xffff0000, v{x+i//2}")
            a(f"v_pk_add_f32 {vr(b+i,2)}, {vr(b+i,2)}, {vr(b+16+i,2)}")
            a(f"v_pk_add_f32 {vr(p+i,2)}, {vr(p+i,2)}, {vr(b+8+i,2)}")
            a(f"v_pk_add_f32 {vr(b+i,2)}, {vr(b+i,2)}, {vr(p+i,2)}")
            a(f"v_cvt_pk_bf16_f32 v{x+i//2}, v{b+i}, v{b+i+1}")
        a(f"buffer_store_dwordx4 {vr(x,4)}, v{15+n}, {sr(SD,4)}, s38 offen")
    stamp(a, 4, st)
    if st: a("s_waitcnt vmcnt(0)")
    stamp(a, 5, st)
    stamp_flush(a, 6, st, W, SO)
    a.label(L("end"))
    a("s_endpgm")
    return kernel_text(name, a.text(), 240, 100 if st else 48)

if __name__ == "__main__":
    print(gen_k3())
```

```python
QK_OFF = 0
QK_TYPE = 80 * 64 * 512
VT_OFF = QK_OFF + 2 * QK_TYPE
XN_OFF = VT_OFF + 128 * 2 * 640 * 16
H_OFF = XN_OFF + 64 * 40 * 1024
OM_OFF = H_OFF + 64 * 96 * 1024
OT_OFF = OM_OFF + 64 * 32 * 1024
PART_OFF = OT_OFF + 64 * 32 * 256
FLG_OFF = PART_OFF + 2048 * 672 * 4
WS_USED = FLG_OFF + 4096
QSCALE = (20 ** -0.5) * 1.4426950408889634
import struct
def f2u(x): return struct.unpack("<I", struct.pack("<f", x))[0]
```

```python
import sys
from build import *
from k1 import *
from k2 import *
from k3 import *
k1 = gen_k1(); k3 = gen_k3()
build([("k1_kernel", 256, 512, K1_LDS, k1), ("k2_kernel", 256, 768, K2_LDS, gen_k2(st=True)), ("k3_kernel", 256, 256, K3_LDS, k3)], "t3.s")
build([("k1_kernel", 256, 512, K1_LDS, k1), ("k2_kernel", 256, 768, K2_LDS, gen_k2()), ("k3_kernel", 256, 256, K3_LDS, k3)], f"cdna_kernels/{NAME}.s")
```

```python
import sys
from build import *
from k1 import *
from k2 import *
from k3 import *
k1 = gen_k1(); k3 = gen_k3(); k2 = gen_k2()
e = kernel_text("e_kernel", "    s_endpgm\n", 32, 40)
K1 = ("k1_kernel", 256, 512, K1_LDS, k1); K2 = ("k2_kernel", 256, 768, K2_LDS, k2); K3 = ("k3_kernel", 256, 256, K3_LDS, k3)
E = ("e_kernel", 256, 256, 0, e)
build([K1, K2, K3], "v_a.s")
build([K1, K2, K3, E, E, E, E], "v_b.s")
build([E, E, E, E, K1, K2, K3], "v_c.s")
build([K1, K1, K2, K3], "v_d.s")
build([K1, K2, K3, K3], "v_e.s")
build([K1, K2, K1, K2, K3], "v_f.s")
```

```python
from asmlib import *
from layout import *
from k1 import srd, stamp, stamp_flush
from k3 import row192

KV_SLOT = 16384
EX_OFF = 0
FB = 32768
FSLOT = 61504
FW1 = 24576
FW3D = 18432 + 32
FLAG_OFF = FB + 2 * FSLOT
K2_LDS = FLAG_OFF + 64

def gen_k2(name="k2_kernel", st=False, lowat=(1, 1), bar_after=(1, 4, 7, 10, 13, 16, 18, 19), rot_up=(5, 10), rot_dn=(3, 6), noffn=False):
    a = Asm()
    L = lambda s: f"{name}_{s}"
    HEAD, QB, W = 10, 11, 12
    SO = 16
    stamp(a, 0, st)
    a(f"""
    s_cmp_ge_u32 s2, 256
    s_cbranch_scc1 {L('end')}
    s_load_dwordx2 s[8:9], s[0:1], 72
    s_load_dwordx4 s[52:55], s[0:1], 32
    s_load_dwordx2 s[56:57], s[0:1], 48
    s_and_b32 s3, s2, 7
    s_lshl_b32 s3, s3, 2
    s_bfe_u32 s{HEAD}, s2, 0x20003
    s_add_u32 s{HEAD}, s{HEAD}, s3
    s_lshr_b32 s{QB}, s2, 5
    v_lshrrev_b32 v1, 6, v0
    v_and_b32 v0, 63, v0
    v_readfirstlane_b32 s{W}, v1
    s_lshr_b32 s3, s{HEAD}, 1
    s_mul_i32 s3, s3, 5
    s_and_b32 s13, s{HEAD}, 1           ; odd
    s_mul_i32 s14, s13, 3
    s_add_u32 s20, s3, s14
    s_add_u32 s21, s20, 1
    s_add_u32 s22, s3, 2
    s_lshl_b32 s20, s20, 15
    s_lshl_b32 s21, s21, 15
    s_lshl_b32 s22, s22, 15
    s_waitcnt lgkmcnt(0)
    """)
    srd(a, SO, 8, WS_USED)
    a(f"""
    s_cmp_ge_u32 s{W}, 8
    s_cbranch_scc1 {L('loader')}
    """)
    KA, VA = 2, 3
    M = [4, 5]
    QM = [8, 16]; QT = [12, 20]
    KM = [24, 32]; KT = [28, 36]
    V = [40, 48]
    P = [56, 64]
    S = [72, 88]
    O = [104, 120]
    QG, KH, MODE, CNT = 24, 25, 26, 27
    a(f"""
    s_setprio 1
    s_and_b32 s{QG}, s{W}, 3
    s_lshr_b32 s{KH}, s{W}, 2
    s_lshl_b32 s28, s{QB}, 3
    s_lshl_b32 s3, s{QG}, 1
    s_add_u32 s28, s28, s3
    s_add_u32 s28, s28, s{KH}
    v_lshlrev_b32 v6, 3, v0
    """)
    for i in range(2):
        a(f"""
        s_xor_b32 s3, s28, {i}
        s_lshl_b32 s3, s3, 9
        s_add_u32 s29, s3, s20
        s_add_u32 s30, s3, s21
        s_add_u32 s31, s3, s22
        buffer_load_dwordx2 {vr(QM[i],2)}, v6, {sr(SO,4)}, s29 offen
        buffer_load_dwordx2 {vr(QM[i]+2,2)}, v6, {sr(SO,4)}, s30 offen
        buffer_load_dwordx2 {vr(QT[i],2)}, v6, {sr(SO,4)}, s31 offen
        """)
    a(f"""
    s_lshl_b32 s3, s{KH}, 13
    v_add_u32 v{KA}, s3, v6
    v_lshlrev_b32 v{VA}, 4, v0
    v_add_u32 v{VA}, s3, v{VA}
    v_mov_b32 v{KT[0]+2}, 0x3f803f80
    v_mov_b32 v{KT[0]+3}, 0x3f80
    v_mov_b32 v{KT[1]+2}, 0x3f803f80
    v_mov_b32 v{KT[1]+3}, 0x3f80
    v_lshrrev_b32 v7, 5, v0             ; h
    v_cmp_eq_u32 vcc, s13, v7
    s_mov_b32 s{MODE}, 0
    s_waitcnt vmcnt(0)
    """)
    for i in range(2):
        a(f"""
        v_cndmask_b32 v{QT[i]}, 0, v{QT[i]}, vcc
        v_cndmask_b32 v{QT[i]+1}, 0, v{QT[i]+1}, vcc
        v_mov_b32 v{QT[i]+2}, 0
        v_mov_b32 v{QT[i]+3}, 0
        """)
    def rdK(b, t):
        return [f"ds_read2st64_b64 {vr(KM[b],4)}, v{KA} offset0:{t} offset1:{2+t}",
                f"ds_read_b64 {vr(KT[b],2)}, v{KA} offset:{(4+t)*512}"]
    def rdV(b, t):
        return [f"ds_read_b128 {vr(V[b],4)}, v{VA} offset:{3072+t*2048}",
                f"ds_read_b128 {vr(V[b]+4,4)}, v{VA} offset:{3072+t*2048+1024}"]
    def qk(kb, q):
        return [f"v_mfma_f32_32x32x16_bf16 {vr(S[q],16)}, {vr(KM[kb],4)}, {vr(QM[q],4)}, 0",
                f"v_mfma_f32_32x32x16_bf16 {vr(S[q],16)}, {vr(KT[kb],4)}, {vr(QT[q],4)}, {vr(S[q],16)}"]
    def pv(vb, q):
        return [f"v_mfma_f32_32x32x16_bf16 {vr(O[q],16)}, {vr(V[vb],4)}, {vr(P[q],4)}, {vr(O[q],16)}",
                f"v_mfma_f32_32x32x16_bf16 {vr(O[q],16)}, {vr(V[vb]+4,4)}, {vr(P[q]+4,4)}, {vr(O[q],16)}"]
    def rowmax(q, dst, init):
        s = S[q]
        if init:
            a(f"v_max3_f32 v{dst}, v{s}, v{s+1}, v{s+2}"); rest = list(range(3, 16))
        else:
            rest = list(range(16))
        while len(rest) >= 2:
            a(f"v_max3_f32 v{dst}, v{dst}, v{s+rest[0]}, v{s+rest[1]}"); rest = rest[2:]
        if rest: a(f"v_max_f32 v{dst}, v{dst}, v{s+rest[0]}")
    def set_shift():
        a("v_cmp_eq_u32 vcc, 0, v7")
        for i in range(2):
            a(f"""
            v_mov_b32 v1, v{M[i]}
            v_permlane32_swap_b32 v{M[i]}, v1
            v_max_f32 v{M[i]}, v{M[i]}, v1
            v_sub_f32 v1, 0, v{M[i]}
            v_and_b32 v6, 0xffff0000, v1
            v_sub_f32 v1, v1, v6
            v_and_b32 v{P[0]}, 0xffff0000, v1   ; mid
            v_sub_f32 v1, v1, v{P[0]}
            v_lshrrev_b32 v6, 16, v6
            v_or_b32 v6, v6, v{P[0]}
            v_lshrrev_b32 v1, 16, v1
            v_cndmask_b32 v{QT[i]+2}, 0, v6, vcc
            v_cndmask_b32 v{QT[i]+3}, 0, v1, vcc
            """)
    stamp(a, 1, st)
    a("s_barrier")
    stamp(a, 2, st)
    for x in rdK(0, 0): a(x)
    a("s_waitcnt lgkmcnt(0)")
    for x in qk(0, 0) + qk(0, 1): a(x)
    rowmax(0, M[0], True); rowmax(1, M[1], True)
    set_shift()
    a.label(L("restart"))
    for x in rdK(1, 1) + rdV(0, 0): a(x)
    for x in qk(0, 0): a(x)
    for i in range(16):
        a(f"v_mov_b32 v{O[0]+i}, 0"); a(f"v_mov_b32 v{O[1]+i}, 0")
    for i in range(8):
        a(f"v_mov_b32 v{P[1]+i}, 0"); a(f"v_mov_b32 v{V[1]+i}, 0")
    a(f"s_mov_b32 s{CNT}, 16")
    def phase(q, mf, extra=None, pre=None):
        extra = extra or {}
        for g in range(4):
            if pre and g in pre:
                for x in pre[g]: a(x)
            a(mf[g])
            for x in extra.get(g, []): a(x)
            for i in range(4): a(f"v_exp_f32 v{S[q]+4*g+i}, v{S[q]+4*g+i}")
            for i in range(2): a(f"v_cvt_pk_bf16_f32 v{P[q]+2*g+i}, v{S[q]+4*g+2*i}, v{S[q]+4*g+2*i+1}")
    a(".p2align 6")
    a.label(L("loop"))
    lo0 = {lowat[1]: ["s_setprio 1"]} if lowat and lowat[0] == 0 else {}
    lo1 = {lowat[1]: ["s_setprio 1"]} if lowat and lowat[0] == 1 else {}
    hi = ["s_setprio 2"] if lowat else []
    phase(0, qk(0, 1) + pv(1, 1), pre=lo0)
    phase(1, qk(1, 0) + pv(0, 0), extra={0: rdV(1, 1)}, pre={**lo1, 0: lo1.get(0, []) + ["s_waitcnt lgkmcnt(0)"]})
    phase(0, qk(1, 1) + pv(0, 1),
          pre={0: ["s_waitcnt lgkmcnt(0)", "s_barrier"] + hi + [f"v_xor_b32 v{KA}, {KV_SLOT}, v{KA}", f"v_xor_b32 v{VA}, {KV_SLOT}, v{VA}"]},
          extra={0: rdK(0, 0)})
    phase(1, qk(0, 0) + pv(1, 0), pre={0: ["s_waitcnt lgkmcnt(0)"]}, extra={0: rdK(1, 1), 1: rdV(0, 0)})
    a(f"""
    s_sub_u32 s{CNT}, s{CNT}, 1
    s_cmp_lg_u32 s{CNT}, 0
    s_cbranch_scc1 {L('loop')}
    """)
    for x in pv(1, 1): a(x)
    stamp(a, 3, st)
    a(f"""
    s_waitcnt lgkmcnt(0)
    s_lshl_b32 s3, s{W}, 12
    v_lshlrev_b32 v6, 4, v0
    v_add_u32 v6, s3, v6
    v_add_u32 v6, {EX_OFF}, v6
    v_mov_b32 v1, 0x5d800000
    v_mov_b32 v{O[1]+12}, v{M[1]}
    v_cmp_nle_f32 vcc, v{O[0]+8}, v1
    v_cmp_nle_f32 s[30:31], v{O[1]+8}, v1
    s_or_b32 s30, s31, vcc_hi
    ds_write_b128 v6, {vr(O[1],4)}
    ds_write_b128 v6, {vr(O[1]+4,4)} offset:1024
    ds_write_b128 v6, {vr(O[1]+8,4)} offset:2048
    ds_write_b32 v6, v{O[1]+12} offset:3072
    s_cmp_eq_u32 s30, 0
    s_cbranch_scc1 {L('noflag')}
    v_mov_b32 v1, {FLAG_OFF}
    v_mov_b32 v{P[0]}, 1
    ds_write_b32 v1, v{P[0]}
    """)
    a.label(L("noflag"))
    a(f"""
    s_waitcnt lgkmcnt(0)
    s_barrier
    v_mov_b32 v1, {FLAG_OFF}
    ds_read_b32 v1, v1
    v_xor_b32 v6, 0x4000, v6
    ds_read_b128 {vr(S[0],4)}, v6
    ds_read_b128 {vr(S[0]+4,4)}, v6 offset:1024
    ds_read_b128 {vr(S[0]+8,4)}, v6 offset:2048
    ds_read_b32 v{S[0]+12}, v6 offset:3072
    s_waitcnt lgkmcnt(4)
    v_readfirstlane_b32 s30, v1
    s_andn2_b32 s30, s30, s{MODE}
    s_cmp_lg_u32 s30, 0
    s_cbranch_scc1 {L('slow')}
    s_waitcnt lgkmcnt(0)
    v_max_f32 v1, v{M[0]}, v{S[0]+12}
    v_sub_f32 v{P[0]}, v{M[0]}, v1
    v_sub_f32 v{P[0]+2}, v{S[0]+12}, v1
    v_exp_f32 v{P[0]}, v{P[0]}
    v_exp_f32 v{P[0]+2}, v{P[0]+2}
    """)
    for i in range(0, 12, 2):
        a(f"v_pk_mul_f32 {vr(O[0]+i,2)}, {vr(O[0]+i,2)}, {vr(P[0],2)} op_sel_hi:[1,0]")
        a(f"v_pk_fma_f32 {vr(O[0]+i,2)}, {vr(S[0]+i,2)}, {vr(P[0]+2,2)}, {vr(O[0]+i,2)} op_sel_hi:[1,0,1]")
    a(f"""
    v_mov_b32 v1, v{O[0]+8}
    v_mov_b32 v6, v{O[0]+8}
    v_permlane32_swap_b32 v1, v6
    v_rcp_f32 v{P[0]}, v6
    s_lshl_b32 s3, s28, 5
    s_add_u32 s3, s3, s{HEAD}
    s_lshl_b32 s29, s3, 10
    s_add_u32 s29, s29, {OM_OFF}
    s_lshl_b32 s30, s3, 8
    s_add_u32 s30, s30, {OT_OFF}
    v_lshlrev_b32 v1, 4, v0
    v_lshlrev_b32 v6, 3, v0
    """)
    for i in range(0, 12, 2):
        a(f"v_pk_mul_f32 {vr(O[0]+i,2)}, {vr(O[0]+i,2)}, {vr(P[0],2)} op_sel_hi:[1,0]")
    for i in range(6):
        a(f"v_cvt_pk_bf16_f32 v{S[0]+i}, v{O[0]+2*i}, v{O[0]+2*i+1}")
    a(f"""
    buffer_store_dwordx4 {vr(S[0],4)}, v1, {sr(SO,4)}, s29 offen
    s_mov_b32 exec_hi, 0
    buffer_store_dwordx2 {vr(S[0]+4,2)}, v6, {sr(SO,4)}, s30 offen
    s_mov_b64 exec, -1
    """)
    stamp(a, 4, st)
    if st: a("s_waitcnt vmcnt(0)")
    stamp(a, 5, st)
    stamp_flush(a, 6, st, W, SO)
    a("s_endpgm")
    a.label(L("slow"))
    a(f"""
    s_mov_b32 s{MODE}, 1
    s_waitcnt lgkmcnt(0)
    """)
    for i in range(2):
        a(f"v_mov_b32 v{QT[i]+2}, 0"); a(f"v_mov_b32 v{QT[i]+3}, 0"); a(f"v_mov_b32 v{M[i]}, 0xff800000")
    a(f"s_mov_b32 s{CNT}, 16")
    a.label(L("maxloop"))
    a("s_barrier")
    for x in rdK(0, 0) + rdK(1, 1): a(x)
    a(f"v_xor_b32 v{KA}, {KV_SLOT}, v{KA}")
    a("s_waitcnt lgkmcnt(0)")
    for t in range(2):
        for x in qk(t, 0) + qk(t, 1): a(x)
        rowmax(0, M[0], False); rowmax(1, M[1], False)
    a(f"""
    s_sub_u32 s{CNT}, s{CNT}, 1
    s_cmp_lg_u32 s{CNT}, 0
    s_cbranch_scc1 {L('maxloop')}
    s_barrier
    """)
    set_shift()
    a("s_barrier")
    for x in rdK(0, 0): a(x)
    a("s_waitcnt lgkmcnt(0)")
    a(f"s_branch {L('restart')}")
    a.label(L("loader"))
    vm = VM(a)
    LW = 24
    SWU, SXN, SW2 = 40, 44, 48
    TB, FBK, TK, CB = 4, 5, 6, 7
    a(f"""
    s_sub_u32 s{LW}, s{W}, 8
    s_lshr_b32 s25, s{LW}, 1
    s_and_b32 s26, s{LW}, 1
    v_lshlrev_b32 v2, 4, v0             ; lane*16
    v_lshrrev_b32 v1, 5, v0             ; h
    v_mul_u32_u24 v3, 10240, v1
    v_and_b32 v4, 31, v0
    v_lshl_add_u32 v3, v4, 4, v3        ; V voffset
    s_lshl_b32 s3, s25, 14
    s_add_u32 s3, s3, {QK_OFF+QK_TYPE}
    s_cmp_eq_u32 s26, 0
    s_cselect_b32 s28, s20, s22
    s_cselect_b32 s29, s21, s22
    s_cselect_b32 s27, 1024, 0
    s_cselect_b32 s{SWU}, s52, s54
    s_cselect_b32 s{SWU+1}, s53, s55
    s_add_u32 s28, s28, s3
    s_add_u32 s29, s29, s3
    s_lshl_b32 s3, s25, 6
    s_lshl_b32 s30, s26, 1
    s_add_u32 s3, s3, s30
    s_mul_i32 s3, s3, 20480
    s_mul_i32 s30, s{HEAD}, 320
    s_add_u32 s30, s30, s3
    s_add_u32 s30, s30, {VT_OFF}
    s_lshl_b32 s31, s25, 13
    s_lshl_b32 s3, s26, 11
    s_add_u32 s31, s31, s3
    s_mov_b32 s32, 0
    s_lshl_b32 s33, s{QB}, 11
    s_mul_i32 s34, s33, 80
    """)
    def kv_issue(tag="kv", track=True):
        iss = (lambda t: vm.issue(t, tag)) if track else a
        a(f"""
        s_add_u32 s3, s28, s33
        s_add_u32 s35, s31, s32
        s_mov_b32 m0, s35
        """)
        iss(f"buffer_load_dwordx4 v2, {sr(SO,4)}, s3 offen lds")
        a(f"""
        s_add_u32 s3, s29, s33
        s_add_u32 m0, s35, s27
        """)
        iss(f"buffer_load_dwordx4 v2, {sr(SO,4)}, s3 offen lds")
        a(f"""
        s_add_u32 s3, s30, s34
        s_add_u32 m0, s35, 3072
        s_mov_b32 exec_lo, 0x000fffff
        s_mov_b32 exec_hi, 0x000fffff
        """)
        iss(f"buffer_load_dwordx4 v3, {sr(SO,4)}, s3 offen lds")
        a(f"""
        s_add_u32 s3, s3, 20480
        s_add_u32 m0, s35, 4096
        """)
        iss(f"buffer_load_dwordx4 v3, {sr(SO,4)}, s3 offen lds")
        a(f"""
        s_mov_b64 exec, -1
        s_xor_b32 s32, s32, {KV_SLOT}
        s_add_u32 s33, s33, 1024
        s_and_b32 s33, s33, 0x3fff
        s_mul_i32 s34, s33, 80
        """)
    def fill_ones(tag):
        a(f"""
        s_cmp_lg_u32 s{LW}, 0
        s_cbranch_scc1 {L('nofill'+tag)}
        v_and_b32 v164, 7, v0
        v_lshlrev_b32 v164, 9, v164
        v_bfe_u32 v165, v0, 3, 2
        v_lshl_add_u32 v164, v165, 13, v164
        v_mov_b32 v160, 0x3f803f80
        v_mov_b32 v161, 0x3f803f80
        v_mov_b32 v162, 0x3f803f80
        v_mov_b32 v163, 0x3f803f80
        ds_write_b128 v164, v[160:163] offset:{3072+320}
        """)
        a.label(L("nofill" + tag))
    kv_issue()
    fill_ones("a")
    a(f"""
    v_mov_b32 v5, {FLAG_OFF}
    v_mov_b32 v6, 0
    ds_write_b32 v5, v6
    s_and_b32 s{SWU+1}, s{SWU+1}, 0xffff
    s_mov_b32 s{SWU+2}, {640*3072}
    s_mov_b32 s{SWU+3}, 0x00020000
    """)
    if noffn:
        a("s_mov_b32 s13, 15")
        a("s_waitcnt lgkmcnt(0)")
        a(f"s_branch {L('idleloop')}")
    srd(a, SXN, 8, WS_USED)
    srd(a, SW2, 56, 1536 * 1280)
    UP = 5; DN = 8
    row192(a, UP, 3072, 11, 12)
    a(f"""
    s_and_b32 s3, s2, 1
    s_lshl_b32 s3, s3, 3
    s_bfe_u32 s{TB}, s2, 0x30003
    s_add_u32 s{TB}, s{TB}, s3           ; tb
    s_bfe_u32 s3, s2, 0x20001
    s_lshl_b32 s3, s3, 2
    s_lshr_b32 s{FBK}, s2, 6
    s_add_u32 s{FBK}, s{FBK}, s3         ; fb
    s_lshl_b32 s36, s{TB}, 2
    s_add_u32 s36, s36, s{LW}
    s_mul_i32 s36, s36, 40960
    s_add_u32 s36, s36, {XN_OFF}
    s_mul_i32 s37, s{FBK}, 192
    s_bfe_u32 s3, s2, 0x30003
    s_mul_i32 s3, s3, {rot_up[0]}
    s_lshr_b32 s56, s2, 6
    s_mul_i32 s56, s56, {rot_up[1]}
    s_add_u32 s56, s56, s3
    s_cmp_ge_u32 s56, 40
    s_cselect_b32 s3, 40, 0
    s_sub_u32 s56, s56, s3
    s_mul_i32 s38, s{LW}, 6144
    s_add_u32 s38, s38, {FB}
    s_mul_i32 s39, s26, {FW3D}
    s_add_u32 s39, s39, {FB+FW1}
    """)
    def f_dmas(nks):
        per = nks // 2
        g = []
        pre = [f"s_mul_i32 s54, s25, {per}", "s_add_u32 s54, s54, s56",
               f"s_mul_i32 s59, s25, {per*3072}", "s_add_u32 s59, s59, s39"]
        xs = []
        for ks in range(nks):
            xs.append([f"s_add_u32 s57, s56, {ks}", "s_cmp_ge_u32 s57, 40", "s_cselect_b32 s3, 40, 0", "s_sub_u32 s57, s57, s3",
                       "s_lshl_b32 s57, s57, 10", "s_add_u32 s57, s57, s36",
                       f"s_add_u32 m0, s38, {ks*1024}", ("f", f"buffer_load_dwordx4 v2, {sr(SXN,4)}, s57 offen lds")])
        wsx = []
        for k in range(per):
            for p in range(3):
                it = [f"s_add_u32 m0, s59, {k*3072+p*1024}", ("f", f"buffer_load_dwordx4 v{UP+p}, {sr(SWU,4)}, s58 offen lds")]
                if p == 0:
                    it = [f"s_add_u32 s58, s54, {k}", "s_cmp_ge_u32 s58, 40", "s_cselect_b32 s3, 40, 0", "s_sub_u32 s58, s58, s3",
                          f"s_mul_i32 s58, s58, {16*3072}", "s_add_u32 s58, s58, s37"] + it
                wsx.append(it)
        wsx[0] = pre + wsx[0]
        while xs or wsx:
            if wsx: g.append(wsx.pop(0))
            if xs: g.append(xs.pop(0))
            if wsx and len(wsx) > len(xs): g.append(wsx.pop(0))
        g[-1] = g[-1] + [f"s_add_u32 s56, s56, {nks}", "s_cmp_ge_u32 s56, 40", "s_cselect_b32 s3, 40, 0", "s_sub_u32 s56, s56, s3", "s_add_u32 s38, s38, s23", "s_add_u32 s39, s39, s23", "s_sub_u32 s23, 0, s23"]
        return g
    def emit_group(grp, track=True):
        for x in grp:
            if isinstance(x, tuple):
                if track: vm.issue(x[1], x[0])
                else: a(x[1])
            else: a(x)
    a(f"s_mov_b32 s23, {FSLOT}")
    for g in f_dmas(4): emit_group(g)
    XA, WA, HA, W2A = 13, 14, 15, 16
    FBUF = [24, 44]
    ACC = 64
    row192(a, DN, 1280, 11, 12)
    a(f"""
    s_mul_i32 s3, s25, 12288
    s_add_u32 s3, s3, {FB}
    v_add_u32 v{XA}, s3, v2
    v_bfe_u32 v11, v0, 2, 2              ; r
    v_lshl_add_u32 v12, v1, 3, v11       ; 8h+r
    v_mul_u32_u24 v12, 192, v12
    v_and_b32 v17, 3, v0
    v_lshl_add_u32 v12, v17, 3, v12
    v_bfe_u32 v18, v0, 4, 1              ; m
    v_mul_u32_u24 v19, {FW3D}, v18
    v_add_u32 v12, v12, v19
    s_mul_i32 s3, s26, 96
    s_add_u32 s3, s3, {FB+FW1}
    v_add_u32 v{WA}, s3, v12
    s_mul_i32 s15, s{LW}, 30720
    s_add_u32 s15, s15, {FB}
    v_add_u32 v{HA}, s15, v2
    v_lshl_add_u32 v12, v1, 2, v11       ; 4h+r
    v_mul_u32_u24 v12, 192, v12
    v_lshl_add_u32 v12, v17, 3, v12
    v_lshl_add_u32 v12, v18, 5, v12
    v_add_u32 v12, 2048, v12
    v_add_u32 v{W2A}, s15, v12
    s_mov_b32 s14, {FSLOT}
    """)
    for i in range(96): a(f"v_mov_b32 v{ACC+i}, 0")
    stamp(a, 1, st)
    vm.wait("kv", extra="lgkmcnt(0)")
    a("s_barrier")
    kv_issue()
    vm.wait_all()
    a("s_barrier")
    def up_reads(b, ks):
        f = FBUF[b]; out = []
        out.append(f"ds_read_b128 {vr(f,4)}, v{XA} offset:{ks*1024}")
        for ft in range(3):
            for half in range(2):
                out.append(f"ds_read_b64_tr_b16 {vr(f+8+4*ft+2*half,2)}, v{WA} offset:{ks*3072 + half*768 + ft*32}")
            if ft == 0: out.append(f"ds_read_b128 {vr(f+4,4)}, v{XA} offset:{6144+ks*1024}")
        return out
    def mfmas(b, first=False):
        f = FBUF[b]; out = []
        for ft in range(3):
            for tt in range(2):
                acc = ACC + 16 * (ft * 2 + tt)
                c = "0" if first else vr(acc, 16)
                out.append(f"v_mfma_f32_32x32x16_bf16 {vr(acc,16)}, {vr(f+8+4*ft,4)}, {vr(f+4*tt,4)}, {c}")
        return out
    def kstep(b, nxt, groups, track, first=False):
        a("s_waitcnt lgkmcnt(0)")
        m = mfmas(b, first)
        for i in range(6):
            a(m[i])
            if i < 4:
                for x in nxt[2*i:2*i+2]: a(x)
            if i >= 2 and groups: emit_group(groups.pop(0), track)
    def up_stage(nks, track):
        kv_issue(track=track)
        groups = f_dmas(6)
        for x in up_reads(0, 0): a(x)
        for ks in range(nks):
            nxt = up_reads((ks + 1) % 2, ks + 1) if ks + 1 < nks else []
            kstep(ks % 2, nxt, groups, track)
        while groups: emit_group(groups.pop(0), track)
        a(f"""
        v_add_u32 v{XA}, s14, v{XA}
        v_add_u32 v{WA}, s14, v{WA}
        s_sub_u32 s14, 0, s14
        s_waitcnt vmcnt(0)
        s_barrier
        """)
    up_stage(4, False)
    a("s_mov_b32 s13, 6")
    a(".p2align 6")
    a.label(L("uploop"))
    a(f"""
    s_cmp_eq_u32 s13, 1
    s_cselect_b32 s{SWU+2}, 0, s{SWU+2}
    s_cselect_b32 s{SXN+2}, 0, s{SXN+2}
    """)
    up_stage(6, False)
    a(f"""
    s_sub_u32 s13, s13, 1
    s_cmp_lg_u32 s13, 0
    s_cbranch_scc1 {L('uploop')}
    """)
    stamp(a, 2, st)
    kv_issue()
    a(f"""
    s_mov_b32 s58, {f2u(-1.4426950408889634):#x}
    s_mov_b32 s59, s58
    s_mov_b32 s52, 1.0
    s_mov_b32 s53, 1.0
    s_lshl_b32 s3, s{TB}, 2
    s_lshl_b32 s36, s25, 1
    s_add_u32 s3, s3, s36
    s_mul_i32 s36, s3, 96                ; toktile*96
    s_mul_i32 s3, s{FBK}, 6
    s_add_u32 s36, s36, s3
    s_mul_i32 s3, s26, 3
    s_add_u32 s36, s36, s3
    s_lshl_b32 s36, s36, 10
    s_add_u32 s36, s36, {H_OFF}
    s_add_u32 s37, s36, {96*1024}
    """)
    for ft in range(3):
        for tt in range(2):
            g = ACC + 16 * (ft * 2 + tt); u = g + 8
            T = 24 + 8 * ((ft * 2 + tt) % 2)
            for i in range(0, 8, 2): a(f"v_pk_mul_f32 {vr(T+i,2)}, {vr(g+i,2)}, s[58:59]")
            for i in range(8): a(f"v_exp_f32 v{T+i}, v{T+i}")
            for i in range(0, 8, 2): a(f"v_pk_mul_f32 {vr(g+i,2)}, {vr(g+i,2)}, {vr(u+i,2)}")
            for i in range(0, 8, 2): a(f"v_pk_add_f32 {vr(T+i,2)}, {vr(T+i,2)}, s[52:53]")
            for i in range(8): a(f"v_rcp_f32 v{T+i}, v{T+i}")
            for i in range(0, 8, 2): a(f"v_pk_mul_f32 {vr(g+i,2)}, {vr(g+i,2)}, {vr(T+i,2)}")
            for i in range(4): a(f"v_cvt_pk_bf16_f32 v{u+i}, v{g+2*i}, v{g+2*i+1}")
            vm.issue(f"buffer_store_dwordx4 {vr(u,4)}, v2, {sr(SO,4)}, s{36+tt} offen offset:{ft*1024} sc1", "hs")
    a(f"""
    s_lshl_b32 s3, s{TB}, 4
    s_add_u32 s3, s3, s{FBK}
    s_lshl_b32 s3, s3, 2
    s_add_u32 s3, s3, s{LW}
    s_lshl_b32 s3, s3, 2
    s_add_u32 s3, s3, {FLG_OFF}
    v_mov_b32 v11, 0
    v_mov_b32 v12, 1
    """)
    a("s_mov_b32 s55, s3")
    stamp(a, 3, st)
    vm.wait("kv")
    a("s_barrier")
    kv_issue()
    def flag_store():
        a("s_mov_b64 exec, 1")
        vm.issue(f"buffer_store_dword v12, v11, {sr(SO,4)}, s55 offen sc1", "fl")
        a("s_mov_b64 exec, -1")
    vm.wait("hs")
    flag_store()
    a(f"""
    s_lshr_b32 s3, s2, 3
    s_cmp_ge_u32 s3, 28
    s_cbranch_scc1 {L('idle')}
    s_lshr_b32 s{CB}, s3, 2
    s_and_b32 s3, s3, 3
    s_and_b32 s{TK}, s2, 7
    s_lshl_b32 s{TK}, s{TK}, 2
    s_add_u32 s{TK}, s{TK}, s3
    s_mul_i32 s38, s{LW}, {24*16*1280}
    s_mul_i32 s3, s{CB}, 192
    s_add_u32 s38, s38, s3               ; w2 source
    s_mul_i32 s36, s{TK}, 192
    s_mul_i32 s3, s{LW}, 24
    s_add_u32 s36, s36, s3
    s_lshl_b32 s36, s36, 10
    s_add_u32 s36, s36, {H_OFF}
    s_mul_i32 s56, s{CB}, {rot_dn[0]}
    s_and_b32 s3, s{TK}, 3
    s_mul_i32 s3, s3, {rot_dn[1]}
    s_add_u32 s56, s56, s3
    s_cmp_ge_u32 s56, 24
    s_cselect_b32 s3, 24, 0
    s_sub_u32 s56, s56, s3
    s_mov_b32 s57, s56
    s_lshr_b32 s3, s{TK}, 1
    s_lshl_b32 s3, s3, 8
    s_lshl_b32 s39, s{LW}, 6
    s_add_u32 s39, s39, s3
    s_add_u32 s39, s39, {FLG_OFF}
    """)
    def w2_groups(j):
        o = (j % 6) * 5120 + 2048; g = []
        for p in range(3):
            it = [f"s_add_u32 m0, s15, {o+p*1024}", (f"d{j}", f"buffer_load_dwordx4 v{DN+p}, {sr(SW2,4)}, s58 offen lds")]
            if p == 0: it = [f"s_mul_i32 s58, s56, {16*1280}", "s_add_u32 s58, s58, s38"] + it
            if p == 2: it += ["s_add_u32 s56, s56, 1", "s_cmp_eq_u32 s56, 24", "s_cselect_b32 s56, 0, s56"]
            g.append(it)
        return g
    def h_groups(j):
        o = (j % 6) * 5120
        return [["s_lshl_b32 s59, s57, 10", "s_add_u32 s59, s59, s36", f"s_add_u32 m0, s15, {o}", (f"d{j}", f"buffer_load_dwordx4 v2, {sr(SO,4)}, s59 offen sc1 lds")],
                [f"s_add_u32 s59, s59, {96*1024}", f"s_add_u32 m0, s15, {o+1024}", (f"d{j}", f"buffer_load_dwordx4 v2, {sr(SO,4)}, s59 offen sc1 lds"),
                 "s_add_u32 s57, s57, 1", "s_cmp_eq_u32 s57, 24", "s_cselect_b32 s57, 0, s57"]]
    for j in range(6):
        for g in w2_groups(j): emit_group(g)
    nbar = 10
    a(f"""
    v_and_b32 v11, 15, v0
    v_lshlrev_b32 v11, 2, v11
    s_mov_b32 s13, 0x100000
    """)
    a.label(L("poll"))
    a(f"""
    buffer_load_dword v12, v11, {sr(SO,4)}, s39 offen sc1
    s_sub_u32 s13, s13, 1
    s_cmp_eq_u32 s13, 0
    s_cbranch_scc1 {L('polled')}
    s_waitcnt vmcnt(0)
    v_cmp_ne_u32 vcc, 1, v12
    s_nop 4
    s_cbranch_vccnz {L('poll')}
    """)
    a.label(L("polled"))
    vm.wait_all()
    for j in range(6):
        for g in h_groups(j): emit_group(g)
    stamp(a, 4, st)
    def dn_reads(b, j):
        f = FBUF[b]; o = (j % 6) * 5120; out = []
        out.append(f"ds_read_b128 {vr(f,4)}, v{HA} offset:{o}")
        for ct in range(3):
            for half in range(2):
                out.append(f"ds_read_b64_tr_b16 {vr(f+8+4*ct+2*half,2)}, v{W2A} offset:{o + half*1536 + ct*64}")
            if ct == 0: out.append(f"ds_read_b128 {vr(f+4,4)}, v{HA} offset:{o+1024}")
        return out
    def slowcheck(tag):
        a(f"""
        v_mov_b32 v160, {FLAG_OFF}
        ds_read_b32 v160, v160
        s_waitcnt lgkmcnt(0)
        v_readfirstlane_b32 s3, v160
        s_mov_b32 s13, {tag}
        s_cmp_lg_u32 s3, 0
        s_cbranch_scc1 {L('service')}
        """)
        a.label(L(f"back{tag}"))
    vm.wait("d0")
    for x in dn_reads(0, 0): a(x)
    for j in range(24):
        nxt = []
        if j + 1 < 24:
            vm.wait(f"d{j+1}")
            nxt = dn_reads((j + 1) % 2, j + 1)
        groups = []
        if j + 6 < 24:
            hg = h_groups(j + 6); wg_ = w2_groups(j + 6)
            groups = [hg[0] + wg_[0], hg[1], wg_[1], wg_[2]]
        kstep(j % 2, nxt, groups, True, first=(j == 0))
        while j in bar_after[nbar - 10:nbar - 9]:
            vm.wait("kv")
            a("s_barrier")
            if nbar <= 14: kv_issue()
            if nbar == 17: slowcheck(0)
            nbar += 1
    assert nbar == 18, nbar
    stamp(a, 5, st)
    a(f"""
    v_mul_u32_u24 v11, 400, v4
    v_lshl_add_u32 v11, v1, 4, v11
    v_add_u32 v11, s15, v11
    """)
    for ct in range(3):
        for tt in range(2):
            for j in range(4):
                a(f"ds_write_b128 v11, {vr(ACC+16*(ct*2+tt)+4*j,4)} offset:{tt*12800 + ct*128 + j*32}")
    a(f"""
    s_lshl_b32 s3, s{LW}, 6
    v_add_u32 v17, s3, v0
    """)
    for n in range(3):
        a(f"""
        v_add_u32 v11, {256*n}, v17
        v_mul_u32_u24 v12, 0xaab, v11
        v_lshrrev_b32 v12, 15, v12
        v_mul_u32_u24 v13, 12, v12
        v_sub_u32 v11, v11, v13
        v_mul_u32_u24 v13, 400, v12
        v_lshl_add_u32 v{18+n}, v11, 5, v13
        v_add_u32 v{18+n}, {FB}, v{18+n}
        v_add_u32 v{21+n}, 61440, v{18+n}
        """)
    a(f"""
    s_mul_i32 s39, s2, 24576
    s_add_u32 s39, s39, {PART_OFF}
    v_lshlrev_b32 v17, 5, v17
    s_waitcnt lgkmcnt(0)
    s_barrier
    """)
    for n in range(3):
        for w in range(4):
            ad = f"v{18+n}" if w < 2 else f"v{21+n}"
            for hf in range(2):
                a(f"ds_read_b128 {vr(ACC+32*n+8*w+4*hf,4)}, {ad} offset:{(w%2)*30720 + hf*16}")
    for n in range(3):
        a(f"s_waitcnt lgkmcnt({min(15, 8*(2-n))})")
        b = ACC + 32 * n
        for i in range(0, 8, 2):
            a(f"v_pk_add_f32 {vr(b+i,2)}, {vr(b+i,2)}, {vr(b+8+i,2)}")
            a(f"v_pk_add_f32 {vr(b+16+i,2)}, {vr(b+16+i,2)}, {vr(b+24+i,2)}")
        for i in range(0, 8, 2):
            a(f"v_pk_add_f32 {vr(b+i,2)}, {vr(b+i,2)}, {vr(b+16+i,2)}")
        if n: a("s_add_u32 s39, s39, 8192")
        a(f"buffer_store_dwordx4 {vr(b,4)}, v17, {sr(SO,4)}, s39 offen")
        a(f"buffer_store_dwordx4 {vr(b+4,4)}, v17, {sr(SO,4)}, s39 offen offset:16")
    stamp(a, 6, st)
    if st: a("s_waitcnt vmcnt(0)")
    stamp(a, 7, st)
    stamp_flush(a, 8, st, W, SO)
    a("s_endpgm")
    a.label(L("idle"))
    a("s_mov_b32 s13, 5")
    a.label(L("idleloop"))
    a("s_waitcnt vmcnt(0)")
    a("s_barrier")
    kv_issue(track=False)
    a(f"""
    s_sub_u32 s13, s13, 1
    s_cmp_lg_u32 s13, 0
    s_cbranch_scc1 {L('idleloop')}
    s_waitcnt vmcnt(0)
    s_barrier
    s_barrier
    s_barrier
    """)
    slowcheck(1)
    a("s_endpgm")
    a.label(L("service"))
    a("s_mov_b32 s52, 2")
    fill_ones("b")
    a.label(L("stream"))
    kv_issue(track=False)
    a("s_mov_b32 s53, 15")
    a.label(L("lloop"))
    a("s_waitcnt vmcnt(0) lgkmcnt(0)")
    a("s_barrier")
    kv_issue(track=False)
    a(f"""
    s_sub_u32 s53, s53, 1
    s_cmp_lg_u32 s53, 0
    s_cbranch_scc1 {L('lloop')}
    s_waitcnt vmcnt(0)
    s_barrier
    s_barrier
    s_sub_u32 s52, s52, 1
    s_cmp_lg_u32 s52, 0
    s_cbranch_scc1 {L('stream')}
    s_barrier
    s_cmp_eq_u32 s13, 0
    s_cbranch_scc1 {L('back0')}
    """)
    a.label(L("end"))
    a("s_endpgm")
    return kernel_text(name, a.text(), 168, 100 if st else 60)

if __name__ == "__main__":
    print(gen_k2())
```

```python
import sys
from build import *
from k1 import *
from k2 import *
from k3 import *
def full(path, s1=False, s2=False, s3=False, **kw2):
    build([("k1_kernel", 256, 512, K1_LDS, gen_k1(st=s1)), ("k2_kernel", 256, 768, K2_LDS, gen_k2(st=s2, **kw2)), ("k3_kernel", 256, 256, K3_LDS, gen_k3(st=s3))], path)
if __name__ == "__main__":
    full("t3.s", s2=True)
    full("t3r.s", s2="rt")
    full("t3_1.s", s1=True)
    full("t3_1r.s", s1="rt")
    full("t3_3.s", s3=True)
    full("t3_3r.s", s3="rt")
    full(f"cdna_kernels/{NAME}.s")
```

```python
from mk3 import *
def warm(name, inputs=True, wsb=True):
    a = Asm()
    a(f"""
    s_cmp_ge_u32 s2, 256
    s_cbranch_scc1 {name}_e
    s_load_dwordx16 s[4:19], s[0:1], 0
    s_load_dwordx2 s[20:21], s[0:1], 72
    s_lshl_b32 s3, s2, 8
    v_add_u32 v1, s3, v0          ; gid 0..65535
    v_lshlrev_b32 v2, 6, v1
    v_lshlrev_b32 v3, 9, v1
    s_waitcnt lgkmcnt(0)
    """)
    bufs = [(4, 2048*1280), (6, 640*3840), (8, 640*1280), (12, 640*3072), (14, 640*3072), (16, 1536*1280), (18, 2048*1280)]
    if inputs:
        for i, (r, n) in enumerate(bufs):
            srd(a, 24, r, n)
            a(f"buffer_load_dword v{8+i}, v2, s[24:27], 0 offen")
    if wsb:
        srd(a, 24, 20, WS_USED)
        a(f"buffer_load_dword v20, v3, s[24:27], 0 offen")
    a("s_waitcnt vmcnt(0)")
    a.label(f"{name}_e")
    a("s_endpgm")
    return kernel_text(name, a.text(), 32, 40)
K1 = ("k1_kernel", 256, 512, K1_LDS, gen_k1()); K2 = ("k2_kernel", 256, 768, K2_LDS, gen_k2()); K3 = ("k3_kernel", 256, 256, K3_LDS, gen_k3())
build([K1, K2, K3], "w_a.s")
build([("p_kernel", 256, 256, 0, warm("p_kernel")), K1, K2, K3], "w_b.s")
build([("p_kernel", 256, 256, 0, warm("p_kernel")), ("p_kernel", 256, 256, 0, ""), K1, K2, K3], "w_c.s")
build([("p_kernel", 256, 256, 0, warm("p_kernel", inputs=False)), K1, K2, K3], "w_d.s")
build([K1, K2, K3, K1, K2, K3], "w_e.s")
```

```python
from asmlib import *
from layout import *

def srd(a, base, lo, nbytes):
    a(f"s_mov_b32 s{base}, s{lo}")
    a(f"s_and_b32 s{base+1}, s{lo+1}, 0xffff")
    a(f"s_mov_b32 s{base+2}, {nbytes}")
    a(f"s_mov_b32 s{base+3}, 0x00020000")

K1_LDS = 131072 + 2048
ST_M = 131072
ST_RS = 131072 + 512
ST_CS = 131072 + 1024

STAMP_OFF = 64 << 20
DBGK = [0]
def stamp(a, i, on):
    if on == "dbg":
        if i == 0:
            a("s_memrealtime s[60:61]")
            a("s_load_dwordx2 s[64:65], s[0:1], 64")
        return
    if on == "rt": a(f"s_memrealtime s[{60+2*i}:{61+2*i}]")
    elif on: a(f"s_memtime s[{60+2*i}:{61+2*i}]")
def stamp_flush(a, n, on, wreg, srdbase, nwaves=16):
    if not on: return
    if on == "dbg":
        k = DBGK[0]
        a("s_waitcnt vmcnt(0) lgkmcnt(0)")
        a("s_memrealtime s[62:63]")
        a(f"s_sub_u32 s64, s64, {512*k}")
        a("s_subb_u32 s65, s65, 0")
        a("s_and_b32 s65, s65, 0xffff")
        a("s_mov_b32 s66, 256")
        a("s_mov_b32 s67, 0x20000")
        a("s_waitcnt lgkmcnt(0)")
        a("s_and_b32 s60, s60, 0xffffff")
        a("s_and_b32 s62, s62, 0xffffff")
        a("s_sub_u32 s61, 0x1000000, s60")
        a("s_mov_b64 exec, 1")
        a("v_mov_b32 v1, 0")
        a("v_mov_b32 v2, s61")
        a(f"buffer_atomic_umax v2, v1, s[64:67], 0 offen offset:{16*k}")
        a("v_mov_b32 v3, s60")
        a(f"buffer_atomic_umax v3, v1, s[64:67], 0 offen offset:{16*k+4}")
        a("v_mov_b32 v4, s62")
        a(f"buffer_atomic_umax v4, v1, s[64:67], 0 offen offset:{16*k+8}")
        a("s_mov_b64 exec, -1")
        return
    a("s_waitcnt lgkmcnt(0)")
    a(f"s_mov_b32 s{srdbase+2}, 0x10000000")
    a(f"s_lshl_b32 s58, s2, 4")
    a(f"s_add_u32 s58, s58, s{wreg}")
    a(f"s_lshl_b32 s58, s58, 6")
    a(f"s_add_u32 s58, s58, {STAMP_OFF}")
    a("v_mov_b32 v1, 0")
    for i in range(n):
        a(f"v_mov_b32 v2, s{60+2*i}")
        a(f"buffer_store_dword v2, v1, s[{srdbase}:{srdbase+3}], s58 offen offset:{4*i}")

def gen_k1(name="k1_kernel", st=False, nodots=False, norot=False):
    a = Asm()
    stamp(a, 0, st)
    L = lambda s: f"{name}_{s}"
    TB, CG, W, STG, ONES = 10, 11, 12, 13, 14
    SX, SW, SO = 16, 20, 24
    a(f"""
    s_cmp_ge_u32 s2, 256
    s_cbranch_scc1 {L('end')}
    s_load_dwordx4 s[4:7], s[0:1], 0
    s_load_dwordx2 s[8:9], s[0:1], 72
    s_and_b32 s3, s2, 3
    s_lshl_b32 s3, s3, 2
    s_bfe_u32 s15, s2, 0x20003
    s_add_u32 s{TB}, s3, s15
    s_bfe_u32 s3, s2, 0x10002
    s_lshl_b32 s3, s3, 3
    s_lshr_b32 s{CG}, s2, 5
    s_add_u32 s{CG}, s{CG}, s3
    s_mul_i32 s3, s15, 3
    s_add_u32 s{STG}, s{CG}, s3         ; start stage (mod 10)
    s_cmp_ge_u32 s{STG}, 10
    s_cselect_b32 s3, 10, 0
    s_sub_u32 s{STG}, s{STG}, s3
    s_cmp_ge_u32 s{STG}, 10
    s_cselect_b32 s3, 10, 0
    s_sub_u32 s{STG}, s{STG}, s3
    v_lshrrev_b32 v1, 6, v0
    v_and_b32 v0, 63, v0
    v_readfirstlane_b32 s{W}, v1
    s_mov_b32 s{ONES}, 0x3f803f80
    s_waitcnt lgkmcnt(0)
    """)
    srd(a, SX, 4, 2048 * 1280)
    srd(a, SW, 6, 640 * 3840)
    srd(a, SO, 8, WS_USED)
    a(f"""
    s_cmp_ge_u32 s{CG}, 15
    s_cbranch_scc1 {L('zero')}
    s_cmp_ge_u32 s{W}, 4
    s_cbranch_scc1 {L('loader')}
    """)
    TW, FW = 28, 29
    XA = 2
    WA = 10
    XS, XQ, CS = 12, 13, 14
    XS2, XQ2, CS2 = 15, 48, 49
    BUF = [16, 32]
    ACC = 64
    a(f"""
    s_lshr_b32 s{TW}, s{W}, 1
    s_and_b32 s{FW}, s{W}, 1
    v_and_b32 v50, 31, v0
    v_lshrrev_b32 v51, 5, v0            ; h
    v_bfe_u32 v52, v0, 1, 3             ; f
    s_lshl_b32 s3, s{W}, 12             ; (tw*64+fw*32)*128
    v_lshl_add_u32 v53, v50, 7, s3
    """)
    for ks in range(4):
        a(f"""
        v_or_b32 v54, {2*ks}, v51
        v_xor_b32 v54, v54, v52
        v_lshl_add_u32 v{XA+ks}, v54, 4, v53
        v_xor_b32 v{XA+4+ks}, 0x1000, v{XA+ks}
        """)
    a(f"""
    v_bfe_u32 v54, v0, 2, 2             ; r
    v_lshl_add_u32 v55, v51, 3, v54     ; 8h+r
    v_lshlrev_b32 v55, 8, v55
    s_lshl_b32 s3, s{FW}, 1
    s_or_b32 s3, s3, s{TW}
    v_xor_b32 v54, s3, v54
    v_lshl_add_u32 v55, v54, 6, v55
    v_bfe_u32 v54, v0, 4, 1
    v_lshl_add_u32 v55, v54, 5, v55
    v_and_b32 v54, 3, v0
    v_lshl_add_u32 v55, v54, 3, v55
    v_add_u32 v{WA}, 0x4000, v55
    v_xor_b32 v{WA+1}, 64, v{WA}
    """)
    for r in (XS, XQ, CS, XS2, XQ2, CS2): a(f"v_mov_b32 v{r}, 0")
    for i in range(64): a(f"v_mov_b32 v{ACC+i}, 0")

    def reads(buf, par, ks):
        b = BUF[buf]; o = par * 32768
        wo = o + ks * 4096
        return [
            f"ds_read_b64_tr_b16 {vr(b+8,2)}, v{WA} offset:{wo}",
            f"ds_read_b64_tr_b16 {vr(b+10,2)}, v{WA} offset:{wo+1024}",
            f"ds_read_b128 {vr(b,4)}, v{XA+ks} offset:{o}",
            f"ds_read_b128 {vr(b+4,4)}, v{XA+4+ks} offset:{o}",
            f"ds_read_b64_tr_b16 {vr(b+12,2)}, v{WA+1} offset:{wo}",
            f"ds_read_b64_tr_b16 {vr(b+14,2)}, v{WA+1} offset:{wo+1024}",
        ]
    def mf(buf, fi, ti, vmode):
        b = BUF[buf]; acc = ACC + 16 * (fi * 2 + ti)
        wv = vr(b + 8 + 4 * fi, 4); xv = vr(b + 4 * ti, 4)
        A, B = (xv, wv) if vmode else (wv, xv)
        return f"v_mfma_f32_32x32x16_bf16 {vr(acc,16)}, {A}, {B}, {vr(acc,16)}"
    def dots(buf):
        b = BUF[buf]; d = []
        if nodots: return []
        for i in range(4):
            d.append(f"v_dot2_f32_bf16 v{XS if i%2==0 else XS2}, v{b+i}, s{ONES}, v{XS if i%2==0 else XS2}")
            d.append(f"v_dot2_f32_bf16 v{XQ if i%2==0 else XQ2}, v{b+i}, v{b+i}, v{XQ if i%2==0 else XQ2}")
            d.append(f"v_dot2_f32_bf16 v{CS if i%2==0 else CS2}, v{b+8+i}, s{ONES}, v{CS if i%2==0 else CS2}")
        return d
    def kstep(cur, rd, vmode, last=False, toggle=False):
        d = dots(cur)
        if last:
            a("s_waitcnt lgkmcnt(0)")
            a("s_barrier")
            if toggle:
                for r in list(range(XA, XA + 8)) + [WA, WA + 1]: a(f"v_xor_b32 v{r}, 0x10000, v{r}")
            a(mf(cur, 0, 0, vmode)); [a(x) for x in rd[0:3]]
            a(mf(cur, 0, 1, vmode)); [a(x) for x in rd[3:6]]
        else:
            a("s_waitcnt lgkmcnt(3)")
            a(mf(cur, 0, 0, vmode)); [a(x) for x in rd[0:3]]
            a("s_waitcnt lgkmcnt(5)")
            a(mf(cur, 0, 1, vmode)); [a(x) for x in rd[3:6]]
            a("s_waitcnt lgkmcnt(6)")
        a(mf(cur, 1, 0, vmode)); [a(x) for x in d[0:6]]
        a(mf(cur, 1, 1, vmode)); [a(x) for x in d[6:12]]
    def mainloop(vmode, tag):
        a("s_mov_b32 s30, 5")
        a(".p2align 6")
        a.label(L("loop" + tag))
        for par in range(2):
            kstep(0, reads(1, par, 1), vmode)
            kstep(1, reads(0, par, 2), vmode)
            kstep(0, reads(1, par, 3), vmode)
            kstep(1, reads(0, 1 - par, 0), vmode, last=True, toggle=(par == 1))
        a(f"""
        s_sub_u32 s30, s30, 1
        s_cmp_lg_u32 s30, 0
        s_cbranch_scc1 {L('loop'+tag)}
        """)
    def stats():
        a(f"""
        s_waitcnt lgkmcnt(0)
        v_add_f32 v{XS}, v{XS}, v{XS2}
        v_add_f32 v{XQ}, v{XQ}, v{XQ2}
        v_add_f32 v{CS}, v{CS}, v{CS2}
        v_mov_b32 v{XS2}, v{XS}
        v_mov_b32 v{XQ2}, v{XQ}
        v_mov_b32 v{CS2}, v{CS}
        v_permlane32_swap_b32 v{XS}, v{XS2}
        v_permlane32_swap_b32 v{XQ}, v{XQ2}
        v_permlane32_swap_b32 v{CS}, v{CS2}
        v_add_f32 v{XS}, v{XS}, v{XS2}
        v_add_f32 v{XQ}, v{XQ}, v{XQ2}
        v_add_f32 v{CS}, v{CS}, v{CS2}
        v_mul_f32 v{XS}, {f2u(1/640):#x}, v{XS}          ; mean
        v_mul_f32 v{XQ}, {f2u(1/640):#x}, v{XQ}
        v_fma_f32 v{XQ}, -v{XS}, v{XS}, v{XQ}            ; var
        v_max_f32 v{XQ}, 0, v{XQ}
        v_cvt_pk_bf16_f32 v{XS2}, v{XS}, v{XQ}
        v_lshlrev_b32 v{XS}, 16, v{XS2}
        v_and_b32 v{XQ}, 0xffff0000, v{XS2}
        v_add_f32 v{XQ}, {f2u(1e-5):#x}, v{XQ}
        v_cvt_pk_bf16_f32 v{XQ}, v{XQ}, v{XQ}
        v_and_b32 v{XQ}, 0xffff0000, v{XQ}
        v_sqrt_f32 v{XQ}, v{XQ}
        v_cvt_pk_bf16_f32 v{XQ}, v{XQ}, v{XQ}
        v_and_b32 v{XQ}, 0xffff0000, v{XQ}
        v_rcp_f32 v{XQ}, v{XQ}                           ; rstd
        s_lshl_b32 s3, s{W}, 7
        v_lshl_add_u32 v54, v50, 2, s3
        v_add_u32 v54, {ST_M}, v54
        s_lshl_b32 s3, s{FW}, 1
        s_or_b32 s3, s3, s{TW}
        s_lshl_b32 s3, s3, 7
        v_lshl_add_u32 v55, v50, 2, s3
        v_add_u32 v55, {ST_M}, v55
        ds_write_b32 v54, v{XS}
        ds_write_b32 v54, v{XQ} offset:512
        ds_write_b32 v55, v{CS} offset:1024
        s_waitcnt lgkmcnt(0)
        s_barrier
        """)
    stamp(a, 1, st)
    a("s_barrier")
    stamp(a, 2, st)
    for x in reads(0, 0, 0): a(x)
    a(f"""
    s_cmp_ge_u32 s{CG}, 10
    s_cbranch_scc1 {L('vpath')}
    """)
    mainloop(False, "qk")
    stamp(a, 3, st)
    stats()
    stamp(a, 4, st)
    a(f"""
    v_xor_b32 v54, 128, v54
    ds_read_b32 v{XS2}, v54
    ds_read_b32 v{XQ2}, v54 offset:512
    s_lshl_b32 s3, s{FW}, 1
    s_or_b32 s3, s3, s{TW}
    s_lshl_b32 s3, s3, 7
    v_lshl_add_u32 v55, v51, 4, s3
    v_add_u32 v55, {ST_CS}, v55
    v_xor_b32 v56, 128, v55
    """)
    for j in range(4): a(f"ds_read_b128 {vr(16+4*j,4)}, v55 offset:{32*j}")
    for j in range(4): a(f"ds_read_b128 {vr(32+4*j,4)}, v56 offset:{32*j}")
    a(f"""
    s_cmp_lt_u32 s{CG}, 5
    s_cselect_b32 s31, {f2u(QSCALE):#x}, 1.0
    s_cselect_b32 s32, 0, 5
    s_cselect_b32 s33, {QK_OFF}, {QK_OFF+QK_TYPE}
    s_sub_u32 s32, s{CG}, s32           ; cgt
    s_lshl_b32 s32, s32, 4
    s_lshl_b32 s3, s{FW}, 1
    s_or_b32 s3, s3, s{TW}
    s_lshl_b32 s3, s3, 2
    s_add_u32 s32, s32, s3
    s_lshl_b32 s32, s32, 15
    s_add_u32 s33, s33, s32
    s_lshl_b32 s3, s{TB}, 2
    s_add_u32 s3, s3, s{W}
    s_lshl_b32 s3, s3, 9                ; toktile(slot0)*512
    s_add_u32 s33, s33, s3
    v_lshlrev_b32 v57, 3, v0
    s_waitcnt lgkmcnt(0)
    v_mul_f32 v{XQ}, s31, v{XQ}
    v_mul_f32 v{XQ2}, s31, v{XQ2}
    v_sub_f32 v2, 0, v{XS}
    v_mov_b32 v4, v{XQ}
    v_sub_f32 v6, 0, v{XS2}
    v_mov_b32 v8, v{XQ2}
    """)
    for fi in range(2):
        for ti in range(2):
            acc = ACC + 16 * (fi * 2 + ti)
            cs = 16 + 16 * fi
            m = 2 + 4 * ti; rs = 4 + 4 * ti
            a(f"s_xor_b32 s34, s33, {fi*4*32768 + ti*512}")
            for j in range(4):
                for p in range(2):
                    r = acc + 4 * j + 2 * p
                    a(f"v_pk_fma_f32 {vr(r,2)}, {vr(cs+4*j+2*p,2)}, {vr(m,2)}, {vr(r,2)} op_sel_hi:[1,0,1]")
                for p in range(2):
                    r = acc + 4 * j + 2 * p
                    a(f"v_pk_mul_f32 {vr(r,2)}, {vr(r,2)}, {vr(rs,2)} op_sel_hi:[1,0]")
                for p in range(2):
                    r = acc + 4 * j + 2 * p
                    a(f"v_cvt_pk_bf16_f32 v{acc+4*j+p}, v{r}, v{r+1}")
                a(f"buffer_store_dwordx2 {vr(acc+4*j,2)}, v57, {sr(SO,4)}, s34 offen")
                if j < 3: a(f"s_add_u32 s34, s34, 32768")
    stamp(a, 5, st)
    if st: a("s_waitcnt vmcnt(0)")
    stamp(a, 6, st)
    stamp_flush(a, 7, st, W, SO)
    a("s_endpgm")
    a.label(L("vpath"))
    mainloop(True, "v")
    stamp(a, 3, st)
    stats()
    stamp(a, 4, st)
    a(f"""
    v_xor_b32 v55, 128, v55
    ds_read_b32 v{CS2}, v55 offset:1024
    s_lshl_b32 s3, s{W}, 7
    v_lshl_add_u32 v54, v51, 4, s3
    v_add_u32 v54, {ST_M}, v54
    v_xor_b32 v56, 128, v54
    """)
    MR = [16, 128]; RR = [32, 144]
    for j in range(4): a(f"ds_read_b128 {vr(MR[0]+4*j,4)}, v54 offset:{32*j}")
    for j in range(4): a(f"ds_read_b128 {vr(RR[0]+4*j,4)}, v54 offset:{512+32*j}")
    for j in range(4): a(f"ds_read_b128 {vr(MR[1]+4*j,4)}, v56 offset:{32*j}")
    for j in range(4): a(f"ds_read_b128 {vr(RR[1]+4*j,4)}, v56 offset:{512+32*j}")
    a(f"""
    s_sub_u32 s32, s{CG}, 10
    s_lshl_b32 s32, s32, 2
    s_lshl_b32 s3, s{FW}, 1
    s_or_b32 s3, s3, s{TW}
    s_add_u32 s32, s32, s3
    s_lshl_b32 s35, s{TB}, 2
    s_add_u32 s35, s35, s{W}
    v_mul_u32_u24 v57, 10240, v51
    v_lshl_add_u32 v57, v50, 4, v57
    s_waitcnt lgkmcnt(0)
    v_sub_f32 v2, 0, v{CS}
    v_sub_f32 v4, 0, v{CS2}
    """)
    for fi in range(2):
        for ti in range(2):
            acc = ACC + 16 * (fi * 2 + ti)
            a(f"""
            s_xor_b32 s3, s32, {fi}
            s_lshl_b32 s3, s3, 9
            s_xor_b32 s34, s35, {ti}
            s_mul_i32 s34, s34, 40960
            s_add_u32 s34, s34, s3
            s_add_u32 s34, s34, {VT_OFF}
            """)
            for kb in range(2):
                for p in range(4):
                    r = acc + 8 * kb + 2 * p
                    a(f"v_pk_fma_f32 {vr(r,2)}, {vr(MR[ti]+8*kb+2*p,2)}, {vr(2+2*fi,2)}, {vr(r,2)} op_sel_hi:[1,0,1]")
                for p in range(4):
                    r = acc + 8 * kb + 2 * p
                    a(f"v_pk_mul_f32 {vr(r,2)}, {vr(r,2)}, {vr(RR[ti]+8*kb+2*p,2)}")
                for p in range(4):
                    r = acc + 8 * kb + 2 * p
                    a(f"v_cvt_pk_bf16_f32 v{acc+8*kb+p}, v{r}, v{r+1}")
                a(f"buffer_store_dwordx4 {vr(acc+8*kb,4)}, v57, {sr(SO,4)}, s34 offen")
                if kb == 0: a("s_add_u32 s34, s34, 20480")
    stamp(a, 5, st)
    if st: a("s_waitcnt vmcnt(0)")
    stamp(a, 6, st)
    stamp_flush(a, 7, st, W, SO)
    a("s_endpgm")
    a.label(L("loader"))
    LW = 28
    a(f"""
    s_sub_u32 s{LW}, s{W}, 4
    v_lshrrev_b32 v1, 3, v0             ; lane>>3
    v_lshrrev_b32 v2, 4, v0             ; lane>>4
    v_and_b32 v3, 7, v0
    v_xor_b32 v3, v3, v2
    s_lshl_b32 s3, s{TB}, 7
    s_lshl_b32 s29, s{LW}, 5
    s_add_u32 s3, s3, s29
    v_add_u32 v1, s3, v1
    v_mul_u32_u24 v1, 1280, v1
    v_lshl_add_u32 v4, v3, 4, v1        ; i=0
    v_xor_b32 v3, 4, v3
    v_lshl_add_u32 v5, v3, 4, v1
    v_add_u32 v5, {8*1280}, v5          ; i=1
    v_add_u32 v6, {16*1280}, v4         ; i=2
    v_add_u32 v7, {16*1280}, v5         ; i=3
    s_lshl_b32 s3, s{LW}, 4
    v_add_u32 v1, s3, v2
    v_mul_u32_u24 v1, 3840, v1
    v_and_b32 v3, 15, v0
    v_lshlrev_b32 v2, 2, v2
    v_xor_b32 v3, v3, v2
    v_lshl_add_u32 v8, v3, 4, v1
    s_lshl_b32 s3, s{CG}, 8
    v_add_u32 v8, s3, v8
    v_add_u32 v9, {4*3840}, v8
    v_add_u32 v10, {8*3840}, v8
    v_add_u32 v11, {12*3840}, v8
    s_lshl_b32 s29, s{LW}, 12
    s_mov_b32 s30, 0
    """)
    def issue():
        a(f"""
        s_lshl_b32 s31, s{STG}, 7
        s_mul_i32 s32, s{STG}, {64*3840}
        s_add_u32 s33, s29, s30
        """)
        for i in range(4):
            a(f"s_add_u32 m0, s33, {16384 + i*1024}")
            a(f"buffer_load_dwordx4 v{8+i}, {sr(SW,4)}, s32 offen lds")
            a(f"s_add_u32 m0, s33, {i*1024}")
            a(f"buffer_load_dwordx4 v{4+i}, {sr(SX,4)}, s31 offen lds")
        a(f"""
        s_add_u32 s30, s30, 32768
        s_and_b32 s30, s30, 0x1ffff
        s_add_u32 s{STG}, s{STG}, 1
        s_cmp_eq_u32 s{STG}, 10
        s_cselect_b32 s{STG}, 0, s{STG}
        """)
    stamp(a, 1, st)
    if norot: a(f"s_mov_b32 s{STG}, 0")
    a("s_mov_b32 s34, 3")
    a.label(L("lpro"))
    issue()
    a(f"""
    s_sub_u32 s34, s34, 1
    s_cmp_lg_u32 s34, 0
    s_cbranch_scc1 {L('lpro')}
    s_mov_b32 s34, 7
    """)
    stamp(a, 2, st)
    if st:
        a("s_waitcnt vmcnt(23)")
        stamp(a, 3, st)
        a("s_waitcnt vmcnt(16)")
        stamp(a, 4, st)
    a.label(L("lloop"))
    a("s_waitcnt vmcnt(16)")
    a("s_barrier")
    issue()
    a(f"""
    s_sub_u32 s34, s34, 1
    s_cmp_lg_u32 s34, 0
    s_cbranch_scc1 {L('lloop')}
    s_waitcnt vmcnt(16)
    s_barrier
    s_waitcnt vmcnt(8)
    s_barrier
    s_waitcnt vmcnt(0)
    s_barrier
    """)
    stamp(a, 5, st)
    stamp_flush(a, 6, st, W, SO)
    a(f"""
    v_and_b32 v1, 31, v0
    v_lshrrev_b32 v2, 5, v0
    v_bfe_u32 v3, v0, 1, 3
    v_lshl_add_u32 v4, v1, 7, s29
    """)
    for ks in range(4):
        a(f"""
        v_or_b32 v5, {2*ks}, v2
        v_xor_b32 v5, v5, v3
        v_lshl_add_u32 v5, v5, 4, v4
        ds_read_b128 {vr(16+4*ks,4)}, v5 offset:32768
        """)
    a(f"""
    s_lshl_b32 s3, s{LW}, 7
    v_lshl_add_u32 v6, v1, 2, s3
    v_add_u32 v6, {ST_M}, v6
    s_add_u32 s{STG}, s{STG}, 9
    s_cmp_ge_u32 s{STG}, 10
    s_cselect_b32 s3, 10, 0
    s_sub_u32 s{STG}, s{STG}, s3
    s_lshl_b32 s3, s{TB}, 2
    s_add_u32 s3, s3, s{LW}
    s_mul_i32 s3, s3, 40960
    s_lshl_b32 s31, s{STG}, 12
    s_add_u32 s31, s31, s3
    s_add_u32 s31, s31, {XN_OFF}
    v_lshlrev_b32 v7, 4, v0
    s_barrier
    s_barrier
    s_cmp_ge_u32 s{CG}, 10
    s_cbranch_scc1 {L('end')}
    ds_read_b32 v8, v6
    ds_read_b32 v10, v6 offset:512
    s_waitcnt lgkmcnt(0)
    v_mul_f32 v8, v8, v10
    v_sub_f32 v8, 0, v8                  ; -m*rs
    """)
    for ks in range(4):
        for i in range(4):
            s = 16 + 4 * ks + i
            a(f"""
            v_lshlrev_b32 v12, 16, v{s}
            v_and_b32 v13, 0xffff0000, v{s}
            v_pk_fma_f32 v[12:13], v[12:13], v[10:11], v[8:9] op_sel_hi:[1,0,0]
            v_cvt_pk_bf16_f32 v{s}, v12, v13
            """)
        a(f"buffer_store_dwordx4 {vr(16+4*ks,4)}, v7, {sr(SO,4)}, s31 offen offset:{ks*1024}")
    a("s_endpgm")
    a.label(L("zero"))
    a(f"""
    s_lshl_b32 s3, s{TB}, 8
    s_add_u32 s3, s3, {FLG_OFF}
    v_lshlrev_b32 v1, 2, v0
    v_mov_b32 v2, 0
    buffer_store_dword v2, v1, {sr(SO,4)}, s3 offen
    """)
    a.label(L("end"))
    a("s_endpgm")
    return kernel_text(name, a.text(), 160, 100 if st else 40)

if __name__ == "__main__":
    print(gen_k1())
```

```python
from mk3 import *
import k1 as K1M
def fulld(path, **kw2):
    K1M.DBGK[0] = 0; a = gen_k1(st="dbg")
    K1M.DBGK[0] = 1; b = gen_k2(st="dbg", **kw2)
    K1M.DBGK[0] = 2; c = gen_k3(st="dbg")
    build([("k1_kernel", 256, 512, K1_LDS, a), ("k2_kernel", 256, 768, K2_LDS, b), ("k3_kernel", 256, 256, K3_LDS, c)], path)
if __name__ == "__main__":
    fulld("d_a.s")
```

```python
from asmlib import *
from layout import *

def srd(a, base, lo, nbytes):
    a(f"s_mov_b32 s{base}, s{lo}")
    a(f"s_and_b32 s{base+1}, s{lo+1}, 0xffff")
    a(f"s_mov_b32 s{base+2}, {nbytes}")
    a(f"s_mov_b32 s{base+3}, 0x00020000")

K1_LDS = 131072 + 2048
ST_M = 131072
ST_RS = 131072 + 512
ST_CS = 131072 + 1024

STAMP_OFF = 64 << 20
DBGK = [0]
def stamp(a, i, on):
    if on == "dbg":
        if i == 0:
            a("s_memrealtime s[60:61]")
            a("s_load_dwordx2 s[64:65], s[0:1], 64")
        return
    if on == "rt": a(f"s_memrealtime s[{60+2*i}:{61+2*i}]")
    elif on: a(f"s_memtime s[{60+2*i}:{61+2*i}]")
def stamp_flush(a, n, on, wreg, srdbase, nwaves=16):
    if not on: return
    if on == "dbg":
        k = DBGK[0]
        a("s_waitcnt vmcnt(0) lgkmcnt(0)")
        a("s_memrealtime s[62:63]")
        a(f"s_add_u32 s64, s64, {512*(2-k)}")
        a("s_addc_u32 s65, s65, 0")
        a("s_and_b32 s65, s65, 0xffff")
        a("s_mov_b32 s66, 256")
        a("s_mov_b32 s67, 0x20000")
        a("s_waitcnt lgkmcnt(0)")
        a("s_and_b32 s60, s60, 0xffffff")
        a("s_and_b32 s62, s62, 0xffffff")
        a("s_sub_u32 s61, 0x1000000, s60")
        a("s_mov_b64 exec, 1")
        a(f"s_cmp_eq_u32 s{wreg}, {8 if k == 1 else 0}")
        a("s_cselect_b32 s66, 256, 0")
        a("v_mov_b32 v1, 0")
        a("v_mov_b32 v2, s61")
        a(f"buffer_atomic_umax v2, v1, s[64:67], 0 offen offset:{16*k}")
        a("v_mov_b32 v3, s60")
        a(f"buffer_atomic_umax v3, v1, s[64:67], 0 offen offset:{16*k+4}")
        a("v_mov_b32 v4, s62")
        a(f"buffer_atomic_umax v4, v1, s[64:67], 0 offen offset:{16*k+8}")
        a("s_mov_b64 exec, -1")
        return
    a("s_waitcnt lgkmcnt(0)")
    a(f"s_mov_b32 s{srdbase+2}, 0x10000000")
    a(f"s_lshl_b32 s58, s2, 4")
    a(f"s_add_u32 s58, s58, s{wreg}")
    a(f"s_lshl_b32 s58, s58, 6")
    a(f"s_add_u32 s58, s58, {STAMP_OFF}")
    a("v_mov_b32 v1, 0")
    for i in range(n):
        a(f"v_mov_b32 v2, s{60+2*i}")
        a(f"buffer_store_dword v2, v1, s[{srdbase}:{srdbase+3}], s58 offen offset:{4*i}")

def gen_k1(name="k1_kernel", st=False, nodots=False, norot=False):
    a = Asm()
    stamp(a, 0, st)
    L = lambda s: f"{name}_{s}"
    TB, CG, W, STG, ONES = 10, 11, 12, 13, 14
    SX, SW, SO = 16, 20, 24
    a(f"""
    s_cmp_ge_u32 s2, 256
    s_cbranch_scc1 {L('end')}
    s_load_dwordx4 s[4:7], s[0:1], 0
    s_load_dwordx2 s[8:9], s[0:1], 72
    s_and_b32 s3, s2, 3
    s_lshl_b32 s3, s3, 2
    s_bfe_u32 s15, s2, 0x20003
    s_add_u32 s{TB}, s3, s15
    s_bfe_u32 s3, s2, 0x10002
    s_lshl_b32 s3, s3, 3
    s_lshr_b32 s{CG}, s2, 5
    s_add_u32 s{CG}, s{CG}, s3
    s_mul_i32 s3, s15, 3
    s_add_u32 s{STG}, s{CG}, s3         ; start stage (mod 10)
    s_cmp_ge_u32 s{STG}, 10
    s_cselect_b32 s3, 10, 0
    s_sub_u32 s{STG}, s{STG}, s3
    s_cmp_ge_u32 s{STG}, 10
    s_cselect_b32 s3, 10, 0
    s_sub_u32 s{STG}, s{STG}, s3
    v_lshrrev_b32 v1, 6, v0
    v_and_b32 v0, 63, v0
    v_readfirstlane_b32 s{W}, v1
    s_mov_b32 s{ONES}, 0x3f803f80
    s_waitcnt lgkmcnt(0)
    """)
    srd(a, SX, 4, 2048 * 1280)
    srd(a, SW, 6, 640 * 3840)
    srd(a, SO, 8, WS_USED)
    a(f"""
    s_cmp_ge_u32 s{CG}, 15
    s_cbranch_scc1 {L('zero')}
    s_cmp_ge_u32 s{W}, 4
    s_cbranch_scc1 {L('loader')}
    """)
    TW, FW = 28, 29
    XA = 2
    WA = 10
    XS, XQ, CS = 12, 13, 14
    XS2, XQ2, CS2 = 15, 48, 49
    BUF = [16, 32]
    ACC = 64
    a(f"""
    s_lshr_b32 s{TW}, s{W}, 1
    s_and_b32 s{FW}, s{W}, 1
    v_and_b32 v50, 31, v0
    v_lshrrev_b32 v51, 5, v0            ; h
    v_bfe_u32 v52, v0, 1, 3             ; f
    s_lshl_b32 s3, s{W}, 12             ; (tw*64+fw*32)*128
    v_lshl_add_u32 v53, v50, 7, s3
    """)
    for ks in range(4):
        a(f"""
        v_or_b32 v54, {2*ks}, v51
        v_xor_b32 v54, v54, v52
        v_lshl_add_u32 v{XA+ks}, v54, 4, v53
        v_xor_b32 v{XA+4+ks}, 0x1000, v{XA+ks}
        """)
    a(f"""
    v_bfe_u32 v54, v0, 2, 2             ; r
    v_lshl_add_u32 v55, v51, 3, v54     ; 8h+r
    v_lshlrev_b32 v55, 8, v55
    s_lshl_b32 s3, s{FW}, 1
    s_or_b32 s3, s3, s{TW}
    v_xor_b32 v54, s3, v54
    v_lshl_add_u32 v55, v54, 6, v55
    v_bfe_u32 v54, v0, 4, 1
    v_lshl_add_u32 v55, v54, 5, v55
    v_and_b32 v54, 3, v0
    v_lshl_add_u32 v55, v54, 3, v55
    v_add_u32 v{WA}, 0x4000, v55
    v_xor_b32 v{WA+1}, 64, v{WA}
    """)
    for r in (XS, XQ, CS, XS2, XQ2, CS2): a(f"v_mov_b32 v{r}, 0")
    for i in range(64): a(f"v_mov_b32 v{ACC+i}, 0")

    def reads(buf, par, ks):
        b = BUF[buf]; o = par * 32768
        wo = o + ks * 4096
        return [
            f"ds_read_b64_tr_b16 {vr(b+8,2)}, v{WA} offset:{wo}",
            f"ds_read_b64_tr_b16 {vr(b+10,2)}, v{WA} offset:{wo+1024}",
            f"ds_read_b128 {vr(b,4)}, v{XA+ks} offset:{o}",
            f"ds_read_b128 {vr(b+4,4)}, v{XA+4+ks} offset:{o}",
            f"ds_read_b64_tr_b16 {vr(b+12,2)}, v{WA+1} offset:{wo}",
            f"ds_read_b64_tr_b16 {vr(b+14,2)}, v{WA+1} offset:{wo+1024}",
        ]
    def mf(buf, fi, ti, vmode):
        b = BUF[buf]; acc = ACC + 16 * (fi * 2 + ti)
        wv = vr(b + 8 + 4 * fi, 4); xv = vr(b + 4 * ti, 4)
        A, B = (xv, wv) if vmode else (wv, xv)
        return f"v_mfma_f32_32x32x16_bf16 {vr(acc,16)}, {A}, {B}, {vr(acc,16)}"
    def dots(buf):
        b = BUF[buf]; d = []
        if nodots: return []
        for i in range(4):
            d.append(f"v_dot2_f32_bf16 v{XS if i%2==0 else XS2}, v{b+i}, s{ONES}, v{XS if i%2==0 else XS2}")
            d.append(f"v_dot2_f32_bf16 v{XQ if i%2==0 else XQ2}, v{b+i}, v{b+i}, v{XQ if i%2==0 else XQ2}")
            d.append(f"v_dot2_f32_bf16 v{CS if i%2==0 else CS2}, v{b+8+i}, s{ONES}, v{CS if i%2==0 else CS2}")
        return d
    def kstep(cur, rd, vmode, last=False, toggle=False):
        d = dots(cur)
        if last:
            a("s_waitcnt lgkmcnt(0)")
            a("s_barrier")
            if toggle:
                for r in list(range(XA, XA + 8)) + [WA, WA + 1]: a(f"v_xor_b32 v{r}, 0x10000, v{r}")
            a(mf(cur, 0, 0, vmode)); [a(x) for x in rd[0:3]]
            a(mf(cur, 0, 1, vmode)); [a(x) for x in rd[3:6]]
        else:
            a("s_waitcnt lgkmcnt(3)")
            a(mf(cur, 0, 0, vmode)); [a(x) for x in rd[0:3]]
            a("s_waitcnt lgkmcnt(5)")
            a(mf(cur, 0, 1, vmode)); [a(x) for x in rd[3:6]]
            a("s_waitcnt lgkmcnt(6)")
        a(mf(cur, 1, 0, vmode)); [a(x) for x in d[0:6]]
        a(mf(cur, 1, 1, vmode)); [a(x) for x in d[6:12]]
    def mainloop(vmode, tag):
        a("s_mov_b32 s30, 5")
        a(".p2align 6")
        a.label(L("loop" + tag))
        for par in range(2):
            kstep(0, reads(1, par, 1), vmode)
            kstep(1, reads(0, par, 2), vmode)
            kstep(0, reads(1, par, 3), vmode)
            kstep(1, reads(0, 1 - par, 0), vmode, last=True, toggle=(par == 1))
        a(f"""
        s_sub_u32 s30, s30, 1
        s_cmp_lg_u32 s30, 0
        s_cbranch_scc1 {L('loop'+tag)}
        """)
    def stats():
        a(f"""
        s_waitcnt lgkmcnt(0)
        v_add_f32 v{XS}, v{XS}, v{XS2}
        v_add_f32 v{XQ}, v{XQ}, v{XQ2}
        v_add_f32 v{CS}, v{CS}, v{CS2}
        v_mov_b32 v{XS2}, v{XS}
        v_mov_b32 v{XQ2}, v{XQ}
        v_mov_b32 v{CS2}, v{CS}
        v_permlane32_swap_b32 v{XS}, v{XS2}
        v_permlane32_swap_b32 v{XQ}, v{XQ2}
        v_permlane32_swap_b32 v{CS}, v{CS2}
        v_add_f32 v{XS}, v{XS}, v{XS2}
        v_add_f32 v{XQ}, v{XQ}, v{XQ2}
        v_add_f32 v{CS}, v{CS}, v{CS2}
        v_mul_f32 v{XS}, {f2u(1/640):#x}, v{XS}          ; mean
        v_mul_f32 v{XQ}, {f2u(1/640):#x}, v{XQ}
        v_fma_f32 v{XQ}, -v{XS}, v{XS}, v{XQ}            ; var
        v_max_f32 v{XQ}, 0, v{XQ}
        v_cvt_pk_bf16_f32 v{XS2}, v{XS}, v{XQ}
        v_lshlrev_b32 v{XS}, 16, v{XS2}
        v_and_b32 v{XQ}, 0xffff0000, v{XS2}
        v_add_f32 v{XQ}, {f2u(1e-5):#x}, v{XQ}
        v_cvt_pk_bf16_f32 v{XQ}, v{XQ}, v{XQ}
        v_and_b32 v{XQ}, 0xffff0000, v{XQ}
        v_sqrt_f32 v{XQ}, v{XQ}
        v_cvt_pk_bf16_f32 v{XQ}, v{XQ}, v{XQ}
        v_and_b32 v{XQ}, 0xffff0000, v{XQ}
        v_rcp_f32 v{XQ}, v{XQ}                           ; rstd
        s_lshl_b32 s3, s{W}, 7
        v_lshl_add_u32 v54, v50, 2, s3
        v_add_u32 v54, {ST_M}, v54
        s_lshl_b32 s3, s{FW}, 1
        s_or_b32 s3, s3, s{TW}
        s_lshl_b32 s3, s3, 7
        v_lshl_add_u32 v55, v50, 2, s3
        v_add_u32 v55, {ST_M}, v55
        ds_write_b32 v54, v{XS}
        ds_write_b32 v54, v{XQ} offset:512
        ds_write_b32 v55, v{CS} offset:1024
        s_waitcnt lgkmcnt(0)
        s_barrier
        """)
    stamp(a, 1, st)
    a("s_barrier")
    stamp(a, 2, st)
    for x in reads(0, 0, 0): a(x)
    a(f"""
    s_cmp_ge_u32 s{CG}, 10
    s_cbranch_scc1 {L('vpath')}
    """)
    mainloop(False, "qk")
    stamp(a, 3, st)
    stats()
    stamp(a, 4, st)
    a(f"""
    v_xor_b32 v54, 128, v54
    ds_read_b32 v{XS2}, v54
    ds_read_b32 v{XQ2}, v54 offset:512
    s_lshl_b32 s3, s{FW}, 1
    s_or_b32 s3, s3, s{TW}
    s_lshl_b32 s3, s3, 7
    v_lshl_add_u32 v55, v51, 4, s3
    v_add_u32 v55, {ST_CS}, v55
    v_xor_b32 v56, 128, v55
    """)
    for j in range(4): a(f"ds_read_b128 {vr(16+4*j,4)}, v55 offset:{32*j}")
    for j in range(4): a(f"ds_read_b128 {vr(32+4*j,4)}, v56 offset:{32*j}")
    a(f"""
    s_cmp_lt_u32 s{CG}, 5
    s_cselect_b32 s31, {f2u(QSCALE):#x}, 1.0
    s_cselect_b32 s32, 0, 5
    s_cselect_b32 s33, {QK_OFF}, {QK_OFF+QK_TYPE}
    s_sub_u32 s32, s{CG}, s32           ; cgt
    s_lshl_b32 s32, s32, 4
    s_lshl_b32 s3, s{FW}, 1
    s_or_b32 s3, s3, s{TW}
    s_lshl_b32 s3, s3, 2
    s_add_u32 s32, s32, s3
    s_lshl_b32 s32, s32, 15
    s_add_u32 s33, s33, s32
    s_lshl_b32 s3, s{TB}, 2
    s_add_u32 s3, s3, s{W}
    s_lshl_b32 s3, s3, 9                ; toktile(slot0)*512
    s_add_u32 s33, s33, s3
    v_lshlrev_b32 v57, 3, v0
    s_waitcnt lgkmcnt(0)
    v_mul_f32 v{XQ}, s31, v{XQ}
    v_mul_f32 v{XQ2}, s31, v{XQ2}
    v_sub_f32 v2, 0, v{XS}
    v_mov_b32 v4, v{XQ}
    v_sub_f32 v6, 0, v{XS2}
    v_mov_b32 v8, v{XQ2}
    """)
    for fi in range(2):
        for ti in range(2):
            acc = ACC + 16 * (fi * 2 + ti)
            cs = 16 + 16 * fi
            m = 2 + 4 * ti; rs = 4 + 4 * ti
            a(f"s_xor_b32 s34, s33, {fi*4*32768 + ti*512}")
            for j in range(4):
                for p in range(2):
                    r = acc + 4 * j + 2 * p
                    a(f"v_pk_fma_f32 {vr(r,2)}, {vr(cs+4*j+2*p,2)}, {vr(m,2)}, {vr(r,2)} op_sel_hi:[1,0,1]")
                for p in range(2):
                    r = acc + 4 * j + 2 * p
                    a(f"v_pk_mul_f32 {vr(r,2)}, {vr(r,2)}, {vr(rs,2)} op_sel_hi:[1,0]")
                for p in range(2):
                    r = acc + 4 * j + 2 * p
                    a(f"v_cvt_pk_bf16_f32 v{acc+4*j+p}, v{r}, v{r+1}")
                a(f"buffer_store_dwordx2 {vr(acc+4*j,2)}, v57, {sr(SO,4)}, s34 offen")
                if j < 3: a(f"s_add_u32 s34, s34, 32768")
    stamp(a, 5, st)
    if st: a("s_waitcnt vmcnt(0)")
    stamp(a, 6, st)
    stamp_flush(a, 7, st, W, SO)
    a("s_endpgm")
    a.label(L("vpath"))
    mainloop(True, "v")
    stamp(a, 3, st)
    stats()
    stamp(a, 4, st)
    a(f"""
    v_xor_b32 v55, 128, v55
    ds_read_b32 v{CS2}, v55 offset:1024
    s_lshl_b32 s3, s{W}, 7
    v_lshl_add_u32 v54, v51, 4, s3
    v_add_u32 v54, {ST_M}, v54
    v_xor_b32 v56, 128, v54
    """)
    MR = [16, 128]; RR = [32, 144]
    for j in range(4): a(f"ds_read_b128 {vr(MR[0]+4*j,4)}, v54 offset:{32*j}")
    for j in range(4): a(f"ds_read_b128 {vr(RR[0]+4*j,4)}, v54 offset:{512+32*j}")
    for j in range(4): a(f"ds_read_b128 {vr(MR[1]+4*j,4)}, v56 offset:{32*j}")
    for j in range(4): a(f"ds_read_b128 {vr(RR[1]+4*j,4)}, v56 offset:{512+32*j}")
    a(f"""
    s_sub_u32 s32, s{CG}, 10
    s_lshl_b32 s32, s32, 2
    s_lshl_b32 s3, s{FW}, 1
    s_or_b32 s3, s3, s{TW}
    s_add_u32 s32, s32, s3
    s_lshl_b32 s35, s{TB}, 2
    s_add_u32 s35, s35, s{W}
    v_mul_u32_u24 v57, 10240, v51
    v_lshl_add_u32 v57, v50, 4, v57
    s_waitcnt lgkmcnt(0)
    v_sub_f32 v2, 0, v{CS}
    v_sub_f32 v4, 0, v{CS2}
    """)
    for fi in range(2):
        for ti in range(2):
            acc = ACC + 16 * (fi * 2 + ti)
            a(f"""
            s_xor_b32 s3, s32, {fi}
            s_lshl_b32 s3, s3, 9
            s_xor_b32 s34, s35, {ti}
            s_mul_i32 s34, s34, 40960
            s_add_u32 s34, s34, s3
            s_add_u32 s34, s34, {VT_OFF}
            """)
            for kb in range(2):
                for p in range(4):
                    r = acc + 8 * kb + 2 * p
                    a(f"v_pk_fma_f32 {vr(r,2)}, {vr(MR[ti]+8*kb+2*p,2)}, {vr(2+2*fi,2)}, {vr(r,2)} op_sel_hi:[1,0,1]")
                for p in range(4):
                    r = acc + 8 * kb + 2 * p
                    a(f"v_pk_mul_f32 {vr(r,2)}, {vr(r,2)}, {vr(RR[ti]+8*kb+2*p,2)}")
                for p in range(4):
                    r = acc + 8 * kb + 2 * p
                    a(f"v_cvt_pk_bf16_f32 v{acc+8*kb+p}, v{r}, v{r+1}")
                a(f"buffer_store_dwordx4 {vr(acc+8*kb,4)}, v57, {sr(SO,4)}, s34 offen")
                if kb == 0: a("s_add_u32 s34, s34, 20480")
    stamp(a, 5, st)
    if st: a("s_waitcnt vmcnt(0)")
    stamp(a, 6, st)
    stamp_flush(a, 7, st, W, SO)
    a("s_endpgm")
    a.label(L("loader"))
    LW = 28
    a(f"""
    s_sub_u32 s{LW}, s{W}, 4
    v_lshrrev_b32 v1, 3, v0             ; lane>>3
    v_lshrrev_b32 v2, 4, v0             ; lane>>4
    v_and_b32 v3, 7, v0
    v_xor_b32 v3, v3, v2
    s_lshl_b32 s3, s{TB}, 7
    s_lshl_b32 s29, s{LW}, 5
    s_add_u32 s3, s3, s29
    v_add_u32 v1, s3, v1
    v_mul_u32_u24 v1, 1280, v1
    v_lshl_add_u32 v4, v3, 4, v1        ; i=0
    v_xor_b32 v3, 4, v3
    v_lshl_add_u32 v5, v3, 4, v1
    v_add_u32 v5, {8*1280}, v5          ; i=1
    v_add_u32 v6, {16*1280}, v4         ; i=2
    v_add_u32 v7, {16*1280}, v5         ; i=3
    s_lshl_b32 s3, s{LW}, 4
    v_add_u32 v1, s3, v2
    v_mul_u32_u24 v1, 3840, v1
    v_and_b32 v3, 15, v0
    v_lshlrev_b32 v2, 2, v2
    v_xor_b32 v3, v3, v2
    v_lshl_add_u32 v8, v3, 4, v1
    s_lshl_b32 s3, s{CG}, 8
    v_add_u32 v8, s3, v8
    v_add_u32 v9, {4*3840}, v8
    v_add_u32 v10, {8*3840}, v8
    v_add_u32 v11, {12*3840}, v8
    s_lshl_b32 s29, s{LW}, 12
    s_mov_b32 s30, 0
    """)
    def issue():
        a(f"""
        s_lshl_b32 s31, s{STG}, 7
        s_mul_i32 s32, s{STG}, {64*3840}
        s_add_u32 s33, s29, s30
        """)
        for i in range(4):
            a(f"s_add_u32 m0, s33, {16384 + i*1024}")
            a(f"buffer_load_dwordx4 v{8+i}, {sr(SW,4)}, s32 offen lds")
            a(f"s_add_u32 m0, s33, {i*1024}")
            a(f"buffer_load_dwordx4 v{4+i}, {sr(SX,4)}, s31 offen lds")
        a(f"""
        s_add_u32 s30, s30, 32768
        s_and_b32 s30, s30, 0x1ffff
        s_add_u32 s{STG}, s{STG}, 1
        s_cmp_eq_u32 s{STG}, 10
        s_cselect_b32 s{STG}, 0, s{STG}
        """)
    stamp(a, 1, st)
    if norot: a(f"s_mov_b32 s{STG}, 0")
    a("s_mov_b32 s34, 3")
    a.label(L("lpro"))
    issue()
    a(f"""
    s_sub_u32 s34, s34, 1
    s_cmp_lg_u32 s34, 0
    s_cbranch_scc1 {L('lpro')}
    s_mov_b32 s34, 7
    """)
    stamp(a, 2, st)
    if st:
        a("s_waitcnt vmcnt(23)")
        stamp(a, 3, st)
        a("s_waitcnt vmcnt(16)")
        stamp(a, 4, st)
    a.label(L("lloop"))
    a("s_waitcnt vmcnt(16)")
    a("s_barrier")
    issue()
    a(f"""
    s_sub_u32 s34, s34, 1
    s_cmp_lg_u32 s34, 0
    s_cbranch_scc1 {L('lloop')}
    s_waitcnt vmcnt(16)
    s_barrier
    s_waitcnt vmcnt(8)
    s_barrier
    s_waitcnt vmcnt(0)
    s_barrier
    """)
    stamp(a, 5, st)
    stamp_flush(a, 6, st, W, SO)
    a(f"""
    v_and_b32 v1, 31, v0
    v_lshrrev_b32 v2, 5, v0
    v_bfe_u32 v3, v0, 1, 3
    v_lshl_add_u32 v4, v1, 7, s29
    """)
    for ks in range(4):
        a(f"""
        v_or_b32 v5, {2*ks}, v2
        v_xor_b32 v5, v5, v3
        v_lshl_add_u32 v5, v5, 4, v4
        ds_read_b128 {vr(16+4*ks,4)}, v5 offset:32768
        """)
    a(f"""
    s_lshl_b32 s3, s{LW}, 7
    v_lshl_add_u32 v6, v1, 2, s3
    v_add_u32 v6, {ST_M}, v6
    s_add_u32 s{STG}, s{STG}, 9
    s_cmp_ge_u32 s{STG}, 10
    s_cselect_b32 s3, 10, 0
    s_sub_u32 s{STG}, s{STG}, s3
    s_lshl_b32 s3, s{TB}, 2
    s_add_u32 s3, s3, s{LW}
    s_mul_i32 s3, s3, 40960
    s_lshl_b32 s31, s{STG}, 12
    s_add_u32 s31, s31, s3
    s_add_u32 s31, s31, {XN_OFF}
    v_lshlrev_b32 v7, 4, v0
    s_barrier
    s_barrier
    s_cmp_ge_u32 s{CG}, 10
    s_cbranch_scc1 {L('end')}
    ds_read_b32 v8, v6
    ds_read_b32 v10, v6 offset:512
    s_waitcnt lgkmcnt(0)
    v_mul_f32 v8, v8, v10
    v_sub_f32 v8, 0, v8                  ; -m*rs
    """)
    for ks in range(4):
        for i in range(4):
            s = 16 + 4 * ks + i
            a(f"""
            v_lshlrev_b32 v12, 16, v{s}
            v_and_b32 v13, 0xffff0000, v{s}
            v_pk_fma_f32 v[12:13], v[12:13], v[10:11], v[8:9] op_sel_hi:[1,0,0]
            v_cvt_pk_bf16_f32 v{s}, v12, v13
            """)
        a(f"buffer_store_dwordx4 {vr(16+4*ks,4)}, v7, {sr(SO,4)}, s31 offen offset:{ks*1024}")
    a("s_endpgm")
    a.label(L("zero"))
    a(f"""
    s_lshl_b32 s3, s{TB}, 8
    s_add_u32 s3, s3, {FLG_OFF}
    v_lshlrev_b32 v1, 2, v0
    v_mov_b32 v2, 0
    buffer_store_dword v2, v1, {sr(SO,4)}, s3 offen
    """)
    a.label(L("end"))
    a("s_endpgm")
    return kernel_text(name, a.text(), 160, 100 if st else 40)

if __name__ == "__main__":
    print(gen_k1())
```

```python
from asmlib import *
from layout import *

def srd(a, base, lo, nbytes):
    a(f"s_mov_b32 s{base}, s{lo}")
    a(f"s_and_b32 s{base+1}, s{lo+1}, 0xffff")
    a(f"s_mov_b32 s{base+2}, {nbytes}")
    a(f"s_mov_b32 s{base+3}, 0x00020000")

K1_THREADS = 768
K1_LDS = 131072 + 2048
ST_M = 131072
ST_RS = 131072 + 512
ST_CS = 131072 + 1024

STAMP_OFF = 64 << 20
DBGK = [0]
def stamp(a, i, on):
    if on == "dbg":
        if i == 0:
            a("s_memrealtime s[60:61]")
            a("s_load_dwordx2 s[64:65], s[0:1], 64")
        return
    if on == "rt": a(f"s_memrealtime s[{60+2*i}:{61+2*i}]")
    elif on: a(f"s_memtime s[{60+2*i}:{61+2*i}]")
def stamp_flush(a, n, on, wreg, srdbase, nwaves=16):
    if not on: return
    if on == "dbg":
        k = DBGK[0]
        a("s_waitcnt vmcnt(0) lgkmcnt(0)")
        a("s_memrealtime s[62:63]")
        a(f"s_add_u32 s64, s64, {512*(2-k)}")
        a("s_addc_u32 s65, s65, 0")
        a("s_and_b32 s65, s65, 0xffff")
        a("s_mov_b32 s66, 256")
        a("s_mov_b32 s67, 0x20000")
        a("s_waitcnt lgkmcnt(0)")
        a("s_and_b32 s60, s60, 0xffffff")
        a("s_and_b32 s62, s62, 0xffffff")
        a("s_sub_u32 s61, 0x1000000, s60")
        a("s_mov_b64 exec, 1")
        a(f"s_cmp_eq_u32 s{wreg}, {8 if k == 1 else 0}")
        a("s_cselect_b32 s66, 256, 0")
        a("v_mov_b32 v1, 0")
        a("v_mov_b32 v2, s61")
        a(f"buffer_atomic_umax v2, v1, s[64:67], 0 offen offset:{16*k}")
        a("v_mov_b32 v3, s60")
        a(f"buffer_atomic_umax v3, v1, s[64:67], 0 offen offset:{16*k+4}")
        a("v_mov_b32 v4, s62")
        a(f"buffer_atomic_umax v4, v1, s[64:67], 0 offen offset:{16*k+8}")
        a("s_mov_b64 exec, -1")
        return
    a("s_waitcnt lgkmcnt(0)")
    a(f"s_mov_b32 s{srdbase+2}, 0x10000000")
    a(f"s_lshl_b32 s58, s2, 4")
    a(f"s_add_u32 s58, s58, s{wreg}")
    a(f"s_lshl_b32 s58, s58, 6")
    a(f"s_add_u32 s58, s58, {STAMP_OFF}")
    a("v_mov_b32 v1, 0")
    for i in range(n):
        a(f"v_mov_b32 v2, s{60+2*i}")
        a(f"buffer_store_dword v2, v1, s[{srdbase}:{srdbase+3}], s58 offen offset:{4*i}")

def gen_k1(name="k1_kernel", st=False, ahead=3, touch=False, nostat=False, sprio=0, mprio=2, nocs=False, nomem=False, dep=0):
    a = Asm()
    stamp(a, 0, st)
    L = lambda s: f"{name}_{s}"
    TB, CG, W = 10, 11, 12
    SX, SW, SO = 16, 20, 24
    a(f"""
    s_load_dwordx4 s[4:7], s[0:1], 0
    s_load_dwordx2 s[8:9], s[0:1], 72
    s_cmp_ge_u32 s2, 256
    s_cbranch_scc1 {L('end')}
    v_lshrrev_b32 v1, 6, v0
    v_and_b32 v0, 63, v0
    s_and_b32 s3, s2, 3
    s_lshl_b32 s3, s3, 2
    v_readfirstlane_b32 s{W}, v1
    s_bfe_u32 s15, s2, 0x20003
    s_add_u32 s{TB}, s3, s15
    s_bfe_u32 s3, s2, 0x10002
    s_lshl_b32 s3, s3, 3
    s_lshr_b32 s{CG}, s2, 5
    s_add_u32 s{CG}, s{CG}, s3
    s_cmp_ge_u32 s{CG}, 15
    s_cbranch_scc1 {L('zero')}
    s_cmp_lt_u32 s{W}, 4
    s_cbranch_scc1 {L('mfma')}
    s_cmp_lt_u32 s{W}, 8
    s_cbranch_scc1 {L('stat')}
    """)
    LW = 28
    a(f"""
    s_setprio 3
    s_sub_u32 s{LW}, s{W}, 8
    v_lshrrev_b32 v1, 3, v0             ; lane>>3
    v_lshrrev_b32 v2, 4, v0             ; lane>>4
    v_and_b32 v3, 7, v0
    v_xor_b32 v3, v3, v2
    s_lshl_b32 s3, s{TB}, 7
    s_lshl_b32 s29, s{LW}, 5
    s_add_u32 s3, s3, s29
    v_add_u32 v1, s3, v1
    v_mul_u32_u24 v1, 1280, v1
    v_lshl_add_u32 v4, v3, 4, v1        ; i=0
    v_xor_b32 v3, 4, v3
    v_lshl_add_u32 v5, v3, 4, v1
    v_add_u32 v5, {8*1280}, v5          ; i=1
    v_add_u32 v6, {16*1280}, v4         ; i=2
    v_add_u32 v7, {16*1280}, v5         ; i=3
    s_lshl_b32 s3, s{LW}, 4
    v_add_u32 v1, s3, v2
    v_mul_u32_u24 v1, 3840, v1
    v_and_b32 v3, 15, v0
    v_lshlrev_b32 v2, 2, v2
    v_xor_b32 v3, v3, v2
    v_lshl_add_u32 v8, v3, 4, v1
    s_lshl_b32 s3, s{CG}, 8
    v_add_u32 v8, s3, v8
    v_add_u32 v9, {4*3840}, v8
    v_add_u32 v10, {8*3840}, v8
    v_add_u32 v11, {12*3840}, v8
    s_lshl_b32 s33, s{LW}, 12
    s_mov_b32 s31, 0
    s_mov_b32 s32, 0
    s_waitcnt lgkmcnt(0)
    """)
    srd(a, SX, 4, 0 if nomem else 2048 * 1280)
    srd(a, SW, 6, 0 if nomem else 640 * 3840)
    def issue():
        for i in range(4):
            a(f"s_add_u32 m0, s33, {16384 + i*1024}")
            a(f"buffer_load_dwordx4 v{8+i}, {sr(SW,4)}, s32 offen lds")
            a(f"s_add_u32 m0, s33, {i*1024}")
            a(f"buffer_load_dwordx4 v{4+i}, {sr(SX,4)}, s31 offen lds")
        a(f"""
        s_add_u32 s33, s33, 32768
        s_and_b32 s33, s33, 0x1ffff
        s_add_u32 s31, s31, 128
        s_add_u32 s32, s32, {64*3840}
        """)
    stamp(a, 1, st)
    issue()
    a("s_mov_b32 s34, 9")
    a.label(L("lloop"))
    issue()
    a(f"""
    s_waitcnt vmcnt(8)
    s_barrier
    s_sub_u32 s34, s34, 1
    s_cmp_lg_u32 s34, 0
    s_cbranch_scc1 {L('lloop')}
    s_waitcnt vmcnt(0)
    s_barrier
    """)
    if st:
        stamp(a, 2, st); srd(a, SO, 8, WS_USED); stamp_flush(a, 3, st, W, SO)
    a("s_endpgm")
    a.label(L("stat"))
    SWV = 28
    a(f"""
    s_setprio {sprio}
    s_sub_u32 s{SWV}, s{W}, 4
    s_and_b32 s29, s{SWV}, 1
    s_lshr_b32 s30, s{SWV}, 1
    s_lshr_b32 s3, s2, 5
    s_lshl_b32 s3, s3, 4
    s_lshl_b32 s31, s30, 3
    s_add_u32 s3, s3, s31
    s_lshl_b32 s31, s{TB}, 7
    s_add_u32 s3, s3, s31
    v_add_u32 v1, s3, v0
    v_mul_u32_u24 v1, 1280, v1          ; x voffset
    s_lshl_b32 s3, s15, 5
    s_lshl_b32 s31, s30, 4
    s_add_u32 s3, s3, s31
    v_add_u32 v2, s3, v0
    v_lshrrev_b32 v3, 1, v2
    v_mul_u32_u24 v3, 3840, v3
    v_and_b32 v2, 1, v2
    v_lshl_add_u32 v3, v2, 7, v3
    s_lshl_b32 s3, s{CG}, 8
    v_add_u32 v3, s3, v3                ; W voffset
    s_cmp_eq_u32 s29, 0
    s_cselect_b32 s31, 8, 16
    s_mov_b32 s32, {64*3840}
    s_cselect_b32 s32, 128, s32
    s_cselect_b64 vcc, -1, 0
    v_cndmask_b32 v1, v3, v1, vcc
    v_cmp_gt_u32 vcc, s31, v0
    v_mov_b32 v2, 0x7f000000
    v_cndmask_b32 v14, v2, v1, vcc
    s_mov_b32 s33, s32
    s_waitcnt lgkmcnt(0)
    s_cmp_eq_u32 s29, 0
    s_cselect_b32 s{SX}, s4, s6
    s_cselect_b32 s{SX+1}, s5, s7
    s_mov_b32 s{SX+2}, {640*3840 if touch else 0}
    s_cselect_b32 s{SX+2}, {2048*1280 if touch else 0}, s{SX+2}
    s_and_b32 s{SX+1}, s{SX+1}, 0xffff
    s_mov_b32 s{SX+3}, 0x00020000
    """)
    def touch1():
        a(f"buffer_load_dword v15, v14, {sr(SX,4)}, s33 offen")
        a("s_add_u32 s33, s33, s32")
    for _ in range(ahead - 1): touch1()
    srd(a, SO, 8, WS_USED)
    a(f"""
    v_and_b32 v1, 31, v0
    v_lshrrev_b32 v2, 5, v0
    v_bfe_u32 v3, v0, 1, 3
    s_lshl_b32 s3, s{SWV}, 12
    v_lshl_add_u32 v4, v1, 7, s3
    s_and_b32 s35, s{CG}, 3
    s_lshl_b32 s35, s35, 15
    v_add_u32 v4, s35, v4
    """)
    for ks in range(4):
        a(f"""
        v_or_b32 v5, {2*ks}, v2
        v_xor_b32 v5, v5, v3
        v_lshl_add_u32 v{6+ks}, v5, 4, v4
        """)
    a(f"""
    v_and_b32 v5, 15, v0
    v_lshl_add_u32 v4, v5, 7, s3
    v_lshrrev_b32 v12, 4, v0
    v_xor_b32 v13, v12, v3
    v_lshl_add_u32 v10, v13, 4, v4
    v_xor_b32 v11, 64, v10
    """)
    ONE = 48; G = [52, 56]; SM = [60, 64]
    for i in range(4): a(f"v_mov_b32 v{ONE+i}, 0x3f803f80")
    for i in range(16): a(f"v_mov_b32 v{52+i}, 0")
    a("s_mov_b32 s34, 0")
    a(".p2align 6")
    a.label(L("sloop"))
    for par in range(2):
        a("s_barrier")
        for q in range(4): a(f"ds_read_b128 {vr(16+4*q,4)}, v{10+q%2} offset:{par*32768 + (q//2)*2048}")
        a(f"s_cmp_ge_u32 s34, {10-ahead}")
        a(f"s_cselect_b32 s{SX+2}, 0, s{SX+2}")
        touch1()
        a(f"""
        s_cmp_lg_u32 s34, s{CG}
        s_cbranch_scc1 {L('nokeep'+str(par))}
        """)
        for ks in range(4): a(f"ds_read_b128 {vr(32+4*ks,4)}, v{6+ks}")
        a("s_waitcnt lgkmcnt(0)")
        a.label(L("nokeep" + str(par)))
        a("s_add_u32 s34, s34, 1")
        if par == 1:
            a("v_xor_b32 v10, 0x10000, v10"); a("v_xor_b32 v11, 0x10000, v11")
        for q in range(0 if nostat else 4):
            a(f"s_waitcnt lgkmcnt({3-q})")
            f = vr(16 + 4 * q, 4)
            a(f"v_mfma_f32_16x16x32_bf16 {vr(G[q//2],4)}, {f}, {f}, {vr(G[q//2],4)}")
            a(f"v_mfma_f32_16x16x32_bf16 {vr(SM[q//2],4)}, {vr(ONE,4)}, {f}, {vr(SM[q//2],4)}")
        if nostat: a("s_waitcnt lgkmcnt(0)")
    a(f"""
    s_cmp_lg_u32 s34, 10
    s_cbranch_scc1 {L('sloop')}
    v_and_b32 v13, 3, v0
    v_cmp_eq_u32 s[36:37], 1, v13
    v_cmp_eq_u32 s[38:39], 2, v13
    v_cmp_eq_u32 s[40:41], 3, v13
    v_bfe_u32 v13, v0, 2, 2
    v_cmp_eq_u32 s[42:43], v13, v12
    s_lshl_b32 s3, s{SWV}, 7
    v_lshl_add_u32 v5, v5, 2, s3
    v_add_u32 v5, {ST_M}, v5
    """)
    for g in range(2):
        q = G[g]; m = SM[g]
        a(f"""
        v_cndmask_b32 v{q}, v{q}, v{q+1}, s[36:37]
        v_cndmask_b32 v{q}, v{q}, v{q+2}, s[38:39]
        v_cndmask_b32 v{q}, v{q}, v{q+3}, s[40:41]
        v_mul_f32 v{m}, {f2u(1/640):#x}, v{m}          ; mean
        v_mul_f32 v{q}, {f2u(1/640):#x}, v{q}
        v_fma_f32 v{q}, -v{m}, v{m}, v{q}              ; var
        v_max_f32 v{q}, 0, v{q}
        v_cvt_pk_bf16_f32 v{q+1}, v{m}, v{q}
        v_lshlrev_b32 v{m}, 16, v{q+1}
        v_and_b32 v{q}, 0xffff0000, v{q+1}
        v_add_f32 v{q}, {f2u(1e-5):#x}, v{q}
        v_cvt_pk_bf16_f32 v{q}, v{q}, v{q}
        v_and_b32 v{q}, 0xffff0000, v{q}
        v_sqrt_f32 v{q}, v{q}
        v_cvt_pk_bf16_f32 v{q}, v{q}, v{q}
        v_and_b32 v{q}, 0xffff0000, v{q}
        v_rcp_f32 v{q}, v{q}                           ; rstd
        """)
    a(f"""
    s_mov_b64 exec, s[42:43]
    ds_write_b32 v5, v{SM[0]}
    ds_write_b32 v5, v{G[0]} offset:512
    ds_write_b32 v5, v{SM[1]} offset:64
    ds_write_b32 v5, v{G[1]} offset:576
    s_mov_b64 exec, -1
    v_lshl_add_u32 v5, v1, 2, s3
    v_add_u32 v5, {ST_M}, v5
    s_waitcnt lgkmcnt(0)
    s_barrier
    ds_read_b32 v10, v5
    ds_read_b32 v12, v5 offset:512
    s_cmp_ge_u32 s{CG}, 10
    s_cbranch_scc1 {L('end')}
    s_lshl_b32 s3, s{TB}, 2
    s_add_u32 s3, s3, s{SWV}
    s_mul_i32 s3, s3, 40960
    s_lshl_b32 s31, s{CG}, 12
    s_add_u32 s31, s31, s3
    s_add_u32 s31, s31, {XN_OFF}
    v_lshlrev_b32 v7, 4, v0
    s_waitcnt lgkmcnt(0)
    v_mul_f32 v10, v10, v12
    v_sub_f32 v10, 0, v10                        ; -m*rs
    """)
    for ks in range(4):
        for i in range(4):
            s_ = 32 + 4 * ks + i; t = 48 + 2 * (i % 2)
            a(f"""
            v_lshlrev_b32 v{t}, 16, v{s_}
            v_and_b32 v{t+1}, 0xffff0000, v{s_}
            v_pk_fma_f32 {vr(t,2)}, {vr(t,2)}, v[12:13], v[10:11] op_sel_hi:[1,0,0]
            v_cvt_pk_bf16_f32 v{s_}, v{t}, v{t+1}
            """)
        a(f"buffer_store_dwordx4 {vr(32+4*ks,4)}, v7, {sr(SO,4)}, s31 offen offset:{ks*1024}")
    a("s_endpgm")
    a.label(L("mfma"))
    TW, FW = 28, 29
    XA = 2
    WA = 10
    SEL = 12
    CS = 48
    BUF = [16, 32, 128, 144]
    ACC = 64
    a(f"""
    s_setprio {mprio}
    s_lshr_b32 s{TW}, s{W}, 1
    s_and_b32 s{FW}, s{W}, 1
    v_and_b32 v56, 31, v0
    v_lshrrev_b32 v57, 5, v0            ; h
    v_bfe_u32 v52, v0, 1, 3             ; f
    s_lshl_b32 s3, s{TW}, 13            ; tw*64*128
    v_lshl_add_u32 v53, v56, 7, s3
    """)
    for ks in range(4):
        a(f"""
        v_or_b32 v54, {2*ks}, v57
        v_xor_b32 v54, v54, v52
        v_lshl_add_u32 v{XA+ks}, v54, 4, v53
        """)
    a(f"""
    v_bfe_u32 v54, v0, 2, 2             ; r
    v_lshl_add_u32 v55, v57, 3, v54     ; 8h+r
    v_lshlrev_b32 v55, 8, v55
    s_lshl_b32 s35, s{FW}, 1
    s_or_b32 s35, s35, s{TW}
    v_xor_b32 v54, s35, v54
    v_lshl_add_u32 v55, v54, 6, v55
    v_bfe_u32 v54, v0, 4, 1
    v_lshl_add_u32 v55, v54, 5, v55
    v_and_b32 v53, 3, v0
    v_lshl_add_u32 v55, v53, 3, v55
    v_add_u32 v{WA}, 0x4000, v55
    v_xor_b32 v{WA+1}, 64, v{WA}
    v_bfe_u32 v53, v0, 2, 1
    v_cmp_eq_u32 vcc, v53, v54
    v_mov_b32 v53, 0x3f803f80
    v_cndmask_b32 v{SEL}, 0, v53, vcc
    v_mov_b32 v{SEL+1}, v{SEL}
    v_mov_b32 v{SEL+2}, v{SEL}
    v_mov_b32 v{SEL+3}, v{SEL}
    """)
    for i in range(4): a(f"v_mov_b32 v{CS+i}, 0")
    for i in range(64): a(f"v_mov_b32 v{ACC+i}, 0")
    a("s_waitcnt lgkmcnt(0)")
    srd(a, SO, 8, WS_USED)

    def reads(buf, par, ks):
        b = BUF[buf]; o = par * 32768
        wo = o + ks * 4096
        return [
            f"ds_read_b64_tr_b16 {vr(b+8,2)}, v{WA} offset:{wo}",
            f"ds_read_b64_tr_b16 {vr(b+10,2)}, v{WA} offset:{wo+1024}",
            f"ds_read_b128 {vr(b,4)}, v{XA+ks} offset:{o}",
            f"ds_read_b128 {vr(b+4,4)}, v{XA+ks} offset:{o+4096}",
            f"ds_read_b64_tr_b16 {vr(b+12,2)}, v{WA+1} offset:{wo}",
            f"ds_read_b64_tr_b16 {vr(b+14,2)}, v{WA+1} offset:{wo+1024}",
        ]
    def mf(buf, fi, ti, vmode):
        b = BUF[buf]; acc = ACC + 16 * (fi * 2 + ti)
        wv = vr(b + 8 + 4 * fi, 4); xv = vr(b + 4 * ti, 4)
        A, B = (xv, wv) if vmode else (wv, xv)
        return f"v_mfma_f32_32x32x16_bf16 {vr(acc,16)}, {A}, {B}, {vr(acc,16)}"
    def csm(cur):
        return f"v_mfma_f32_16x16x32_bf16 {vr(CS,4)}, {vr(SEL,4)}, {vr(BUF[cur]+8,4)}, {vr(CS,4)}"
    def kstep(cur, rd, vmode, pre=(), wait=6):
        a(f"s_waitcnt lgkmcnt({wait})")
        a(mf(cur, 0, 0, vmode))
        for x in pre: a(x)
        [a(x) for x in rd[0:2]]
        a(mf(cur, 0, 1, vmode)); [a(x) for x in rd[2:4]]
        a(mf(cur, 1, 0, vmode)); [a(x) for x in rd[4:6]]
        a(mf(cur, 1, 1, vmode))
        if not nocs: a(csm(cur))
    def mainloop(vmode, tag):
        a("s_mov_b32 s30, 5")
        a(".p2align 6")
        a.label(L("loop" + tag))
        tg = [f"v_xor_b32 v{r}, 0x10000, v{r}" for r in list(range(XA, XA + 4)) + [WA, WA + 1]]
        for par in range(2):
            kstep(0, reads(2, par, 2), vmode)
            kstep(1, reads(3, par, 3), vmode)
            if par == 1:
                a(f"s_cmp_eq_u32 s30, 1")
                a(f"s_cbranch_scc1 {L('fin'+tag)}")
            kstep(2, reads(0, 1 - par, 0), vmode, pre=["s_barrier"] + (tg if par == 1 else []))
            kstep(3, reads(1, 1 - par, 1), vmode)
        a(f"""
        s_sub_u32 s30, s30, 1
        s_branch {L('loop'+tag)}
        """)
        a.label(L("fin" + tag))
        kstep(2, [], vmode)
        a("s_waitcnt lgkmcnt(0)")
        a(csm(3))
        for fi in range(2):
            for ti in range(2): a(mf(3, fi, ti, vmode))
        a(f"""
        s_lshl_b32 s3, s35, 7
        v_lshl_add_u32 v55, v56, 2, s3
        v_add_u32 v55, {ST_CS}, v55
        ds_write_b32 v55, v{CS}
        s_waitcnt lgkmcnt(0)
        s_barrier
        """)
    stamp(a, 1, st)
    a("s_barrier")
    stamp(a, 2, st)
    for x in reads(0, 0, 0) + reads(1, 0, 1): a(x)
    a(f"""
    s_cmp_ge_u32 s{CG}, 10
    s_cbranch_scc1 {L('vpath')}
    """)
    a(f"""
    s_cmp_lt_u32 s{CG}, 5
    s_cselect_b32 s31, {f2u(QSCALE):#x}, 1.0
    s_cselect_b32 s32, 0, 5
    s_cselect_b32 s33, {QK_OFF}, {QK_OFF+QK_TYPE}
    s_sub_u32 s32, s{CG}, s32           ; cgt
    s_lshl_b32 s32, s32, 4
    s_lshl_b32 s3, s35, 2
    s_add_u32 s32, s32, s3
    s_lshl_b32 s32, s32, 15
    s_add_u32 s33, s33, s32
    s_lshl_b32 s3, s{TB}, 2
    s_lshl_b32 s32, s{TW}, 1
    s_add_u32 s3, s3, s32
    s_lshl_b32 s3, s3, 9                ; toktile*512
    s_add_u32 s33, s33, s3
    v_lshlrev_b32 v58, 3, v0
    s_lshl_b32 s3, s{TW}, 8
    v_lshl_add_u32 v59, v56, 2, s3
    v_add_u32 v59, {ST_M}, v59
    s_lshl_b32 s3, s35, 7
    v_lshl_add_u32 v60, v57, 4, s3
    v_add_u32 v60, {ST_CS}, v60
    v_xor_b32 v61, 128, v60
    """)
    mainloop(False, "qk")
    stamp(a, 3, st)
    a(f"""
    ds_read_b32 v2, v59
    ds_read_b32 v4, v59 offset:512
    ds_read_b32 v6, v59 offset:128
    ds_read_b32 v8, v59 offset:640
    """)
    for j in range(4): a(f"ds_read_b128 {vr(16+4*j,4)}, v60 offset:{32*j}")
    for j in range(4): a(f"ds_read_b128 {vr(32+4*j,4)}, v61 offset:{32*j}")
    a(f"""
    s_waitcnt lgkmcnt(4)
    v_mul_f32 v4, s31, v4
    v_mul_f32 v8, s31, v8
    """)
    for fi in range(2):
        if fi == 1: a("s_waitcnt lgkmcnt(0)")
        for ti in range(2):
            acc = ACC + 16 * (fi * 2 + ti)
            cs = 16 + 16 * fi
            m = 2 + 4 * ti; rs = 4 + 4 * ti
            a(f"s_xor_b32 s34, s33, {fi*4*32768}")
            for j in range(4):
                for p in range(2):
                    r = acc + 4 * j + 2 * p
                    a(f"v_pk_fma_f32 {vr(r,2)}, {vr(cs+4*j+2*p,2)}, {vr(m,2)}, {vr(r,2)} op_sel_hi:[1,0,1] neg_lo:[0,1,0] neg_hi:[0,1,0]")
                for p in range(2):
                    r = acc + 4 * j + 2 * p
                    a(f"v_pk_mul_f32 {vr(r,2)}, {vr(r,2)}, {vr(rs,2)} op_sel_hi:[1,0]")
                for p in range(2):
                    r = acc + 4 * j + 2 * p
                    a(f"v_cvt_pk_bf16_f32 v{acc+4*j+p}, v{r}, v{r+1}")
                a(f"buffer_store_dwordx2 {vr(acc+4*j,2)}, v58, {sr(SO,4)}, s34 offen offset:{ti*512}")
                if j < 3: a(f"s_add_u32 s34, s34, 32768")
    stamp(a, 4, st)
    if st: a("s_waitcnt vmcnt(0)")
    stamp(a, 5, st)
    stamp_flush(a, 6, st, W, SO)
    a("s_endpgm")
    a.label(L("vpath"))
    a(f"""
    s_sub_u32 s32, s{CG}, 10
    s_lshl_b32 s32, s32, 2
    s_add_u32 s32, s32, s35
    s_lshl_b32 s32, s32, 9
    s_lshl_b32 s33, s{TB}, 2
    s_lshl_b32 s3, s{TW}, 1
    s_add_u32 s33, s33, s3              ; toktile
    s_mul_i32 s33, s33, 40960
    s_add_u32 s33, s33, {VT_OFF}
    v_mul_u32_u24 v58, 10240, v57
    v_lshl_add_u32 v58, v56, 4, v58
    s_lshl_b32 s3, s{TW}, 8
    v_lshl_add_u32 v59, v57, 4, s3
    v_add_u32 v59, {ST_M}, v59
    """)
    mainloop(True, "v")
    stamp(a, 3, st)
    MR = [16, 128]; RR = [32, 144]
    a(f"""
    v_xor_b32 v55, 128, v55
    ds_read_b32 v4, v55
    v_mov_b32 v2, v{CS}
    """)
    for ti in range(2):
        for j in range(4): a(f"ds_read_b128 {vr(MR[ti]+4*j,4)}, v59 offset:{128*ti+32*j}")
        for j in range(4): a(f"ds_read_b128 {vr(RR[ti]+4*j,4)}, v59 offset:{512+128*ti+32*j}")
    for ti in range(2):
        a(f"s_waitcnt lgkmcnt({8 if ti == 0 else 0})")
        for fi in range(2):
            acc = ACC + 16 * (fi * 2 + ti)
            a(f"""
            s_xor_b32 s34, s32, {fi*512}
            s_add_u32 s34, s34, s33
            s_add_u32 s34, s34, {ti*40960}
            """)
            for kb in range(2):
                for p in range(4):
                    r = acc + 8 * kb + 2 * p
                    a(f"v_pk_fma_f32 {vr(r,2)}, {vr(MR[ti]+8*kb+2*p,2)}, {vr(2+2*fi,2)}, {vr(r,2)} op_sel_hi:[1,0,1] neg_lo:[0,1,0] neg_hi:[0,1,0]")
                for p in range(4):
                    r = acc + 8 * kb + 2 * p
                    a(f"v_pk_mul_f32 {vr(r,2)}, {vr(r,2)}, {vr(RR[ti]+8*kb+2*p,2)}")
                for p in range(4):
                    r = acc + 8 * kb + 2 * p
                    a(f"v_cvt_pk_bf16_f32 v{acc+8*kb+p}, v{r}, v{r+1}")
                a(f"buffer_store_dwordx4 {vr(acc+8*kb,4)}, v58, {sr(SO,4)}, s34 offen")
                if kb == 0: a("s_add_u32 s34, s34, 20480")
    stamp(a, 4, st)
    if st: a("s_waitcnt vmcnt(0)")
    stamp(a, 5, st)
    stamp_flush(a, 6, st, W, SO)
    a("s_endpgm")
    a.label(L("zero"))
    a("s_waitcnt lgkmcnt(0)")
    srd(a, SO, 8, WS_USED)
    a(f"""
    s_cmp_ge_u32 s{W}, 3
    s_cbranch_scc1 {L('end')}
    s_mul_i32 s3, s{TB}, 768
    s_lshl_b32 s15, s{W}, 8
    s_add_u32 s3, s3, s15
    s_add_u32 s3, s3, {FLG_OFF}
    v_lshlrev_b32 v1, 2, v0
    v_mov_b32 v2, 0
    buffer_store_dword v2, v1, {sr(SO,4)}, s3 offen
    """)
    a.label(L("end"))
    a("s_endpgm")
    return kernel_text(name, a.text(), 160, 100 if st else 48)

if __name__ == "__main__":
    print(gen_k1())
```

```python
from asmlib import *
from layout import *
from k1 import srd, stamp, stamp_flush

KV_SLOT = 16384
EX_OFF = 0
FB = 32768
USLOT = 41024
UW1 = 16384
UW3D = 12288 + 32
SYNC = FB + 3 * USLOT
K2_LDS = SYNC + 64

def row192(a, dst, stride, tmp, tmp2, comp=0):
    for p in range(3):
        a(f"""
        v_add_u32 v{tmp}, {64*p}, v0
        v_mul_u32_u24 v{tmp2}, 0xaab, v{tmp}
        v_lshrrev_b32 v{tmp2}, 15, v{tmp2}       ; row = G/12
        v_mul_u32_u24 v{dst+p}, 12, v{tmp2}
        v_sub_u32 v{tmp}, v{tmp}, v{dst+p}
        v_mul_u32_u24 v{tmp2}, {stride}, v{tmp2}
        v_lshl_add_u32 v{dst+p}, v{tmp}, 4, v{tmp2}
        """)
        if p: a(f"v_add_u32 v{dst+p}, {-1024*p}, v{dst+p}")

def gen_k2(name="k2_kernel", st=False, lowat=(1, 1), rot_up=(0, 0), rot_dn=(0, 0), rot_kv=0, noffn=False, fprio=0, sprio=3, dprio=0, nomem=False, slp=1, sigat=(1, 0), sigw=4, ldsc=' sc1'):
    a = Asm()
    L = lambda s: f"{name}_{s}"
    HEAD, QB, W = 10, 11, 12
    SO = 16
    stamp(a, 0, st)
    a(f"""
    s_load_dwordx2 s[8:9], s[0:1], 72
    s_load_dwordx4 s[52:55], s[0:1], 32
    s_load_dwordx2 s[56:57], s[0:1], 48
    s_load_dwordx2 s[92:93], s[0:1], 0
    s_load_dwordx2 s[94:95], s[0:1], 16
    s_load_dwordx2 s[96:97], s[0:1], 56
    s_cmp_ge_u32 s2, 256
    s_cbranch_scc1 {L('end')}
    v_lshrrev_b32 v1, 6, v0
    v_and_b32 v0, 63, v0
    s_mov_b32 s{SO+2}, {WS_USED}
    v_readfirstlane_b32 s{W}, v1
    s_mov_b32 s{SO+3}, 0x00020000
    s_cmp_ge_u32 s{W}, 8
    s_cbranch_scc1 {L('ffn')}
    """)
    KA, VA = 2, 3
    M = [4, 5]
    QM = [8, 16]; QT = [12, 20]
    KM = [24, 32]; KT = [28, 36]
    V = [40, 48]
    P = [56, 64]
    S = [72, 88]
    O = [104, 120]
    KD, VD, EP, SA, PA, PL, SG, SGA = 136, 137, 138, 139, 140, 141, 142, 143
    QG, KH, MODE, CNT = 24, 25, 26, 27
    a(f"""
    s_and_b32 s3, s2, 7
    s_lshl_b32 s3, s3, 2
    s_bfe_u32 s{HEAD}, s2, 0x20003
    s_add_u32 s{HEAD}, s{HEAD}, s3
    s_lshr_b32 s{QB}, s2, 5
    s_lshr_b32 s3, s{HEAD}, 1
    s_mul_i32 s3, s3, 5
    s_and_b32 s13, s{HEAD}, 1           ; odd
    s_mul_i32 s14, s13, 3
    s_add_u32 s20, s3, s14
    s_add_u32 s21, s20, 1
    s_add_u32 s22, s3, 2
    s_lshl_b32 s20, s20, 15
    s_lshl_b32 s21, s21, 15
    s_lshl_b32 s22, s22, 15
    s_and_b32 s{QG}, s{W}, 3
    s_lshr_b32 s{KH}, s{W}, 2
    s_cmp_eq_u32 s{QG}, 0
    s_cselect_b32 s32, s20, s21
    s_cmp_eq_u32 s{QG}, 2
    s_cselect_b32 s32, s22, s32
    s_lshl_b32 s3, s{KH}, 14
    s_add_u32 s32, s32, s3
    s_add_u32 s32, s32, {QK_OFF+QK_TYPE}
    s_lshl_b32 s3, s{KH}, 6
    s_add_u32 s3, s3, s{QG}
    s_mul_i32 s3, s3, 20480
    s_mul_i32 s33, s{HEAD}, 320
    s_add_u32 s33, s33, s3
    s_add_u32 s33, s33, {VT_OFF}
    s_lshl_b32 s34, s{KH}, 13
    s_lshl_b32 s3, s{QG}, 10
    s_add_u32 s34, s34, s3
    s_mul_i32 s35, s{QB}, {rot_kv*1024}
    s_and_b32 s35, s35, 0x3fff
    v_lshlrev_b32 v{KD}, 4, v0
    v_lshrrev_b32 v7, 5, v0             ; h
    v_mul_u32_u24 v{VD}, 10240, v7
    v_and_b32 v1, 31, v0
    v_lshl_add_u32 v{VD}, v1, 4, v{VD}
    s_lshl_b32 s28, s{QB}, 3
    s_lshl_b32 s3, s{QG}, 1
    s_add_u32 s28, s28, s3
    s_add_u32 s28, s28, s{KH}
    v_lshlrev_b32 v6, 3, v0
    s_waitcnt lgkmcnt(0)
    s_mov_b32 s{SO}, s8
    s_and_b32 s{SO+1}, s9, 0xffff
    """)
    nkv = [0]
    def kv_issue():
        t = f"kv{nkv[0]}"; nkv[0] += 1
        return [f"s_mul_i32 s36, s35, 80",
                f"s_add_u32 s36, s36, s33",
                f"s_add_u32 m0, s34, 3072",
                "s_mov_b32 exec_lo, 0x000fffff",
                "s_mov_b32 exec_hi, 0x000fffff",
                f"buffer_load_dwordx4 v{VD}, {sr(SO,4)}, s36 offen lds",
                "s_mov_b64 exec, -1",
                f"s_cmp_eq_u32 s{QG}, 3",
                f"s_cbranch_scc1 {L(t)}",
                "s_mov_b32 m0, s34",
                "s_add_u32 s36, s32, s35",
                f"buffer_load_dwordx4 v{KD}, {sr(SO,4)}, s36 offen lds",
                f"{L(t)}:",
                f"s_xor_b32 s34, s34, {KV_SLOT}",
                "s_add_u32 s35, s35, 1024",
                "s_and_b32 s35, s35, 0x3fff"]
    def fill_rows():
        t = S[0]
        a(f"""
        v_lshrrev_b32 v{t+4}, 4, v0
        v_lshlrev_b32 v{t+4}, 9, v{t+4}
        v_and_b32 v{t+5}, 15, v0
        v_min_u32 v{t+5}, 11, v{t+5}
        v_lshl_add_u32 v{t+4}, v{t+5}, 4, v{t+4}
        s_lshr_b32 s3, s{W}, 1
        s_lshl_b32 s3, s3, 13
        s_and_b32 s36, s{W}, 1
        s_lshl_b32 s36, s36, 11
        s_add_u32 s3, s3, s36
        v_add_u32 v{t+4}, s3, v{t+4}
        v_cmp_eq_u32 vcc, 0, v{t+5}
        v_mov_b32 v{t+6}, 0x3f803f80
        v_cndmask_b32 v{t}, 0, v{t+6}, vcc
        v_mov_b32 v{t+1}, v{t}
        v_mov_b32 v{t+2}, v{t}
        v_mov_b32 v{t+3}, v{t}
        ds_write_b128 v{t+4}, {vr(t,4)} offset:{3072+320}
        """)
    for x in kv_issue(): a(x)
    for i in range(2):
        a(f"""
        s_xor_b32 s3, s28, {i}
        s_lshl_b32 s3, s3, 9
        s_add_u32 s29, s3, s20
        s_add_u32 s30, s3, s21
        s_add_u32 s31, s3, s22
        buffer_load_dwordx2 {vr(QM[i],2)}, v6, {sr(SO,4)}, s29 offen
        buffer_load_dwordx2 {vr(QM[i]+2,2)}, v6, {sr(SO,4)}, s30 offen
        buffer_load_dwordx2 {vr(QT[i],2)}, v6, {sr(SO,4)}, s31 offen
        """)
    fill_rows()
    a(f"""
    s_lshl_b32 s3, s{KH}, 13
    v_add_u32 v{KA}, s3, v6
    v_add_u32 v{VA}, s3, v{KD}
    v_mov_b32 v{KT[0]+2}, 0x3f803f80
    v_mov_b32 v{KT[0]+3}, 0x3f80
    v_mov_b32 v{KT[1]+2}, 0x3f803f80
    v_mov_b32 v{KT[1]+3}, 0x3f80
    v_mov_b32 v{EP}, 0
    s_lshl_b32 s3, s{W}, 2
    s_add_u32 s3, s3, {SYNC}
    v_mov_b32 v{SA}, s3
    v_and_b32 v{PA}, 7, v0
    v_lshlrev_b32 v{PA}, 2, v{PA}
    v_add_u32 v{PA}, {SYNC}, v{PA}
    ds_write_b32 v{SA}, v{EP}
    v_mov_b32 v{SG}, 0
    s_cmp_eq_u32 s{W}, {sigw}
    s_cselect_b32 s3, 52, 56
    s_add_u32 s3, s3, {SYNC}
    v_mov_b32 v{SGA}, s3
    ds_write_b32 v{SGA}, v{SG}
    v_cmp_eq_u32 vcc, s13, v7
    s_mov_b32 s{MODE}, 0
    s_waitcnt vmcnt(0) lgkmcnt(0)
    """)
    stamp(a, 1, st)
    a("s_barrier")
    stamp(a, 2, st)
    def rdK(b, t):
        return [f"ds_read2st64_b64 {vr(KM[b],4)}, v{KA} offset0:{t} offset1:{2+t}",
                f"ds_read_b64 {vr(KT[b],2)}, v{KA} offset:{(4+t)*512}"]
    def rdV(b, t):
        return [f"ds_read_b128 {vr(V[b],4)}, v{VA} offset:{3072+t*2048}",
                f"ds_read_b128 {vr(V[b]+4,4)}, v{VA} offset:{3072+t*2048+1024}"]
    def qk(kb, q):
        return [f"v_mfma_f32_32x32x16_bf16 {vr(S[q],16)}, {vr(KM[kb],4)}, {vr(QM[q],4)}, 0",
                f"v_mfma_f32_32x32x16_bf16 {vr(S[q],16)}, {vr(KT[kb],4)}, {vr(QT[q],4)}, {vr(S[q],16)}"]
    def pv(vb, q):
        return [f"v_mfma_f32_32x32x16_bf16 {vr(O[q],16)}, {vr(V[vb],4)}, {vr(P[q],4)}, {vr(O[q],16)}",
                f"v_mfma_f32_32x32x16_bf16 {vr(O[q],16)}, {vr(V[vb]+4,4)}, {vr(P[q]+4,4)}, {vr(O[q],16)}"]
    def rowmax(q, dst, init):
        s = S[q]
        if init:
            a(f"v_max3_f32 v{dst}, v{s}, v{s+1}, v{s+2}"); rest = list(range(3, 16))
        else:
            rest = list(range(16))
        while len(rest) >= 2:
            a(f"v_max3_f32 v{dst}, v{dst}, v{s+rest[0]}, v{s+rest[1]}"); rest = rest[2:]
        if rest: a(f"v_max_f32 v{dst}, v{dst}, v{s+rest[0]}")
    def set_shift():
        a("v_cmp_eq_u32 vcc, 0, v7")
        for i in range(2):
            a(f"""
            v_mov_b32 v1, v{M[i]}
            v_permlane32_swap_b32 v{M[i]}, v1
            v_max_f32 v{M[i]}, v{M[i]}, v1
            v_sub_f32 v1, 0, v{M[i]}
            v_and_b32 v6, 0xffff0000, v1
            v_sub_f32 v1, v1, v6
            v_and_b32 v{P[0]}, 0xffff0000, v1
            v_sub_f32 v1, v1, v{P[0]}
            v_lshrrev_b32 v6, 16, v6
            v_or_b32 v6, v6, v{P[0]}
            v_lshrrev_b32 v1, 16, v1
            v_cndmask_b32 v{QT[i]+2}, 0, v6, vcc
            v_cndmask_b32 v{QT[i]+3}, 0, v1, vcc
            """)
    nsb = [0]
    def arrive():
        return [f"v_add_u32 v{EP}, 1, v{EP}", f"ds_write_b32 v{SA}, v{EP}", f"ds_read_b32 v{PL}, v{PA}"]
    spins = []
    def check():
        t = f"sb{nsb[0]}"; nsb[0] += 1
        spins.append(t)
        return ["s_waitcnt lgkmcnt(0)", f"v_cmp_lt_u32 vcc, v{PL}, v{EP}", f"s_cbranch_vccnz {L(t+'s')}", f"{L(t+'r')}:"]
    def swbar():
        for x in arrive() + check(): a(x)
    a("s_setprio 2")
    for x in rdK(0, 0): a(x)
    for x in kv_issue(): a(x)
    for i in range(2):
        a(f"""
        v_cndmask_b32 v{QT[i]}, 0, v{QT[i]}, vcc
        v_cndmask_b32 v{QT[i]+1}, 0, v{QT[i]+1}, vcc
        v_mov_b32 v{QT[i]+2}, 0
        v_mov_b32 v{QT[i]+3}, 0
        """)
    a("s_waitcnt lgkmcnt(0)")
    for x in qk(0, 0) + qk(0, 1): a(x)
    def zero_state():
        for i in range(16):
            a(f"v_mov_b32 v{O[0]+i}, 0"); a(f"v_mov_b32 v{O[1]+i}, 0")
    zero_state()
    rowmax(0, M[0], True); rowmax(1, M[1], True)
    set_shift()
    a.label(L("restart"))
    for x in rdK(1, 1) + rdV(0, 0): a(x)
    for x in qk(0, 0): a(x)
    for i in range(8):
        a(f"v_mov_b32 v{P[1]+i}, 0"); a(f"v_mov_b32 v{V[1]+i}, 0")
    a(f"s_mov_b32 s{CNT}, 16")
    def phase(q, mf, extra=None, pre=None):
        extra = extra or {}
        for g in range(4):
            if pre and g in pre:
                for x in pre[g]: a(x)
            a(mf[g])
            for x in extra.get(g, []): a(x)
            for i in range(4): a(f"v_exp_f32 v{S[q]+4*g+i}, v{S[q]+4*g+i}")
            for i in range(2): a(f"v_cvt_pk_bf16_f32 v{P[q]+2*g+i}, v{S[q]+4*g+2*i}, v{S[q]+4*g+2*i+1}")
    a(".p2align 6")
    a.label(L("loop"))
    pres = [{}, {0: ["s_waitcnt lgkmcnt(0)"]}]
    exs = [{}, {0: rdV(1, 1)}]
    if lowat: pres[lowat[0]].setdefault(lowat[1], []).insert(0, "s_setprio 1")
    exs[sigat[0]].setdefault(sigat[1], []).extend([f"v_add_u32 v{SG}, 1, v{SG}", f"ds_write_b32 v{SGA}, v{SG}"])
    phase(0, qk(0, 1) + pv(1, 1), pre=pres[0], extra=exs[0])
    phase(1, qk(1, 0) + pv(0, 0), pre=pres[1], extra=exs[1])
    skipkv = [f"s_cmp_le_u32 s{CNT}, 2", f"s_cbranch_scc1 {L('nokv')}"] + kv_issue() + [f"{L('nokv')}:"]
    phase(0, qk(1, 1) + pv(0, 1),
          pre={0: ["s_waitcnt vmcnt(0) lgkmcnt(0)", "s_barrier", "s_setprio 2", f"v_xor_b32 v{KA}, {KV_SLOT}, v{KA}", f"v_xor_b32 v{VA}, {KV_SLOT}, v{VA}"]},
          extra={0: rdK(0, 0), 1: skipkv})
    phase(1, qk(0, 0) + pv(1, 0), pre={0: ["s_waitcnt lgkmcnt(0)"]}, extra={0: rdK(1, 1), 1: rdV(0, 0)})
    a(f"""
    s_sub_u32 s{CNT}, s{CNT}, 1
    s_cmp_lg_u32 s{CNT}, 0
    s_cbranch_scc1 {L('loop')}
    """)
    for x in pv(1, 1): a(x)
    stamp(a, 3, st)
    a(f"""
    s_lshl_b32 s3, s{W}, 12
    v_add_u32 v6, s3, v{KD}
    v_mov_b32 v1, 0x5d800000
    s_lshl_b32 s3, s28, 5
    s_add_u32 s3, s3, s{HEAD}
    s_lshl_b32 s29, s3, 10
    s_add_u32 s29, s29, {OM_OFF}
    s_lshl_b32 s37, s3, 8
    s_add_u32 s37, s37, {OT_OFF}
    s_lshl_b32 s38, s3, 2
    s_add_u32 s38, s38, {OFL_OFF}
    s_waitcnt lgkmcnt(0)
    v_cmp_nle_f32 vcc, v{O[0]+8}, v1
    v_cmp_nle_f32 s[30:31], v{O[1]+8}, v1
    ds_write_b128 v6, {vr(O[1],4)} offset:{EX_OFF}
    ds_write_b128 v6, {vr(O[1]+4,4)} offset:{EX_OFF+1024}
    ds_write_b128 v6, {vr(O[1]+8,4)} offset:{EX_OFF+2048}
    ds_write_b32 v6, v{M[1]} offset:{EX_OFF+3072}
    s_or_b32 s30, s31, vcc_hi
    v_mov_b32 v1, {SYNC+48}
    s_cmp_eq_u32 s30, 0
    s_cbranch_scc1 {L('noflag')}
    v_mov_b32 v{P[0]}, 1
    ds_write_b32 v1, v{P[0]}
    """)
    a.label(L("noflag"))
    swbar()
    a(f"""
    ds_read_b32 v1, v1
    v_xor_b32 v6, 0x4000, v6
    ds_read_b32 v{S[0]+12}, v6 offset:{EX_OFF+3072}
    ds_read_b128 {vr(S[0]+8,4)}, v6 offset:{EX_OFF+2048}
    ds_read_b128 {vr(S[0],4)}, v6 offset:{EX_OFF}
    ds_read_b128 {vr(S[0]+4,4)}, v6 offset:{EX_OFF+1024}
    s_waitcnt lgkmcnt(3)
    v_readfirstlane_b32 s30, v1
    v_max_f32 v1, v{M[0]}, v{S[0]+12}
    v_sub_f32 v{P[0]}, v{M[0]}, v1
    v_sub_f32 v{P[0]+1}, v{S[0]+12}, v1
    s_andn2_b32 s30, s30, s{MODE}
    s_cmp_lg_u32 s30, 0
    s_cbranch_scc1 {L('slow')}
    v_exp_f32 v{P[0]}, v{P[0]}
    v_exp_f32 v{P[0]+1}, v{P[0]+1}
    s_waitcnt lgkmcnt(2)
    v_mul_f32 v1, v{O[0]+8}, v{P[0]}
    v_fmac_f32 v1, v{S[0]+8}, v{P[0]+1}
    v_mov_b32 v6, v1
    v_permlane32_swap_b32 v1, v6
    v_rcp_f32 v6, v6
    v_lshlrev_b32 v1, 3, v0
    v_mul_f32 v{P[0]}, v{P[0]}, v6
    v_mul_f32 v{P[0]+1}, v{P[0]+1}, v6
    s_waitcnt lgkmcnt(0)
    """)
    for i in range(12): a(f"v_mul_f32 v{O[0]+i}, v{O[0]+i}, v{P[0]}")
    for i in range(12): a(f"v_fmac_f32 v{O[0]+i}, v{S[0]+i}, v{P[0]+1}")
    for i in range(6):
        a(f"v_cvt_pk_bf16_f32 v{S[1]+i}, v{O[0]+2*i}, v{O[0]+2*i+1}")
    a(f"""
    buffer_store_dwordx4 {vr(S[1],4)}, v{KD}, {sr(SO,4)}, s29 offen sc1
    s_mov_b32 exec_hi, 0
    buffer_store_dwordx2 {vr(S[1]+4,2)}, v1, {sr(SO,4)}, s37 offen sc1
    v_mov_b32 v{P[0]}, 1
    s_mov_b64 exec, 1
    """)
    stamp(a, 4, st)
    a(f"""
    s_waitcnt vmcnt(0)
    buffer_store_dword v{P[0]}, v1, {sr(SO,4)}, s38 offen sc1
    s_mov_b64 exec, -1
    """)
    stamp(a, 5, st)
    stamp_flush(a, 6, st, W, SO)
    a("s_endpgm")
    a.label(L("slow"))
    a(f"""
    s_mov_b32 s{MODE}, 1
    s_waitcnt lgkmcnt(0)
    """)
    swbar()
    fill_rows()
    for i in range(2):
        a(f"v_mov_b32 v{QT[i]+2}, 0"); a(f"v_mov_b32 v{QT[i]+3}, 0"); a(f"v_mov_b32 v{M[i]}, 0xff800000")
    for x in kv_issue(): a(x)
    a(f"s_mov_b32 s{CNT}, 16")
    a.label(L("maxloop"))
    a("s_waitcnt vmcnt(0) lgkmcnt(0)")
    swbar()
    for x in kv_issue(): a(x)
    for x in rdK(0, 0) + rdK(1, 1): a(x)
    a(f"v_xor_b32 v{KA}, {KV_SLOT}, v{KA}")
    a("s_waitcnt lgkmcnt(0)")
    for t in range(2):
        for x in qk(t, 0) + qk(t, 1): a(x)
        rowmax(0, M[0], False); rowmax(1, M[1], False)
    a(f"""
    s_sub_u32 s{CNT}, s{CNT}, 1
    s_cmp_lg_u32 s{CNT}, 0
    s_cbranch_scc1 {L('maxloop')}
    """)
    set_shift()
    zero_state()
    a("s_waitcnt vmcnt(0)")
    swbar()
    for x in kv_issue(): a(x)
    for x in rdK(0, 0): a(x)
    a("s_waitcnt lgkmcnt(0)")
    a(f"s_branch {L('restart')}")
    for t in spins:
        a.label(L(t + "s"))
        a(f"""
        s_sleep {slp}
        ds_read_b32 v{PL}, v{PA}
        s_waitcnt lgkmcnt(0)
        v_cmp_lt_u32 vcc, v{PL}, v{EP}
        s_nop 1
        s_cbranch_vccnz {L(t+'s')}
        s_branch {L(t+'r')}
        """)
    a.label(L("ffn"))
    vm = VM(a)
    LW = 24
    SWU, SXN, SW2 = 40, 44, 48
    TB, FBK, TK, CB = 4, 5, 6, 7
    UP = 5; DN = 8
    XA, WA, HA, W2A, H2, FEP, FSA, FPA, FPL, JA, JV = 13, 14, 15, 16, 17, 18, 19, 20, 21, 22, 23
    NB = 59
    FBUF = [24, 44]
    ACC = 64
    a(f"""
    s_setprio 3
    s_sub_u32 s{LW}, s{W}, 8
    s_lshr_b32 s25, s{LW}, 1
    s_and_b32 s26, s{LW}, 1
    v_lshlrev_b32 v2, 4, v0             ; lane*16
    v_lshrrev_b32 v1, 5, v0             ; h
    v_and_b32 v4, 31, v0
    """)
    row192(a, UP, 3072, 11, 12)
    a(f"""
    s_and_b32 s3, s2, 1
    s_lshl_b32 s3, s3, 3
    s_bfe_u32 s{TB}, s2, 0x30003
    s_add_u32 s{TB}, s{TB}, s3           ; tb
    s_bfe_u32 s3, s2, 0x20001
    s_lshl_b32 s3, s3, 2
    s_lshr_b32 s{FBK}, s2, 6
    s_add_u32 s{FBK}, s{FBK}, s3         ; fb
    s_lshl_b32 s28, s{TB}, 2
    s_add_u32 s28, s28, s{LW}
    s_mul_i32 s28, s28, 40960
    s_add_u32 s28, s28, {XN_OFF}
    s_add_u32 s29, s28, 40960
    s_mul_i32 s30, s{FBK}, 192
    s_mul_i32 s3, s25, {2*16*3072}
    s_add_u32 s30, s30, s3
    s_bfe_u32 s3, s2, 0x30003
    s_mul_i32 s3, s3, {rot_up[0]}
    s_lshr_b32 s31, s2, 6
    s_mul_i32 s31, s31, {rot_up[1]}
    s_add_u32 s31, s31, s3
    s_cmp_ge_u32 s31, 10
    s_cselect_b32 s3, 10, 0
    s_sub_u32 s31, s31, s3
    s_cmp_ge_u32 s31, 10
    s_cselect_b32 s3, 10, 0
    s_sub_u32 s31, s31, s3
    s_lshl_b32 s36, s31, 12
    s_add_u32 s36, s36, s28
    s_mul_i32 s37, s31, {64*3072}
    s_add_u32 s37, s37, s30              ; W cursor
    s_lshl_b32 s38, s{LW}, 12
    s_add_u32 s38, s38, {FB}
    s_mul_i32 s39, s26, {UW3D}
    s_mul_i32 s3, s25, 6144
    s_add_u32 s39, s39, s3
    s_add_u32 s39, s39, {FB+UW1}
    s_mov_b32 s23, 0
    s_waitcnt lgkmcnt(0)
    s_mov_b32 s{SO}, s8
    s_and_b32 s{SO+1}, s9, 0xffff
    s_cmp_eq_u32 s26, 0
    s_cselect_b32 s{SWU}, s52, s54
    s_cselect_b32 s{SWU+1}, s53, s55
    s_and_b32 s{SWU+1}, s{SWU+1}, 0xffff
    s_mov_b32 s{SWU+2}, {0 if nomem else 640*3072}
    s_mov_b32 s{SWU+3}, 0x00020000
    """)
    srd(a, SXN, 8, 0 if nomem else WS_USED)
    def f_dmas(tag):
        g = []
        for k in range(2):
            for p in range(3):
                it = [(tag, f"buffer_load_dwordx4 v{UP+p}, {sr(SWU,4)}, s{37 if k == 0 else 58} offen offset:{p*1024} lds")]
                if p == 0:
                    it = ([f"s_add_u32 m0, s39, s23"] if k == 0 else [f"s_add_u32 m0, m0, 3072", f"s_add_u32 s58, s37, {16*3072}"]) + it
                g.append(it)
        for ks in range(4):
            it = [(tag, f"buffer_load_dwordx4 v2, {sr(SXN,4)}, s36 offen offset:{ks*1024} lds")]
            if ks == 0: it = ["s_add_u32 m0, s38, s23"] + it
            g.append(it)
        g[-1] = g[-1] + ["s_add_u32 s36, s36, 4096", f"s_add_u32 s37, s37, {64*3072}", "s_cmp_eq_u32 s36, s29",
                         "s_cselect_b32 s36, s28, s36", "s_cselect_b32 s37, s30, s37",
                         f"s_add_u32 s23, s23, {USLOT}", f"s_cmp_eq_u32 s23, {3*USLOT}", "s_cselect_b32 s23, 0, s23"]
        return g
    def emit_group(grp, track=True):
        for x in grp:
            if isinstance(x, tuple):
                if track: vm.issue(x[1], x[0])
                else: a(x[1])
            else: a(x)
    if noffn:
        a(f"v_mov_b32 v11, {SYNC+48}"); a("v_mov_b32 v12, 0"); a("ds_write_b32 v11, v12"); a("s_waitcnt lgkmcnt(0)"); a("s_barrier"); a("s_endpgm")
    g0 = f_dmas("f0")
    for g in g0[:3]: emit_group(g)
    a(f"""
    v_mov_b32 v{FEP}, 0
    s_lshl_b32 s3, s{LW}, 2
    s_add_u32 s3, s3, {SYNC+32}
    v_mov_b32 v{FSA}, s3
    v_and_b32 v{FPA}, 3, v0
    v_lshlrev_b32 v{FPA}, 2, v{FPA}
    v_add_u32 v{FPA}, {SYNC+32}, v{FPA}
    ds_write_b32 v{FSA}, v{FEP}
    v_mov_b32 v11, {SYNC+48}
    ds_write_b32 v11, v{FEP}
    """)
    srd(a, SW2, 56, 0 if nomem else 1536 * 1280)
    row192(a, DN, 1280, 11, 12)
    a(f"""
    s_lshl_b32 s3, s25, 13
    s_add_u32 s3, s3, {FB}
    v_add_u32 v{XA}, s3, v2
    v_bfe_u32 v11, v0, 2, 2              ; r
    v_lshl_add_u32 v12, v1, 3, v11       ; 8h+r
    v_mul_u32_u24 v12, 192, v12
    v_and_b32 v22, 3, v0
    v_lshl_add_u32 v12, v22, 3, v12
    v_bfe_u32 v23, v0, 4, 1              ; m
    v_mul_u32_u24 v3, {UW3D}, v23
    v_add_u32 v12, v12, v3
    s_mul_i32 s3, s26, 96
    s_add_u32 s3, s3, {FB+UW1}
    v_add_u32 v{WA}, s3, v12
    s_mul_i32 s15, s{LW}, 30720
    s_add_u32 s15, s15, {FB}
    v_add_u32 v{HA}, s15, v2
    v_lshl_add_u32 v12, v1, 2, v11       ; 4h+r
    v_mul_u32_u24 v12, 192, v12
    v_lshl_add_u32 v12, v22, 3, v12
    v_lshl_add_u32 v12, v23, 5, v12
    v_add_u32 v{W2A}, s15, v12
    v_add_u32 v{H2}, {96*1024-1024}, v2
    s_mov_b32 s14, 0
    """)
    for i in range(96): a(f"v_mov_b32 v{ACC+i}, 0")
    a("s_waitcnt lgkmcnt(0)")
    a("s_barrier")
    for g in g0[3:]: emit_group(g)
    for g in f_dmas("f1"): emit_group(g)
    fspins = []
    def farrive(o=0):
        return [f"v_add_u32 v{FEP+o}, 1, v{FEP+o}", f"ds_write_b32 v{FSA+o}, v{FEP+o}", f"ds_read_b32 v{FPL+o}, v{FPA+o}"]
    def fcheck(o=0):
        t = f"fb{len(fspins)}"; fspins.append((t, o))
        return ["s_waitcnt lgkmcnt(0)", f"v_cmp_lt_u32 vcc, v{FPL+o}, v{FEP+o}", f"s_cbranch_vccnz {L(t+'s')}", f"{L(t+'r')}:"]
    njoin = [0]
    def jread(o=0): return [f"ds_read_b32 v{JV+o}, v{JA+o}"]
    def jtest(o=0):
        t = f"j{njoin[0]}"; njoin[0] += 1
        return [f"v_cmp_lt_u32 vcc, s{NB}, v{JV+o}", f"s_cbranch_vccz {L(t)}", "s_barrier", f"s_add_u32 s{NB}, s{NB}, 1", f"{L(t)}:"]
    a(f"v_mov_b32 v{JA}, {SYNC+52}")
    a(f"s_mov_b32 s{NB}, 11")
    vm.wait("f0")
    stamp(a, 1, st)
    a("s_barrier")
    a(f"s_setprio {fprio}")
    def up_reads(b, ks):
        f = FBUF[b]; out = []
        out.append(f"ds_read_b128 {vr(f,4)}, v{XA} offset:{ks*1024}")
        for ft in range(3):
            for half in range(2):
                out.append(f"ds_read_b64_tr_b16 {vr(f+8+4*ft+2*half,2)}, v{WA} offset:{ks*3072 + half*768 + ft*32}")
            if ft == 0: out.append(f"ds_read_b128 {vr(f+4,4)}, v{XA} offset:{4096+ks*1024}")
        return out
    def mfmas(b, first=False):
        f = FBUF[b]; out = []
        for ft in range(3):
            for tt in range(2):
                acc = ACC + 16 * (ft * 2 + tt)
                c = "0" if first else vr(acc, 16)
                out.append(f"v_mfma_f32_32x32x16_bf16 {vr(acc,16)}, {vr(f+8+4*ft,4)}, {vr(f+4*tt,4)}, {c}")
        return out
    def kstep(b, nxt, groups, track, first=False, ng=4, join=False):
        a("s_waitcnt lgkmcnt(0)")
        m = mfmas(b, first)
        for i in range(6):
            a(m[i])
            if join and i == 0:
                for x in jtest(): a(x)
            if join and i == 5:
                for x in jread(): a(x)
            if i < 4:
                for x in nxt[2*i:2*i+2]: a(x)
            if i >= 6 - ng and groups: emit_group(groups.pop(0), track)
    for x in up_reads(0, 0): a(x)
    a("s_mov_b32 s13, 10")
    a(".p2align 6")
    a.label(L("uploop"))
    a(f"""
    s_cmp_le_u32 s13, 2
    s_cselect_b32 s{SWU+2}, 0, s{SWU+2}
    s_cselect_b32 s{SXN+2}, 0, s{SXN+2}
    """)
    groups = f_dmas("f")
    for ks in range(3): kstep(ks % 2, up_reads((ks + 1) % 2, ks + 1), groups, False, ng=(4, 3, 3)[ks])
    assert not groups
    m = mfmas(1)
    a(f"""
    s_add_u32 s3, s14, {USLOT}
    s_cmp_eq_u32 s3, {3*USLOT}
    s_cselect_b32 s3, 0, s3
    s_sub_u32 s27, s3, s14
    s_mov_b32 s14, s3
    v_add_u32 v{XA}, s27, v{XA}
    v_add_u32 v{WA}, s27, v{WA}
    s_waitcnt vmcnt(10) lgkmcnt(0)
    s_barrier
    """)
    nx = up_reads(0, 0)
    for i in range(6):
        a(m[i])
        for x in nx[2*i:2*i+2]: a(x)
    a(f"""
    s_sub_u32 s13, s13, 1
    s_cmp_lg_u32 s13, 0
    s_cbranch_scc1 {L('uploop')}
    """)
    stamp(a, 2, st)
    a(f"""
    s_setprio {sprio}
    s_mov_b32 s{SWU}, {f2u(-1.4426950408889634):#x}
    s_lshl_b32 s3, s{TB}, 2
    s_lshl_b32 s36, s25, 1
    s_add_u32 s3, s3, s36
    s_mul_i32 s36, s3, 96                ; toktile*96
    s_mul_i32 s3, s{FBK}, 6
    s_add_u32 s36, s36, s3
    s_mul_i32 s3, s26, 3
    s_add_u32 s36, s36, s3
    s_lshl_b32 s36, s36, 10
    s_add_u32 s36, s36, {H_OFF}
    s_add_u32 s37, s36, {96*1024}
    s_waitcnt lgkmcnt(0)
    """)
    vm.q = ["z"] * 10
    for ft in range(3):
        for tt in range(2):
            n = ft * 2 + tt
            g = ACC + 16 * n; u = g + 8
            T = 24 + 8 * (n % 2)
            for x in jread(): a(x)
            for i in range(8): a(f"v_mul_f32 v{T+i}, s{SWU}, v{g+i}")
            for i in range(8): a(f"v_exp_f32 v{T+i}, v{T+i}")
            for i in range(8): a(f"v_mul_f32 v{g+i}, v{g+i}, v{u+i}")
            for i in range(8): a(f"v_add_f32 v{T+i}, 1.0, v{T+i}")
            for i in range(8): a(f"v_rcp_f32 v{T+i}, v{T+i}")
            for i in range(8): a(f"v_mul_f32 v{g+i}, v{g+i}, v{T+i}")
            for i in range(4): a(f"v_cvt_pk_bf16_f32 v{u+i}, v{g+2*i}, v{g+2*i+1}")
            vm.issue(f"buffer_store_dwordx4 {vr(u,4)}, v2, {sr(SO,4)}, s{36+tt} offen offset:{ft*1024} sc1", "hs")
            a("s_waitcnt lgkmcnt(0)")
            for x in jtest(): a(x)
    stamp(a, 3, st)
    vm.wait("z")
    for x in farrive(): a(x)
    a(f"""
    s_lshl_b32 s3, s{TB}, 4
    s_add_u32 s3, s3, s{FBK}
    s_lshl_b32 s3, s3, 2
    s_add_u32 s3, s3, s{LW}
    s_lshl_b32 s3, s3, 2
    s_add_u32 s55, s3, {FLG_OFF}
    v_mov_b32 v11, 0
    v_mov_b32 v12, 1
    s_lshr_b32 s3, s2, 3
    s_cmp_ge_u32 s3, 28
    s_cselect_b32 s{SW2+2}, 0, s{SW2+2}
    s_lshr_b32 s{CB}, s3, 2
    s_and_b32 s3, s3, 3
    s_and_b32 s{TK}, s2, 7
    s_lshl_b32 s{TK}, s{TK}, 2
    s_add_u32 s{TK}, s{TK}, s3
    s_mul_i32 s30, s{LW}, {24*16*1280}
    s_mul_i32 s3, s{CB}, 192
    s_add_u32 s30, s30, s3
    s_add_u32 s31, s30, {24*16*1280}
    s_mul_i32 s28, s{TK}, 192
    s_mul_i32 s3, s{LW}, 24
    s_add_u32 s28, s28, s3
    s_lshl_b32 s28, s28, 10
    s_add_u32 s28, s28, {H_OFF}
    s_add_u32 s29, s28, {24*1024}
    s_mul_i32 s56, s{CB}, {rot_dn[0]}
    s_and_b32 s3, s{TK}, 3
    s_mul_i32 s3, s3, {rot_dn[1]}
    s_add_u32 s56, s56, s3
    s_cmp_ge_u32 s56, 24
    s_cselect_b32 s3, 24, 0
    s_sub_u32 s56, s56, s3
    s_lshl_b32 s36, s56, 10
    s_add_u32 s36, s36, s28              ; h cursor
    s_mul_i32 s37, s56, {16*1280}
    s_add_u32 s37, s37, s30              ; w2 cursor
    s_lshr_b32 s3, s{TK}, 1
    s_lshl_b32 s3, s3, 8
    s_lshl_b32 s39, s{LW}, 6
    s_add_u32 s39, s39, s3
    s_add_u32 s39, s39, {FLG_OFF}
    """)
    for x in fcheck(): a(x)
    def w2_groups(j, adv=True):
        o = (j % 6) * 5120; g = []
        for p in range(3):
            it = [(f"d{j}", f"buffer_load_dwordx4 v{DN+p}, {sr(SW2,4)}, s37 offen offset:{p*1024} lds")]
            if p == 0: it = [f"s_add_u32 m0, s15, {o}"] + it
            if p == 2 and adv: it += [f"s_add_u32 s37, s37, {16*1280}", "s_cmp_eq_u32 s37, s31", "s_cselect_b32 s37, s30, s37"]
            g.append(it)
        return g
    def h_groups(j, both=False):
        o = (j % 6) * 5120 + 3072
        adv = ["s_add_u32 s36, s36, 1024", "s_cmp_eq_u32 s36, s29", "s_cselect_b32 s36, s28, s36"]
        if both: adv = [f"s_add_u32 s37, s37, {16*1280}"] + adv + ["s_cselect_b32 s37, s30, s37"]
        return [[f"s_add_u32 m0, s15, {o}", (f"d{j}", f"buffer_load_dwordx4 v2, {sr(SO,4)}, s36 offen{ldsc} lds")],
                [(f"d{j}", f"buffer_load_dwordx4 v{H2}, {sr(SO,4)}, s36 offen offset:1024{ldsc} lds")] + adv]
    for j in range(2):
        for gg in w2_groups(j): emit_group(gg)
    for x in jread() + ["s_waitcnt lgkmcnt(0)"] + jtest(): a(x)
    vm.wait("hs")
    a("s_mov_b64 exec, 1")
    vm.issue(f"buffer_store_dword v12, v11, {sr(SO,4)}, s55 offen sc1", "fl")
    a("s_mov_b64 exec, -1")
    stamp(a, 4, st)
    a(f"""
    s_lshr_b32 s3, s2, 3
    s_cmp_ge_u32 s3, 28
    s_cbranch_scc1 {L('end')}
    """)
    for j in range(2, 6):
        for x in jread() + ["s_waitcnt lgkmcnt(0)"] + jtest(): a(x)
        for gg in w2_groups(j): emit_group(gg)
    def poll(tag, voff, soff):
        a(f"s_mov_b32 s13, 0x100000")
        a.label(L("poll" + tag))
        a(f"""
        buffer_load_dword v12, v{voff}, {sr(SO,4)}, s{soff} offen sc1
        s_sub_u32 s13, s13, 1
        s_cmp_eq_u32 s13, 0
        s_cbranch_scc1 {L('polled'+tag)}
        """)
        for x in jread() + ["s_waitcnt lgkmcnt(0)"] + jtest(): a(x)
        a(f"""
        s_waitcnt vmcnt(0)
        v_cmp_ne_u32 vcc, 1, v12
        s_nop 4
        s_cbranch_vccnz {L('poll'+tag)}
        """)
        a.label(L("polled" + tag))
        vm.wait_all()
    a(f"""
    v_and_b32 v11, 15, v0
    v_lshlrev_b32 v11, 2, v11
    """)
    srd(a, SXN, 94, 640 * 1280)
    a(f"""
    s_mul_i32 s38, s{LW}, {160*1280}
    s_mul_i32 s3, s{CB}, 192
    s_add_u32 s38, s38, s3
    """)
    stamp(a, 5, st)
    poll("h", 11, 39)
    stamp(a, 6, st)
    for j in range(6):
        for g in h_groups(j): emit_group(g)
    a(f"s_setprio {dprio}")
    def wo_groups(i):
        g = []
        for n in range(5 * i, 5 * i + 5):
            p = n % 3
            it = [(f"w{n}", f"buffer_load_dwordx4 v{DN+p}, {sr(SXN,4)}, s38 offen offset:{p*1024} lds")]
            if p == 0 or n == 5 * i: it = [f"s_add_u32 m0, s15, {(n-p)*1024}"] + it
            if p == 2: it.append(f"s_add_u32 s38, s38, {16*1280}")
            g.append(it)
        return g
    def dn_reads(b, j):
        f = FBUF[b]; o = (j % 6) * 5120; out = []
        out.append(f"ds_read_b128 {vr(f,4)}, v{HA} offset:{o+3072}")
        for ct in range(3):
            for half in range(2):
                out.append(f"ds_read_b64_tr_b16 {vr(f+8+4*ct+2*half,2)}, v{W2A} offset:{o + half*1536 + ct*64}")
            if ct == 0: out.append(f"ds_read_b128 {vr(f+4,4)}, v{HA} offset:{o+4096}")
        return out
    for x in jread() + ["s_waitcnt lgkmcnt(0)"] + jtest(): a(x)
    vm.wait("d0")
    stamp(a, 7, st)
    for x in dn_reads(0, 0) + jread(): a(x)
    for j in range(24):
        nxt = []
        if j + 1 < 24:
            vm.wait(f"d{j+1}")
            nxt = dn_reads((j + 1) % 2, j + 1)
        groups = (w2_groups(j + 6, adv=False) + h_groups(j + 6, both=True)) if j + 6 < 24 else wo_groups(j - 18)
        kstep(j % 2, nxt, groups, True, first=(j == 0), ng=5, join=True)
        if j in (5, 11, 17): stamp(a, 8 + (j - 5) // 6, st)
    stamp(a, 11, st)
    OW = 24
    WFR = [[8, 12, 16], [20, 160, 164]]
    a(f"""
    s_setprio 3
    v_mov_b32 v5, v{W2A}
    v_mul_u32_u24 v6, {36*192}, v1
    v_add_u32 v6, v6, v5
    v_lshlrev_b32 v7, 3, v4
    v_lshl_add_u32 v7, v1, 9, v7
    v_and_b32 v11, 7, v0
    v_lshlrev_b32 v11, 2, v11
    v_bfe_u32 v12, v0, 3, 1
    v_lshl_add_u32 v11, v12, 7, v11
    s_lshl_b32 s34, s{TK}, 6
    s_lshl_b32 s3, s{LW}, 3
    s_add_u32 s34, s34, s3               ; (tk*2)*32 + 8w
    s_lshl_b32 s39, s34, 2
    s_add_u32 s39, s39, {OFL_OFF}
    s_lshl_b32 s35, s34, 8
    s_add_u32 s35, s35, {OT_OFF}
    s_lshl_b32 s34, s34, 10
    s_add_u32 s34, s34, {OM_OFF}
    s_add_u32 s36, s34, 32768
    s_add_u32 s37, s35, 8192
    s_add_u32 s32, s34, 4096
    s_add_u32 s33, s36, 4096
    s_lshl_b32 s3, s{LW}, 6
    v_add_u32 v3, s3, v0
    s_mul_i32 s38, s{TK}, {64*1280}
    s_mul_i32 s3, s{CB}, 192
    s_add_u32 s38, s38, s3
    s_cmp_eq_u32 s{CB}, 6
    s_cselect_b32 s27, 8, 12
    """)
    srd(a, SWU, 92, 2048 * 1280)
    srd(a, SW2, 96, 2048 * 1280)
    poll("o", 11, 39)
    stamp(a, 12, st)
    steps = [("m", 0), ("m", 1), ("m", 2), ("m", 3), ("t", 0), ("m", 4), ("m", 5), ("m", 6), ("m", 7), ("t", 1)]
    def o_load(j):
        k, i = steps[j]; b = OW + 8 * (j % 5)
        if k == "m":
            for tt in range(2):
                so = (34, 36)[tt] if i < 4 else (32, 33)[tt]
                vm.issue(f"buffer_load_dwordx4 {vr(b+4*tt,4)}, v2, {sr(SO,4)}, s{so} offen offset:{(i%4)*1024}{ldsc}", f"o{j}")
        else:
            for tt in range(2):
                for q in range(2):
                    vm.issue(f"buffer_load_dwordx2 {vr(b+4*tt+2*q,2)}, v7, {sr(SO,4)}, s{(35,37)[tt]} offen offset:{i*1024+q*256}{ldsc}", f"o{j}")
    def wo_rd(j):
        k, i = steps[j]; out = []
        for ct in range(3):
            for half in range(2):
                if k == "m": ad, off = 5, 20 * i * 192 + half * 1536 + ct * 64
                else: ad, off = 6, (80 * i + 16 + 20 * half) * 192 + ct * 64
                out.append(f"ds_read_b64_tr_b16 {vr(WFR[j%2][ct]+2*half,2)}, v{ad} offset:{off}")
        return out
    for j in range(5): o_load(j)
    for x in wo_rd(0): a(x)
    GO, LO, LO2, WR = 40, 43, 46, 49
    for j in range(10):
        vm.wait(f"o{j}", extra="lgkmcnt(0)")
        nxt = wo_rd(j + 1) if j + 1 < 10 else []
        b = OW + 8 * (j % 5)
        n = 0
        for ct in range(3):
            for tt in range(2):
                acc = ACC + 16 * (ct * 2 + tt)
                a(f"v_mfma_f32_32x32x16_bf16 {vr(acc,16)}, {vr(WFR[j%2][ct],4)}, {vr(b+4*tt,4)}, {vr(acc,16)}")
                if n < 3:
                    for x in nxt[2*n:2*n+2]: a(x)
                n += 1
        if j + 5 < 10: o_load(j + 5)
        if j == 6:
            for n in range(3):
                a(f"""
                v_add_u32 v36, {256*n}, v3
                v_mul_u32_u24 v37, 0xaab, v36
                v_lshrrev_b32 v37, 15, v37           ; token
                v_mul_u32_u24 v38, 12, v37
                v_sub_u32 v36, v36, v38              ; g
                v_mul_u32_u24 v38, 1280, v37
                v_lshl_add_u32 v38, v36, 4, v38
                v_cmp_gt_u32 vcc, s27, v36
                v_mov_b32 v39, 0x7f000000
                v_cndmask_b32 v38, v39, v38, vcc
                """)
                vm.issue(f"buffer_load_dwordx4 {vr(24+4*n,4)}, v38, {sr(SWU,4)}, s38 offen", "x")
        if j == 8:
            for n in range(3):
                a(f"""
                v_add_u32 v36, {256*n}, v3
                v_mul_u32_u24 v37, 0xaab, v36
                v_lshrrev_b32 v37, 15, v37
                v_mul_u32_u24 v38, 12, v37
                v_sub_u32 v36, v36, v38
                v_mul_u32_u24 v38, 1280, v37
                v_lshl_add_u32 v{GO+n}, v36, 4, v38
                v_cmp_gt_u32 vcc, s27, v36
                v_mul_u32_u24 v38, 400, v37
                v_cndmask_b32 v{GO+n}, v39, v{GO+n}, vcc
                v_lshl_add_u32 v{LO+n}, v36, 5, v38
                v_add_u32 v{LO+n}, {FB}, v{LO+n}
                v_add_u32 v{LO2+n}, 61440, v{LO+n}
                """)
            a(f"""
            v_mul_u32_u24 v{WR}, 400, v4
            v_lshl_add_u32 v{WR}, v1, 4, v{WR}
            v_add_u32 v{WR}, s15, v{WR}
            v_mov_b32 v{FEP+32}, 1
            v_mov_b32 v{JA+32}, {SYNC+52}
            s_lshl_b32 s3, s{LW}, 2
            s_add_u32 s3, s3, {SYNC+32}
            v_mov_b32 v{FSA+32}, s3
            v_and_b32 v{FPA+32}, 3, v0
            v_lshlrev_b32 v{FPA+32}, 2, v{FPA+32}
            v_add_u32 v{FPA+32}, {SYNC+32}, v{FPA+32}
            """)
    stamp(a, 13, st)
    for ct in range(3):
        for tt in range(2):
            for j in range(4):
                a(f"ds_write_b128 v{WR}, {vr(ACC+16*(ct*2+tt)+4*j,4)} offset:{tt*12800 + ct*128 + j*32}")
    for x in farrive(32) + fcheck(32): a(x)
    for n in range(3):
        for w in range(4):
            ad = f"v{LO+n}" if w < 2 else f"v{LO2+n}"
            for hf in range(2):
                a(f"ds_read_b128 {vr(ACC+32*n+8*w+4*hf,4)}, {ad} offset:{(w%2)*30720 + hf*16}")
    vm.wait_all()
    for n in range(3):
        a(f"s_waitcnt lgkmcnt({min(15, 8*(2-n))})")
        b = ACC + 32 * n; x = 24 + 4 * n
        for i in range(0, 8, 2):
            a(f"v_pk_add_f32 {vr(b+i,2)}, {vr(b+i,2)}, {vr(b+8+i,2)}")
            a(f"v_pk_add_f32 {vr(b+16+i,2)}, {vr(b+16+i,2)}, {vr(b+24+i,2)}")
            a(f"v_lshlrev_b32 v{b+8+i}, 16, v{x+i//2}")
            a(f"v_and_b32 v{b+9+i}, 0xffff0000, v{x+i//2}")
            a(f"v_pk_add_f32 {vr(b+i,2)}, {vr(b+i,2)}, {vr(b+16+i,2)}")
            a(f"v_pk_add_f32 {vr(b+i,2)}, {vr(b+i,2)}, {vr(b+8+i,2)}")
            a(f"v_cvt_pk_bf16_f32 v{x+i//2}, v{b+i}, v{b+i+1}")
        a(f"buffer_store_dwordx4 {vr(x,4)}, v{GO+n}, {sr(SW2,4)}, s38 offen")
    stamp(a, 14, st)
    if st: a("s_waitcnt vmcnt(0)")
    stamp(a, 15, st)
    stamp_flush(a, 16, st, W, SO)
    a("s_endpgm")
    for t, o in fspins:
        a.label(L(t + "s"))
        a(f"""
        s_sleep 1
        ds_read_b32 v{FPL+o}, v{FPA+o}
        """)
        for x in jread(o) + ["s_waitcnt lgkmcnt(0)"] + jtest(o): a(x)
        a(f"""
        s_waitcnt lgkmcnt(0)
        v_cmp_lt_u32 vcc, v{FPL+o}, v{FEP+o}
        s_nop 1
        s_cbranch_vccnz {L(t+'s')}
        s_branch {L(t+'r')}
        """)
    a.label(L("end"))
    a("s_endpgm")
    return kernel_text(name, a.text(), 168, 100)

if __name__ == "__main__":
    print(gen_k2())
```

```python
QK_OFF = 0
QK_TYPE = 80 * 64 * 512
VT_OFF = QK_OFF + 2 * QK_TYPE
XN_OFF = VT_OFF + 128 * 2 * 640 * 16
H_OFF = XN_OFF + 64 * 40 * 1024
OM_OFF = H_OFF + 64 * 96 * 1024
OT_OFF = OM_OFF + 64 * 32 * 1024
PART_OFF = OT_OFF + 64 * 32 * 256
FLG_OFF = PART_OFF + 2048 * 672 * 4
OFL_OFF = FLG_OFF + 4096
FA_OFF = OFL_OFF + 8192
FQ_OFF = FA_OFF + 4096
STG_OFF = FQ_OFF + 4096
WS_USED = STG_OFF + 16384
QSCALE = (20 ** -0.5) * 1.4426950408889634
import struct
def f2u(x): return struct.unpack("<I", struct.pack("<f", x))[0]
```

```python
import sys
from build import *
from k1 import *
from k2 import *
def full(path, s1=False, s2=False, kw1={}, **kw2):
    build([("k1_kernel", 256, K1_THREADS, K1_LDS, gen_k1(st=s1, **kw1)), ("k2_kernel", 256, 768, K2_LDS, gen_k2(st=s2, **kw2))], path)
if __name__ == "__main__":
    full("t3.s", s2=True)
    full("t3r.s", s2="rt")
    full(f"cdna_kernels/{NAME}.s")
```

```python
from asmlib import *
from layout import *
from k1 import srd, stamp, stamp_flush
from k2 import row192

KV_SLOT = 16384
EX_OFF = 0
FB = 32768
USLOT = 41024
UW1 = 16384
UW3D = 12288 + 32
SYNC = FB + 3 * USLOT
ST_M = SYNC + 320
ST_CS = ST_M + 1024
LNP = ST_M + 1536
FK_LDS = LNP + 256
NONCE = 99

def gen_fk(name, st=False, lowat=(1, 1), fprio=0, sprio=3, dprio=0, slp=1, sigat=(1, 0), sigw=4, ldsc=' sc1', gprio=1, qslp=2, upst=False, qsc=' sc1', fpause=False, nopoll=False, pf=0, dq=3, ptry=3, pfw=False, epst=False, p1st=False, wprio=1, b11=True, rup=(0, 0), pf2=True, tcb=(True,), rp1=(5, 5, 1), hprio=3, lst=False):
    a = Asm()
    L = lambda s: f"{name}_{s}"
    rot_up = (0, 0); rot_dn = (0, 0); rot_kv = 0; nomem = False
    TB, CG, W = 10, 11, 12
    SO = 16
    stamp(a, 0, st or epst or p1st or lst)
    a(f"""
    s_load_dwordx4 s[4:7], s[0:1], 0
    s_load_dwordx4 s[92:95], s[0:1], 64
    s_cmp_ge_u32 s2, 256
    s_cbranch_scc1 {L('end')}
    v_lshrrev_b32 v1, 6, v0
    v_and_b32 v0, 63, v0
    s_and_b32 s3, s2, 3
    s_lshl_b32 s3, s3, 2
    v_readfirstlane_b32 s{W}, v1
    s_bfe_u32 s15, s2, 0x20003
    s_add_u32 s{TB}, s3, s15
    s_bfe_u32 s3, s2, 0x10002
    s_lshl_b32 s3, s3, 3
    s_lshr_b32 s{CG}, s2, 5
    s_add_u32 s{CG}, s{CG}, s3
    s_mov_b32 s{SO+2}, {WS_USED}
    s_mov_b32 s{SO+3}, 0x00020000
    s_cmp_lt_u32 s{W}, 4
    s_cbranch_scc1 {L('mfma')}
    s_cmp_lt_u32 s{W}, 8
    s_cbranch_scc1 {L('help')}
    """)
    def ws_srd():
        a(f"s_mov_b32 s{SO}, s94"); a(f"s_and_b32 s{SO+1}, s95, 0xffff")
    nsig = [0]
    def signal(cnt_off, n, soff, t0, issue=None):
        t = f"sg{nsig[0]}"; nsig[0] += 1
        a(f"""
        s_mov_b64 exec, 1
        v_mov_b32 v{t0}, {SYNC+cnt_off}
        v_mov_b32 v{t0+1}, 1
        ds_add_rtn_u32 v{t0+1}, v{t0}, v{t0+1}
        v_mov_b32 v{t0}, 0
        v_mov_b32 v{t0+2}, s{NONCE}
        s_waitcnt lgkmcnt(0)
        v_cmp_eq_u32 vcc, {n-1}, v{t0+1}
        s_cbranch_vccz {L(t)}
        """)
        a(f"buffer_store_dword v{t0+2}, v{t0}, {sr(SO,4)}, s{soff} offen sc1")
        a.label(L(t))
        a("s_mov_b64 exec, -1")
    def get_nonce(tmp):
        a(f"""
        v_mov_b32 v{tmp}, {SYNC+60}
        ds_read_b32 v{tmp}, v{tmp}
        s_waitcnt lgkmcnt(0)
        v_readfirstlane_b32 s{NONCE}, v{tmp}
        """)
    vm = VM(a)
    LW = 24
    SX, SW = 48, 20
    SWU, SXN, SW2 = 40, 44, 48
    TBU, FBK, TK, CB = 4, 5, 6, 7
    UP = 5; DN = 8
    XA, WA, HA, W2A, H2, FEP, FSA, FPA, FPL, JA, JV = 13, 14, 15, 16, 17, 18, 19, 20, 21, 22, 23
    NB = 59; DS = 57
    FBUF = [24, 44]
    ACC = 64
    LX, LWV = 160, 164
    a(f"""
    s_load_dwordx4 s[52:55], s[0:1], 32
    s_setprio 3
    s_sub_u32 s{LW}, s{W}, 8
    v_lshrrev_b32 v1, 3, v0             ; lane>>3
    v_lshrrev_b32 v2, 4, v0             ; lane>>4
    v_and_b32 v3, 7, v0
    v_xor_b32 v3, v3, v2
    s_lshl_b32 s3, s{TB}, 7
    s_lshl_b32 s29, s{LW}, 5
    s_add_u32 s3, s3, s29
    v_add_u32 v1, s3, v1
    v_mul_u32_u24 v1, 1280, v1
    v_lshl_add_u32 v{LX}, v3, 4, v1
    v_xor_b32 v3, 4, v3
    v_lshl_add_u32 v{LX+1}, v3, 4, v1
    v_add_u32 v{LX+1}, {8*1280-1024}, v{LX+1}
    v_add_u32 v{LX+2}, {16*1280-2048}, v{LX}
    v_add_u32 v{LX+3}, {16*1280-2048}, v{LX+1}
    s_lshl_b32 s3, s{LW}, 4
    v_add_u32 v1, s3, v2
    v_mul_u32_u24 v1, 3840, v1
    v_and_b32 v3, 15, v0
    v_lshlrev_b32 v2, 2, v2
    v_xor_b32 v3, v3, v2
    v_lshl_add_u32 v{LWV}, v3, 4, v1
    s_lshl_b32 s3, s{CG}, 8
    v_add_u32 v{LWV}, s3, v{LWV}
    v_add_u32 v{LWV+1}, {4*3840-1024}, v{LWV}
    v_add_u32 v{LWV+2}, {8*3840-2048}, v{LWV}
    v_add_u32 v{LWV+3}, {12*3840-3072}, v{LWV}
    s_lshl_b32 s34, s{LW}, 12
    s_mov_b32 s8, s34
    s_add_u32 s9, s34, 98304
    s_lshr_b32 s3, s2, 5
    s_mul_i32 s3, s3, {rp1[0]}
    s_mul_i32 s32, s15, {rp1[1]}
    s_add_u32 s32, s32, s3
    s_and_b32 s3, s2, 7
    s_mul_i32 s3, s3, {rp1[2]}
    s_add_u32 s32, s32, s3
    s_mul_i32 s3, s32, 205
    s_lshr_b32 s3, s3, 11
    s_mul_i32 s3, s3, 10
    s_sub_u32 s32, s32, s3
    s_mul_i32 s33, s32, {64*3840}
    s_lshl_b32 s32, s32, 7
    s_waitcnt lgkmcnt(0)
    """)
    srd(a, SX, 4, 2048 * 1280)
    srd(a, SW, 6, 640 * 3840)
    a(f"""
    s_cmp_eq_u32 s{CG}, 15
    s_cselect_b32 s{SX+2}, 0, s{SX+2}
    s_cselect_b32 s{SW+2}, 0, s{SW+2}
    """)
    def issue(tag=None):
        iss = (lambda t: vm.issue(t, tag)) if tag else a
        a(f"s_add_u32 m0, s34, 16384")
        for i in range(4): iss(f"buffer_load_dwordx4 v{LWV+i}, {sr(SW,4)}, s33 offen offset:{i*1024} lds")
        a(f"s_mov_b32 m0, s34")
        for i in range(4): iss(f"buffer_load_dwordx4 v{LX+i}, {sr(SX,4)}, s32 offen offset:{i*1024} lds")
        a(f"""
        s_add_u32 s34, s34, 32768
        s_cmp_eq_u32 s34, s9
        s_cselect_b32 s34, s8, s34
        s_add_u32 s32, s32, 128
        s_add_u32 s33, s33, {64*3840}
        s_cmp_eq_u32 s32, 1280
        s_cselect_b32 s32, 0, s32
        s_cselect_b32 s33, 0, s33
        """)
    issue()
    ws_srd()
    a(f"""
    s_lshr_b32 s25, s{LW}, 1
    s_and_b32 s26, s{LW}, 1
    v_lshlrev_b32 v2, 4, v0             ; lane*16
    v_lshrrev_b32 v1, 5, v0             ; h
    v_and_b32 v4, 31, v0
    v_mov_b32 v{FEP}, 0
    s_lshl_b32 s3, s{LW}, 2
    s_add_u32 s3, s3, {SYNC+32}
    v_mov_b32 v{FSA}, s3
    ds_write_b32 v{FSA}, v{FEP}
    v_mov_b32 v11, {SYNC+48}
    ds_write_b32 v11, v{FEP}
    ds_write_b32 v11, v{FEP} offset:4
    ds_write_b32 v11, v{FEP} offset:16
    v_mov_b32 v12, -1
    ds_write_b32 v11, v12 offset:20
    ds_write_b32 v11, v{FEP} offset:24
    ds_write_b32 v11, v{FEP} offset:28
    ds_write_b32 v11, v{FEP} offset:32
    ds_write_b32 v11, v{FEP} offset:36
    v_and_b32 v11, 7, v0
    v_lshlrev_b32 v11, 2, v11
    v_add_u32 v11, {SYNC}, v11
    ds_write_b32 v11, v{FEP}
    """)
    b = a
    row192(b, UP, 3072, 11, 12)
    b(f"""
    s_mov_b32 s{TBU}, s{CG}
    s_mov_b32 s{FBK}, s{TB}
    s_lshl_b32 s36, s{TBU}, 2
    s_add_u32 s36, s36, s{LW}
    s_mul_i32 s36, s36, 40960
    s_add_u32 s36, s36, {XN_OFF}
    s_mul_i32 s37, s{FBK}, 192
    s_mul_i32 s3, s25, {2*16*3072}
    s_add_u32 s37, s37, s3               ; W cursor
    s_mov_b32 s28, s36
    s_add_u32 s29, s36, 40960
    s_mov_b32 s30, s37
    s_lshr_b32 s3, s2, 5
    s_mul_i32 s3, s3, {rup[0]}
    s_bfe_u32 s31, s2, 0x20003
    s_mul_i32 s31, s31, {rup[1]}
    s_add_u32 s31, s31, s3
    s_mul_i32 s3, s31, 26
    s_lshr_b32 s3, s3, 8
    s_mul_i32 s3, s3, 10
    s_sub_u32 s31, s31, s3
    s_lshl_b32 s3, s31, 12
    s_add_u32 s36, s36, s3
    s_mul_i32 s3, s31, {64*3072}
    s_add_u32 s37, s37, s3
    s_lshl_b32 s38, s{LW}, 12
    s_add_u32 s38, s38, {FB}
    s_mul_i32 s39, s26, {UW3D}
    s_mul_i32 s3, s25, 6144
    s_add_u32 s39, s39, s3
    s_add_u32 s39, s39, {FB+UW1}
    s_mov_b32 s{DS}, {2*USLOT}
    s_cmp_eq_u32 s26, 0
    s_cselect_b32 s{SWU}, s52, s54
    s_cselect_b32 s{SWU+1}, s53, s55
    s_and_b32 s{SWU+1}, s{SWU+1}, 0xffff
    s_mov_b32 s{SWU+2}, {640*3072}
    s_mov_b32 s{SWU+3}, 0x00020000
    s_mov_b32 s{SXN}, s{SO}
    s_mov_b32 s{SXN+1}, s{SO+1}
    s_mov_b32 s{SXN+2}, {WS_USED}
    s_mov_b32 s{SXN+3}, 0x00020000
    v_and_b32 v{FPA}, 3, v0
    v_lshlrev_b32 v{FPA}, 2, v{FPA}
    v_add_u32 v{FPA}, {SYNC+32}, v{FPA}
    """)
    row192(b, DN, 1280, 11, 12)
    b(f"""
    s_lshl_b32 s3, s25, 13
    s_add_u32 s3, s3, {FB+2*USLOT}
    v_add_u32 v{XA}, s3, v2
    v_bfe_u32 v11, v0, 2, 2              ; r
    v_lshl_add_u32 v12, v1, 3, v11       ; 8h+r
    v_mul_u32_u24 v12, 192, v12
    v_and_b32 v22, 3, v0
    v_lshl_add_u32 v12, v22, 3, v12
    v_bfe_u32 v23, v0, 4, 1              ; m
    v_mul_u32_u24 v3, {UW3D}, v23
    v_add_u32 v12, v12, v3
    s_mul_i32 s3, s26, 96
    s_add_u32 s3, s3, {FB+UW1+2*USLOT}
    v_add_u32 v{WA}, s3, v12
    s_mul_i32 s15, s{LW}, 30720
    s_add_u32 s15, s15, {FB}
    v_add_u32 v{HA}, s15, v2
    v_lshl_add_u32 v12, v1, 2, v11       ; 4h+r
    v_mul_u32_u24 v12, 192, v12
    v_lshl_add_u32 v12, v22, 3, v12
    v_lshl_add_u32 v12, v23, 5, v12
    v_add_u32 v{W2A}, s15, v12
    v_add_u32 v{H2}, {96*1024-1024}, v2
    s_mov_b32 s14, {2*USLOT}
    v_mov_b32 v{JA}, {SYNC+52}
    s_mov_b32 s{NB}, 0
    v_and_b32 v11, 15, v0
    v_lshlrev_b32 v11, 4, v11
    s_lshl_b32 s35, s{TBU}, 8
    s_add_u32 s35, s35, {FA_OFF}
    """)
    for i in range(4): a(f"v_mov_b32 v{24+i}, 0")
    for i in range(6): a(f"v_mfma_f32_32x32x16_bf16 {vr(ACC+16*i,16)}, v[24:27], v[24:27], 0")
    a(f"""
    s_cmp_eq_u32 s{CG}, 15
    s_cbranch_scc1 {L('fidle')}
    s_mov_b32 s13, 8
    """)
    if lst:
        for k in range(8):
            issue()
            a("s_waitcnt vmcnt(8) lgkmcnt(0)")
            stamp(a, 2 * k + 1, lst) if k < 7 else None
            a("s_barrier")
            stamp(a, 2 * k + 2, lst) if k < 7 else stamp(a, 15, lst)
        stamp_flush(a, 16, lst, W, SO)
        a(f"s_mov_b32 s{SO+2}, {WS_USED}"); a("v_lshlrev_b32 v2, 4, v0"); a("v_lshrrev_b32 v1, 5, v0"); a("s_waitcnt vmcnt(0)")
    else:
        a.label(L("lloop"))
        issue()
        a(f"""
        s_waitcnt vmcnt(8) lgkmcnt(0)
        s_barrier
        s_sub_u32 s13, s13, 1
        s_cmp_lg_u32 s13, 0
        s_cbranch_scc1 {L('lloop')}
        """)
    get_nonce(12)
    vm.q = ["p8"] * 8
    issue("p9")
    vm.wait("p8")
    a("s_barrier")
    a.label(L("pa_r"))
    def f_dmas(tag):
        g = []
        for k in range(2):
            for p in range(3):
                it = [(tag, f"buffer_load_dwordx4 v{UP+p}, {sr(SWU,4)}, s{37 if k == 0 else 58} offen offset:{p*1024} lds")]
                if p == 0:
                    it = ([f"s_add_u32 m0, s39, s{DS}"] if k == 0 else [f"s_add_u32 m0, m0, 3072", f"s_add_u32 s58, s37, {16*3072}"]) + it
                g.append(it)
        for ks in range(4):
            it = [(tag, f"buffer_load_dwordx4 v2, {sr(SXN,4)}, s36 offen offset:{ks*1024}{ldsc} lds")]
            if ks == 0: it = [f"s_add_u32 m0, s38, s{DS}"] + it
            g.append(it)
        g[-1] = g[-1] + ["s_add_u32 s36, s36, 4096", f"s_add_u32 s37, s37, {64*3072}", "s_cmp_eq_u32 s36, s29",
                         "s_cselect_b32 s36, s28, s36", "s_cselect_b32 s37, s30, s37",
                         f"s_sub_u32 s{DS}, s{DS}, {USLOT}", f"s_cselect_b32 s{DS}, {2*USLOT}, s{DS}"]
        return g
    def emit_group(grp, track=True):
        for x in grp:
            if isinstance(x, tuple):
                if track: vm.issue(x[1], x[0])
                else: a(x[1])
            else: a(x)
    for g in f_dmas("f0"): emit_group(g)
    vm.wait("p9")
    a(f"""
    s_cmp_eq_u32 s{CG}, 15
    s_cbranch_scc1 {L('f9')}
    s_barrier
    s_barrier
    """)
    if b11: a("s_barrier")
    a.label(L("f9"))
    a(f"s_setprio {gprio}")
    for g in f_dmas("f1"): emit_group(g)
    fspins = []
    def farrive(o=0):
        return [f"v_add_u32 v{FEP+o}, 1, v{FEP+o}", f"ds_write_b32 v{FSA+o}, v{FEP+o}", f"ds_read_b32 v{FPL+o}, v{FPA+o}"]
    def fcheck(o=0):
        t = f"fb{len(fspins)}"; fspins.append((t, o))
        return ["s_waitcnt lgkmcnt(0)", f"v_cmp_lt_u32 vcc, v{FPL+o}, v{FEP+o}", f"s_cbranch_vccnz {L(t+'s')}", f"{L(t+'r')}:"]
    njoin = [0]
    def jread(o=0): return [f"ds_read_b32 v{JV+o}, v{JA+o}"]
    def jtest(o=0):
        t = f"j{njoin[0]}"; njoin[0] += 1
        return [f"v_cmp_lt_u32 vcc, s{NB}, v{JV+o}", f"s_cbranch_vccz {L(t)}", "s_barrier", f"s_add_u32 s{NB}, s{NB}, 1", f"{L(t)}:"]
    MD = 56
    ncb = [0]
    def cbar():
        t = f"cb{ncb[0]}"; ncb[0] += 1
        return [f"s_cmp_ge_u32 s{NB}, s{MD}", f"s_cbranch_scc1 {L(t)}", "s_barrier", f"s_add_u32 s{NB}, s{NB}, 1", f"{L(t)}:"]
    a(f"s_mov_b32 s{MD}, 0")
    vm.wait("f0")
    for x in farrive() + fcheck(): a(x)
    stamp(a, 1, st)
    def up_reads(b, ks):
        f = FBUF[b]; out = []
        out.append(f"ds_read_b128 {vr(f,4)}, v{XA} offset:{ks*1024}")
        for ft in range(3):
            for half in range(2):
                out.append(f"ds_read_b64_tr_b16 {vr(f+8+4*ft+2*half,2)}, v{WA} offset:{ks*3072 + half*768 + ft*32}")
            if ft == 0: out.append(f"ds_read_b128 {vr(f+4,4)}, v{XA} offset:{4096+ks*1024}")
        return out
    def mfmas(b, first=False):
        f = FBUF[b]; out = []
        for ft in range(3):
            for tt in range(2):
                acc = ACC + 16 * (ft * 2 + tt)
                c = "0" if first else vr(acc, 16)
                out.append(f"v_mfma_f32_32x32x16_bf16 {vr(acc,16)}, {vr(f+8+4*ft,4)}, {vr(f+4*tt,4)}, {c}")
        return out
    def kstep(b, nxt, groups, track, first=False, ng=4, join=False):
        a("s_waitcnt lgkmcnt(0)")
        m = mfmas(b, first)
        for i in range(6):
            a(m[i])
            if join and i == 0:
                for x in jtest(): a(x)
            if join and i == 5:
                for x in jread(): a(x)
            if i < 4:
                for x in nxt[2*i:2*i+2]: a(x)
            if i >= 6 - ng and groups: emit_group(groups.pop(0), track)
    for x in up_reads(0, 0): a(x)
    a("s_mov_b32 s13, 10")
    a(".p2align 6")
    a.label(L("uploop"))
    if upst:
        for k in range(1, 10):
            a(f"s_cmp_lg_u32 s13, {10-k}"); a(f"s_cbranch_scc1 {L('us'+str(k))}"); stamp(a, 1 + k, st); a.label(L("us" + str(k)))
    a(f"""
    s_cmp_le_u32 s13, 2
    s_cselect_b32 s{SWU+2}, 0, s{SWU+2}
    s_cselect_b32 s{SXN+2}, 0, s{SXN+2}
    """)
    groups = f_dmas("f")
    for ks in range(3): kstep(ks % 2, up_reads((ks + 1) % 2, ks + 1), groups, False, ng=(4, 3, 3)[ks])
    assert not groups
    m = mfmas(1)
    a(f"""
    s_sub_u32 s3, s14, {USLOT}
    s_cselect_b32 s3, {2*USLOT}, s3
    s_sub_u32 s27, s3, s14
    s_mov_b32 s14, s3
    s_setprio 3
    v_add_u32 v{XA}, s27, v{XA}
    v_add_u32 v{WA}, s27, v{WA}
    s_cmp_eq_u32 s{MD}, 0
    s_cbranch_scc1 {L('gsync')}
    s_setprio {fprio}
    s_waitcnt vmcnt(10) lgkmcnt(0)
    s_barrier
    s_add_u32 s{NB}, s{NB}, 1
    """)
    a.label(L("gback"))
    nx = up_reads(0, 0)
    for i in range(6):
        a(m[i])
        for x in nx[2*i:2*i+2]: a(x)
    a(f"""
    s_sub_u32 s13, s13, 1
    s_cmp_lg_u32 s13, 0
    s_cbranch_scc1 {L('uploop')}
    """)
    st_save = st
    if upst:
        stamp(a, 11, st); st = False
    stamp(a, 2, st)
    a(f"""
    s_setprio {sprio}
    s_load_dwordx2 s[52:53], s[0:1], 48
    s_load_dwordx2 s[92:93], s[0:1], 0
    s_load_dwordx2 s[94:95], s[0:1], 16
    s_load_dwordx2 s[96:97], s[0:1], 56
    s_mov_b32 s{SWU}, {f2u(-1.4426950408889634):#x}
    s_lshl_b32 s3, s{TBU}, 2
    s_lshl_b32 s36, s25, 1
    s_add_u32 s3, s3, s36
    s_mul_i32 s36, s3, 96                ; toktile*96
    s_mul_i32 s3, s{FBK}, 6
    s_add_u32 s36, s36, s3
    s_mul_i32 s3, s26, 3
    s_add_u32 s36, s36, s3
    s_lshl_b32 s36, s36, 10
    s_add_u32 s36, s36, {H_OFF}
    s_add_u32 s37, s36, {96*1024}
    s_waitcnt lgkmcnt(0)
    """)
    vm.q = ["z"] * 10
    srd(a, SW2, 52, 1536 * 1280)
    for ft in range(3):
        for tt in range(2):
            n = ft * 2 + tt
            g = ACC + 16 * n; u = g + 8
            T = 24 + 8 * (n % 2)
            for i in range(8): a(f"v_mul_f32 v{T+i}, s{SWU}, v{g+i}")
            for i in range(8): a(f"v_exp_f32 v{T+i}, v{T+i}")
            for i in range(8): a(f"v_mul_f32 v{g+i}, v{g+i}, v{u+i}")
            for i in range(8): a(f"v_add_f32 v{T+i}, 1.0, v{T+i}")
            for i in range(8): a(f"v_rcp_f32 v{T+i}, v{T+i}")
            for i in range(8): a(f"v_mul_f32 v{g+i}, v{g+i}, v{T+i}")
            for i in range(4): a(f"v_cvt_pk_bf16_f32 v{u+i}, v{g+2*i}, v{g+2*i+1}")
            vm.issue(f"buffer_store_dwordx4 {vr(u,4)}, v2, {sr(SO,4)}, s{36+tt} offen offset:{ft*1024} sc1", "hs")
    stamp(a, 3, st)
    vm.wait("z")
    for x in farrive(): a(x)
    a(f"""
    s_lshl_b32 s3, s{TBU}, 4
    s_add_u32 s3, s3, s{FBK}
    s_lshl_b32 s3, s3, 4
    s_add_u32 s55, s3, {FLG_OFF}
    v_mov_b32 v11, 0
    v_mov_b32 v12, s{NONCE}
    s_lshr_b32 s3, s2, 3
    s_cmp_ge_u32 s3, 28
    s_cselect_b32 s{SW2+2}, 0, s{SW2+2}
    s_lshr_b32 s{CB}, s3, 2
    s_and_b32 s3, s3, 3
    s_and_b32 s{TK}, s2, 7
    s_lshl_b32 s{TK}, s{TK}, 2
    s_add_u32 s{TK}, s{TK}, s3
    s_mul_i32 s30, s{LW}, {24*16*1280}
    s_mul_i32 s3, s{CB}, 192
    s_add_u32 s30, s30, s3
    s_add_u32 s31, s30, {24*16*1280}
    s_mul_i32 s28, s{TK}, 192
    s_mul_i32 s3, s{LW}, 24
    s_add_u32 s28, s28, s3
    s_lshl_b32 s28, s28, 10
    s_add_u32 s28, s28, {H_OFF}
    s_add_u32 s29, s28, {24*1024}
    s_mul_i32 s58, s{CB}, {rot_dn[0]}
    s_and_b32 s3, s{TK}, 3
    s_mul_i32 s3, s3, {rot_dn[1]}
    s_add_u32 s58, s58, s3
    s_cmp_ge_u32 s58, 24
    s_cselect_b32 s3, 24, 0
    s_sub_u32 s58, s58, s3
    s_lshl_b32 s36, s58, 10
    s_add_u32 s36, s36, s28              ; h cursor
    s_mul_i32 s37, s58, {16*1280}
    s_add_u32 s37, s37, s30              ; w2 cursor
    s_lshr_b32 s3, s{TK}, 1
    s_lshl_b32 s3, s3, 8
    s_lshl_b32 s39, s{LW}, 6
    s_add_u32 s39, s39, s3
    s_add_u32 s39, s39, {FLG_OFF}
    """)
    for x in fcheck(): a(x)
    def w2_groups(j, adv=True):
        o = (j % 6) * 5120; g = []
        for p in range(3):
            it = [(f"d{j}", f"buffer_load_dwordx4 v{DN+p}, {sr(SW2,4)}, s37 offen offset:{p*1024} lds")]
            if p == 0: it = [f"s_add_u32 m0, s15, {o}"] + it
            if p == 2 and adv: it += [f"s_add_u32 s37, s37, {16*1280}", "s_cmp_eq_u32 s37, s31", "s_cselect_b32 s37, s30, s37"]
            g.append(it)
        return g
    def h_groups(j, both=False):
        o = (j % 6) * 5120 + 3072
        adv = ["s_add_u32 s36, s36, 1024", "s_cmp_eq_u32 s36, s29", "s_cselect_b32 s36, s28, s36"]
        if both: adv = [f"s_add_u32 s37, s37, {16*1280}"] + adv + ["s_cselect_b32 s37, s30, s37"]
        return [[f"s_add_u32 m0, s15, {o}", (f"d{j}", f"buffer_load_dwordx4 v2, {sr(SO,4)}, s36 offen{ldsc} lds")],
                [(f"d{j}", f"buffer_load_dwordx4 v{H2}, {sr(SO,4)}, s36 offen offset:1024{ldsc} lds")] + adv]
    for j in range(2):
        for gg in w2_groups(j): emit_group(gg)
    a(f"s_setprio {dprio}")
    if tcb[0]:
        for x in cbar(): a(x)
    a("s_setprio 3")
    vm.wait("hs")
    signal(72, 4, 55, 24, lambda t: vm.issue(t, "fl"))
    stamp(a, 4, st)
    a(f"""
    s_lshr_b32 s3, s2, 3
    s_cmp_ge_u32 s3, 28
    s_cbranch_scc1 {L('pf2' if pf2 else 'end')}
    """)
    for j in range(2, 6):
        for gg in w2_groups(j): emit_group(gg)
    def poll(tag, voff, soff):
        a(f"s_mov_b32 s13, 0x100000")
        a.label(L("poll" + tag))
        a(f"""
        buffer_load_dword v12, v{voff}, {sr(SO,4)}, s{soff} offen sc1
        s_sub_u32 s13, s13, 1
        s_cmp_eq_u32 s13, 0
        s_cbranch_scc1 {L('polled'+tag)}
        """)
        for x in jread() + ["s_waitcnt lgkmcnt(0)"] + jtest(): a(x)
        a(f"""
        s_waitcnt vmcnt(0)
        v_cmp_ne_u32 vcc, s{NONCE}, v12
        s_nop 4
        s_cbranch_vccnz {L('poll'+tag)}
        """)
        a.label(L("polled" + tag))
        vm.wait_all()
    a(f"""
    v_and_b32 v11, 3, v0
    v_lshlrev_b32 v11, 4, v11
    """)
    srd(a, SXN, 94, 640 * 1280)
    a(f"""
    s_mul_i32 s38, s{LW}, {160*1280}
    s_mul_i32 s3, s{CB}, 192
    s_add_u32 s38, s38, s3
    """)
    stamp(a, 5, st)
    a(f"s_mov_b32 s{MD}, 16")
    a(f"s_mov_b32 s13, 0x100000")
    a.label(L("hp_c"))
    for x in cbar(): a(x)
    a(f"s_mov_b32 s58, {ptry}")
    a.label(L("hp_l"))
    a(f"""
    buffer_load_dword v12, v11, {sr(SO,4)}, s39 offen sc1
    s_sub_u32 s13, s13, 1
    s_cmp_eq_u32 s13, 0
    s_cbranch_scc1 {L('hp_r')}
    s_waitcnt vmcnt(0)
    v_cmp_ne_u32 vcc, s{NONCE}, v12
    s_cbranch_vccz {L('hp_r')}
    s_sub_u32 s58, s58, 1
    s_cmp_eq_u32 s58, 0
    s_cbranch_scc1 {L('hp_c')}
    s_branch {L('hp_l')}
    """)
    a.label(L("hp_r"))
    vm.wait_all()
    stamp(a, 6, st)
    for j in range(6):
        for g in h_groups(j): emit_group(g)
    a(f"s_setprio {dprio}")
    def wo_groups(i):
        g = []
        for n in range(5 * i, 5 * i + 5):
            p = n % 3
            it = [(f"w{n}", f"buffer_load_dwordx4 v{DN+p}, {sr(SXN,4)}, s38 offen offset:{p*1024} lds")]
            if p == 0 or n == 5 * i: it = [f"s_add_u32 m0, s15, {(n-p)*1024}"] + it
            if p == 2: it.append(f"s_add_u32 s38, s38, {16*1280}")
            g.append(it)
        return g
    def dn_reads(b, j):
        f = FBUF[b]; o = (j % 6) * 5120; out = []
        out.append(f"ds_read_b128 {vr(f,4)}, v{HA} offset:{o+3072}")
        for ct in range(3):
            for half in range(2):
                out.append(f"ds_read_b64_tr_b16 {vr(f+8+4*ct+2*half,2)}, v{W2A} offset:{o + half*1536 + ct*64}")
            if ct == 0: out.append(f"ds_read_b128 {vr(f+4,4)}, v{HA} offset:{o+4096}")
        return out
    vm.wait("d0")
    stamp(a, 7, st)
    for x in dn_reads(0, 0): a(x)
    for j in range(24):
        nxt = []
        if j + 1 < 24:
            vm.wait(f"d{j+1}")
            nxt = dn_reads((j + 1) % 2, j + 1)
        groups = (w2_groups(j + 6, adv=False) + h_groups(j + 6, both=True)) if j + 6 < 24 else wo_groups(j - 18)
        kstep(j % 2, nxt, groups, True, first=(j == 0), ng=5)
        if j % dq == dq - 1:
            for x in cbar(): a(x)
        if j in (5, 11, 17): stamp(a, 8 + (j - 5) // 6, st)
    stamp(a, 11, st)
    OW = 24
    WFR = [[8, 12, 16], [20, 160, 164]]
    a(f"""
    s_setprio {wprio}
    v_readfirstlane_b32 s57, v{FEP}
    v_mov_b32 v5, v{W2A}
    v_mul_u32_u24 v6, {36*192}, v1
    v_add_u32 v6, v6, v5
    v_lshlrev_b32 v7, 3, v4
    v_lshl_add_u32 v7, v1, 9, v7
    v_and_b32 v11, 7, v0
    v_lshlrev_b32 v11, 4, v11
    s_lshl_b32 s34, s{TK}, 6
    s_lshl_b32 s3, s{LW}, 3
    s_add_u32 s34, s34, s3               ; (tk*2)*32 + 8w
    s_lshr_b32 s39, s{TK}, 2
    s_lshl_b32 s39, s39, 5
    s_add_u32 s39, s39, s3
    s_lshl_b32 s39, s39, 4
    s_add_u32 s39, s39, {OFL_OFF}
    s_lshl_b32 s35, s34, 8
    s_add_u32 s35, s35, {OT_OFF}
    s_lshl_b32 s34, s34, 10
    s_add_u32 s34, s34, {OM_OFF}
    s_add_u32 s36, s34, 32768
    s_add_u32 s37, s35, 8192
    s_add_u32 s32, s34, 4096
    s_add_u32 s33, s36, 4096
    s_lshl_b32 s3, s{LW}, 6
    v_add_u32 v3, s3, v0
    s_mul_i32 s38, s{TK}, {64*1280}
    s_mul_i32 s3, s{CB}, 192
    s_add_u32 s38, s38, s3
    s_cmp_eq_u32 s{CB}, 6
    s_cselect_b32 s27, 8, 12
    """)
    srd(a, SWU, 92, 2048 * 1280)
    srd(a, SW2, 96, 2048 * 1280)
    a.label(L("drain"))
    a(f"""
    s_cmp_ge_u32 s{NB}, 16
    s_cbranch_scc1 {L('drained')}
    s_barrier
    s_add_u32 s{NB}, s{NB}, 1
    s_branch {L('drain')}
    """)
    a.label(L("drained"))
    poll("o", 11, 39)
    stamp(a, 12, st)
    steps = [("m", 0), ("m", 1), ("m", 2), ("m", 3), ("t", 0), ("m", 4), ("m", 5), ("m", 6), ("m", 7), ("t", 1)]
    def o_load(j):
        k, i = steps[j]; b = OW + 8 * (j % 5)
        if k == "m":
            for tt in range(2):
                so = (34, 36)[tt] if i < 4 else (32, 33)[tt]
                vm.issue(f"buffer_load_dwordx4 {vr(b+4*tt,4)}, v2, {sr(SO,4)}, s{so} offen offset:{(i%4)*1024}{ldsc}", f"o{j}")
        else:
            for tt in range(2):
                for q in range(2):
                    vm.issue(f"buffer_load_dwordx2 {vr(b+4*tt+2*q,2)}, v7, {sr(SO,4)}, s{(35,37)[tt]} offen offset:{i*1024+q*256}{ldsc}", f"o{j}")
    def wo_rd(j):
        k, i = steps[j]; out = []
        for ct in range(3):
            for half in range(2):
                if k == "m": ad, off = 5, 20 * i * 192 + half * 1536 + ct * 64
                else: ad, off = 6, (80 * i + 16 + 20 * half) * 192 + ct * 64
                out.append(f"ds_read_b64_tr_b16 {vr(WFR[j%2][ct]+2*half,2)}, v{ad} offset:{off}")
        return out
    for j in range(5): o_load(j)
    for x in wo_rd(0): a(x)
    GO, LO, LO2, WR = 40, 43, 46, 49
    for j in range(10):
        vm.wait(f"o{j}", extra="lgkmcnt(0)")
        nxt = wo_rd(j + 1) if j + 1 < 10 else []
        b = OW + 8 * (j % 5)
        n = 0
        for ct in range(3):
            for tt in range(2):
                acc = ACC + 16 * (ct * 2 + tt)
                a(f"v_mfma_f32_32x32x16_bf16 {vr(acc,16)}, {vr(WFR[j%2][ct],4)}, {vr(b+4*tt,4)}, {vr(acc,16)}")
                if n < 3:
                    for x in nxt[2*n:2*n+2]: a(x)
                n += 1
        if j + 5 < 10: o_load(j + 5)
        if j == 6:
            for n in range(3):
                a(f"""
                v_add_u32 v36, {256*n}, v3
                v_mul_u32_u24 v37, 0xaab, v36
                v_lshrrev_b32 v37, 15, v37           ; token
                v_mul_u32_u24 v38, 12, v37
                v_sub_u32 v36, v36, v38              ; g
                v_mul_u32_u24 v38, 1280, v37
                v_lshl_add_u32 v38, v36, 4, v38
                v_cmp_gt_u32 vcc, s27, v36
                v_mov_b32 v39, 0x7f000000
                v_cndmask_b32 v38, v39, v38, vcc
                """)
                vm.issue(f"buffer_load_dwordx4 {vr(24+4*n,4)}, v38, {sr(SWU,4)}, s38 offen", "x")
        if j == 8:
            for n in range(3):
                a(f"""
                v_add_u32 v36, {256*n}, v3
                v_mul_u32_u24 v37, 0xaab, v36
                v_lshrrev_b32 v37, 15, v37
                v_mul_u32_u24 v38, 12, v37
                v_sub_u32 v36, v36, v38
                v_mul_u32_u24 v38, 1280, v37
                v_lshl_add_u32 v{GO+n}, v36, 4, v38
                v_cmp_gt_u32 vcc, s27, v36
                v_mul_u32_u24 v38, 400, v37
                v_cndmask_b32 v{GO+n}, v39, v{GO+n}, vcc
                v_lshl_add_u32 v{LO+n}, v36, 5, v38
                v_add_u32 v{LO+n}, {FB}, v{LO+n}
                v_add_u32 v{LO2+n}, 61440, v{LO+n}
                """)
            a(f"""
            v_mul_u32_u24 v{WR}, 400, v4
            v_lshl_add_u32 v{WR}, v1, 4, v{WR}
            v_add_u32 v{WR}, s15, v{WR}
            v_mov_b32 v{FEP+32}, s57
            v_mov_b32 v{JA+32}, {SYNC+52}
            s_lshl_b32 s3, s{LW}, 2
            s_add_u32 s3, s3, {SYNC+32}
            v_mov_b32 v{FSA+32}, s3
            v_and_b32 v{FPA+32}, 3, v0
            v_lshlrev_b32 v{FPA+32}, 2, v{FPA+32}
            v_add_u32 v{FPA+32}, {SYNC+32}, v{FPA+32}
            """)
    stamp(a, 13, st)
    for ct in range(3):
        for tt in range(2):
            for j in range(4):
                a(f"ds_write_b128 v{WR}, {vr(ACC+16*(ct*2+tt)+4*j,4)} offset:{tt*12800 + ct*128 + j*32}")
    for x in farrive(32) + fcheck(32): a(x)
    for n in range(3):
        for w in range(4):
            ad = f"v{LO+n}" if w < 2 else f"v{LO2+n}"
            for hf in range(2):
                a(f"ds_read_b128 {vr(ACC+32*n+8*w+4*hf,4)}, {ad} offset:{(w%2)*30720 + hf*16}")
    vm.wait_all()
    for n in range(3):
        a(f"s_waitcnt lgkmcnt({min(15, 8*(2-n))})")
        b = ACC + 32 * n; x = 24 + 4 * n
        for i in range(0, 8, 2):
            a(f"v_pk_add_f32 {vr(b+i,2)}, {vr(b+i,2)}, {vr(b+8+i,2)}")
            a(f"v_pk_add_f32 {vr(b+16+i,2)}, {vr(b+16+i,2)}, {vr(b+24+i,2)}")
            a(f"v_lshlrev_b32 v{b+8+i}, 16, v{x+i//2}")
            a(f"v_and_b32 v{b+9+i}, 0xffff0000, v{x+i//2}")
            a(f"v_pk_add_f32 {vr(b+i,2)}, {vr(b+i,2)}, {vr(b+16+i,2)}")
            a(f"v_pk_add_f32 {vr(b+i,2)}, {vr(b+i,2)}, {vr(b+8+i,2)}")
            a(f"v_cvt_pk_bf16_f32 v{x+i//2}, v{b+i}, v{b+i+1}")
        a(f"buffer_store_dwordx4 {vr(x,4)}, v{GO+n}, {sr(SW2,4)}, s38 offen")
    a(f"""
    s_or_b32 s3, s2, s{LW}
    s_cmp_lg_u32 s3, 0
    s_cbranch_scc1 {L('nrst')}
    s_load_dwordx2 s[52:53], s[0:1], 64
    v_mov_b32 v36, 0
    s_waitcnt lgkmcnt(0)
    """)
    srd(a, SXN, 52, 256)
    a(f"""
    s_mov_b64 exec, 1
    buffer_store_dword v36, v36, {sr(SXN,4)}, 0 offen sc1
    s_mov_b64 exec, -1
    """)
    a.label(L("nrst"))
    stamp(a, 14, st)
    if st: a("s_waitcnt vmcnt(0)")
    stamp(a, 15, st)
    st = st_save
    stamp_flush(a, 12 if upst else 16, st, W, SO)
    a("s_endpgm")
    for t, o in fspins:
        a.label(L(t + "s"))
        a(f"""
        s_sleep 1
        ds_read_b32 v{FPL+o}, v{FPA+o}
        """)
        if o:
            for x in jread(o) + ["s_waitcnt lgkmcnt(0)"] + jtest(o): a(x)
        a(f"""
        s_waitcnt lgkmcnt(0)
        v_cmp_lt_u32 vcc, v{FPL+o}, v{FEP+o}
        s_nop 1
        s_cbranch_vccnz {L(t+'s')}
        s_branch {L(t+'r')}
        """)
    a.label(L("gsync"))
    a(f"""
    ds_read_b32 v{JV}, v{JA} offset:12
    v_add_u32 v{FEP}, 1, v{FEP}
    s_waitcnt vmcnt(10) lgkmcnt(0)
    v_readfirstlane_b32 s3, v{JV}
    s_cmp_eq_u32 s{LW}, 0
    s_cselect_b32 s3, s3, 0
    s_cmp_eq_u32 s3, 0
    s_cbranch_scc1 {L('gs1')}
    ds_write_b32 v{JA}, v{FEP} offset:16        ; SW_AT
    """)
    a.label(L("gs1"))
    a(f"ds_write_b32 v{FSA}, v{FEP}")
    a.label(L("gs2"))
    a(f"""
    ds_read_b32 v{FPL}, v{FPA}
    ds_read_b32 v{JV}, v{JA} offset:16
    s_waitcnt lgkmcnt(0)
    v_cmp_lt_u32 vcc, v{FPL}, v{FEP}
    s_cbranch_vccnz {L('gs2')}
    v_cmp_le_u32 vcc, v{JV}, v{FEP}
    s_setprio {gprio}
    s_cbranch_vccz {L('gback')}
    s_mov_b32 s{MD}, 16
    s_setprio {fprio}
    s_branch {L('gback')}
    """)
    a.label(L("pf2"))
    srd(a, SW2, 52, 1536 * 1280)
    srd(a, SXN, 94, 640 * 1280)
    a(f"""
    s_sub_u32 s3, s2, 224
    s_lshl_b32 s3, s3, 2
    s_add_u32 s3, s3, s{LW}
    s_lshl_b32 s3, s3, 10
    s_mov_b32 s13, s3
    """)
    for i in range(15):
        a(f"buffer_load_dwordx4 {vr(64+4*i,4)}, v2, {sr(SW2,4)}, s3 offen"); a("s_add_u32 s3, s3, 131072")
    for i in range(7):
        a(f"buffer_load_dwordx4 {vr(124+4*i,4)}, v2, {sr(SXN,4)}, s13 offen"); a("s_add_u32 s13, s13, 131072")
    a("s_endpgm")
    a.label(L("fidle"))
    a("s_waitcnt lgkmcnt(0)")
    for _ in range(12 if b11 else 11): a("s_barrier")
    get_nonce(12)
    a(f"s_branch {L('pa_r')}")
    a.label(L("help"))
    HW = 28; SXH = 20; SD = 24
    a(f"""
    s_setprio {hprio}
    s_sub_u32 s{HW}, s{W}, 4
    s_memrealtime s[40:41]
    s_load_dwordx2 s[44:45], s[0:1], 16
    s_load_dwordx4 s[48:51], s[0:1], 32
    s_load_dwordx2 s[46:47], s[0:1], 48
    v_and_b32 v1, 7, v0
    v_lshrrev_b32 v2, 3, v0
    s_lshl_b32 s3, s{HW}, 3
    v_add_u32 v2, s3, v2                 ; g 0..31
    s_lshl_b32 s29, s{TB}, 7
    s_lshl_b32 s3, s{CG}, 3
    s_add_u32 s29, s29, s3
    v_add_u32 v3, s29, v1                ; token
    v_mul_u32_u24 v4, 1280, v3
    v_lshl_add_u32 v4, v2, 4, v4
    s_cmp_lt_u32 s{HW}, 2
    s_mov_b32 s30, 0x7f000000
    s_cselect_b32 s30, 0, s30
    v_add_u32 v5, s30, v4
    v_mov_b32 v6, 0
    s_waitcnt lgkmcnt(0)
    """)
    srd(a, SXH, 4, 2048 * 1280)
    srd(a, SD, 92, 256)
    ws_srd()
    a(f"""
    buffer_load_dwordx4 v[8:11], v4, {sr(SXH,4)}, 0 offen
    buffer_load_dwordx4 v[12:15], v4, {sr(SXH,4)}, 0 offen offset:512
    buffer_load_dwordx4 v[16:19], v5, {sr(SXH,4)}, 0 offen offset:1024
    """)
    def pf_touch(lo, nbytes, dst):
        nl = nbytes // 128
        per = (nl + 255) // 256
        pw = (per + 3) // 4
        srd(a, 52, lo, nbytes)
        a(f"""
        s_mul_i32 s3, s2, {4*pw}
        s_mul_i32 s31, s{HW}, {pw}
        s_add_u32 s3, s3, s31
        s_lshl_b32 s3, s3, 7
        s_mov_b64 exec, {(1 << pw) - 1}
        buffer_load_dword v{dst}, v58, s[52:55], s3 offen
        s_mov_b64 exec, -1
        """)
    a("v_lshlrev_b32 v58, 7, v0")
    if pf >= 1: pf_touch(6, 640 * 3840, 59)
    if pf == 2:
        pf_touch(48, 640 * 3072, 60); pf_touch(50, 640 * 3072, 61); pf_touch(46, 1536 * 1280, 62); pf_touch(44, 640 * 1280, 63)
    a(f"""
    s_or_b32 s3, s2, s{HW}
    s_cmp_lg_u32 s3, 0
    s_cbranch_scc1 {L('nononce')}
    s_or_b32 s40, s40, 1
    v_mov_b32 v7, s40
    s_mov_b64 exec, 1
    buffer_store_dword v7, v6, {sr(SD,4)}, 0 offen sc1
    s_mov_b64 exec, -1
    """)
    a.label(L("nononce"))
    a(f"""
    v_lshrrev_b32 v7, 5, v3
    v_mul_u32_u24 v7, 40960, v7
    v_lshl_add_u32 v7, v2, 9, v7
    v_and_b32 v20, 31, v3
    v_lshl_add_u32 v7, v20, 4, v7
    v_add_u32 v21, 16384, v7
    v_add_u32 v22, 32768, v7
    v_add_u32 v22, s30, v22
    s_lshl_b32 s3, s{HW}, 6
    v_lshl_add_u32 v23, v1, 3, s3
    v_add_u32 v23, {LNP}, v23
    v_lshlrev_b32 v24, 3, v1
    v_add_u32 v24, {LNP}, v24
    v_mov_b32 v26, 0
    v_mov_b32 v27, 0
    s_barrier
    s_waitcnt vmcnt(0)
    """)
    for i in range(12):
        a(f"""
        v_lshlrev_b32 v{32+2*i}, 16, v{8+i}
        v_and_b32 v{33+2*i}, 0xffff0000, v{8+i}
        v_add_f32 v26, v26, v{32+2*i}
        v_fmac_f32 v27, v{32+2*i}, v{32+2*i}
        v_add_f32 v26, v26, v{33+2*i}
        v_fmac_f32 v27, v{33+2*i}, v{33+2*i}
        """)
    for r in (26, 27):
        a(f"""
        v_add_f32_dpp v{r}, v{r}, v{r} row_ror:8 row_mask:0xf bank_mask:0xf
        v_mov_b32 v28, v{r}
        v_permlane16_swap_b32 v{r}, v28
        v_add_f32 v{r}, v{r}, v28
        v_mov_b32 v28, v{r}
        v_permlane32_swap_b32 v{r}, v28
        v_add_f32 v{r}, v{r}, v28
        """)
    a(f"""
    ds_write_b64 v23, v[26:27]
    s_waitcnt lgkmcnt(0)
    s_barrier
    ds_read_b64 v[26:27], v24
    ds_read_b64 v[28:29], v24 offset:64
    ds_read_b64 v[30:31], v24 offset:128
    ds_read_b64 v[56:57], v24 offset:192
    buffer_load_dword v25, v6, {sr(SD,4)}, 0 offen sc1
    s_waitcnt lgkmcnt(0)
    v_add_f32 v26, v26, v28
    v_add_f32 v27, v27, v29
    v_add_f32 v30, v30, v56
    v_add_f32 v31, v31, v57
    v_add_f32 v26, v26, v30
    v_add_f32 v27, v27, v31
    v_mul_f32 v26, {f2u(1/640):#x}, v26          ; mean
    v_mul_f32 v27, {f2u(1/640):#x}, v27
    v_fma_f32 v27, -v26, v26, v27                ; var
    v_max_f32 v27, 0, v27
    v_cvt_pk_bf16_f32 v28, v26, v27
    v_lshlrev_b32 v26, 16, v28
    v_and_b32 v27, 0xffff0000, v28
    v_add_f32 v27, {f2u(1e-5):#x}, v27
    v_cvt_pk_bf16_f32 v27, v27, v27
    v_and_b32 v27, 0xffff0000, v27
    v_sqrt_f32 v27, v27
    v_cvt_pk_bf16_f32 v27, v27, v27
    v_and_b32 v27, 0xffff0000, v27
    v_rcp_f32 v27, v27                           ; rstd
    s_mov_b32 s31, {XN_OFF}
    v_mul_f32 v28, v26, v27
    """)
    for q in range(3):
        for i in range(4 * q, 4 * q + 4):
            a(f"""
            v_fma_f32 v{32+2*i}, v{32+2*i}, v27, -v28
            v_fma_f32 v{33+2*i}, v{33+2*i}, v27, -v28
            v_cvt_pk_bf16_f32 v{8+i}, v{32+2*i}, v{33+2*i}
            """)
        a(f"buffer_store_dwordx4 {vr(8+4*q,4)}, v{(7,21,22)[q]}, {sr(SO,4)}, s31 offen sc1")
    a(f"""
    s_cmp_lg_u32 s{HW}, 0
    s_cbranch_scc1 {L('nostat')}
    v_lshlrev_b32 v29, 3, v3
    s_mov_b32 s31, {STG_OFF}
    s_mov_b64 exec, 0xff
    buffer_store_dwordx2 v[26:27], v29, {sr(SO,4)}, s31 offen sc1
    s_mov_b64 exec, -1
    """)
    a.label(L("nostat"))
    if pf == 3:
        pf_touch(48, 640 * 3072, 60); pf_touch(50, 640 * 3072, 61); pf_touch(46, 1536 * 1280, 62); pf_touch(44, 640 * 1280, 63)
    a(f"""
    s_barrier
    s_barrier
    s_mov_b32 s13, 0x100000
    """)
    a.label(L("nn_l"))
    a(f"""
    s_waitcnt vmcnt(0)
    v_readfirstlane_b32 s{NONCE}, v25
    s_sub_u32 s13, s13, 1
    s_cmp_eq_u32 s13, 0
    s_cbranch_scc1 {L('nn_r')}
    s_cmp_lg_u32 s{NONCE}, 0
    s_cbranch_scc1 {L('nn_r')}
    buffer_load_dword v25, v6, {sr(SD,4)}, 0 offen sc1
    s_branch {L('nn_l')}
    """)
    a.label(L("nn_r"))
    a(f"""
    s_lshl_b32 s31, s{TB}, 8
    s_add_u32 s31, s31, {FA_OFF}
    s_lshl_b32 s3, s{CG}, 4
    s_add_u32 s33, s3, s31
    """)
    signal(84, 4, 33, 28)
    a(f"""
    v_mov_b32 v26, {SYNC+60}
    ds_write_b32 v26, v25
    v_and_b32 v27, 15, v0
    v_lshlrev_b32 v27, 4, v27
    s_mov_b32 s31, {FA_OFF}
    v_mov_b32 v28, s{TB}
    v_mov_b32 v29, s{CG}
    v_cmp_gt_u32 vcc, 32, v0
    v_cndmask_b32 v28, v29, v28, vcc
    v_lshl_add_u32 v27, v28, 8, v27
    s_waitcnt lgkmcnt(0)
    s_barrier
    s_barrier
    s_barrier
    s_cmp_lg_u32 s{HW}, 0
    s_cbranch_scc1 {L('hrest')}
    buffer_load_dword v28, v27, {sr(SO,4)}, s31 offen sc1
    s_barrier
    s_mov_b32 s13, 0x100000
    """)
    a.label(L("ha_l"))
    a(f"""
    s_waitcnt vmcnt(0)
    v_cmp_ne_u32 vcc, s{NONCE}, v28
    s_sub_u32 s13, s13, 1
    s_cmp_eq_u32 s13, 0
    s_cbranch_scc1 {L('ha_r')}
    s_cbranch_vccz {L('ha_r')}
    buffer_load_dword v28, v27, {sr(SO,4)}, s31 offen sc1
    s_branch {L('ha_l')}
    """)
    a.label(L("ha_r"))
    a(f"""
    s_lshl_b32 s3, s{TB}, 10
    s_add_u32 s3, s3, {STG_OFF}
    v_lshlrev_b32 v30, 4, v0
    buffer_load_dwordx4 v[32:35], v30, {sr(SO,4)}, s3 offen sc1
    v_lshlrev_b32 v29, 3, v0
    v_add_u32 v29, {ST_M}, v29
    s_barrier
    s_barrier
    s_waitcnt vmcnt(0)
    ds_write2_b32 v29, v32, v34 offset0:0 offset1:1
    ds_write2_b32 v29, v33, v35 offset0:128 offset1:129
    s_waitcnt lgkmcnt(0)
    s_branch {L('h10')}
    """)
    a.label(L("hrest"))
    a("""
    s_barrier
    s_barrier
    s_barrier
    """)
    a.label(L("h10"))
    a("s_barrier")
    if b11: a("s_barrier")
    a(f"s_branch {L('att')}")
    a.label(L("mfma"))
    TW, FW = 28, 29
    XA = 2
    WA = 10
    SEL = 12
    CS = 48
    BUF = [16, 32, 128, 144]
    ACC = 64
    a(f"""
    s_setprio 2
    s_lshr_b32 s{TW}, s{W}, 1
    s_and_b32 s{FW}, s{W}, 1
    v_and_b32 v56, 31, v0
    v_lshrrev_b32 v57, 5, v0            ; h
    v_bfe_u32 v52, v0, 1, 3             ; f
    s_lshl_b32 s3, s{TW}, 13            ; tw*64*128
    v_lshl_add_u32 v53, v56, 7, s3
    """)
    for ks in range(4):
        a(f"""
        v_or_b32 v54, {2*ks}, v57
        v_xor_b32 v54, v54, v52
        v_lshl_add_u32 v{XA+ks}, v54, 4, v53
        """)
    a(f"""
    v_bfe_u32 v54, v0, 2, 2             ; r
    v_lshl_add_u32 v55, v57, 3, v54     ; 8h+r
    v_lshlrev_b32 v55, 8, v55
    s_lshl_b32 s35, s{FW}, 1
    s_or_b32 s35, s35, s{TW}
    v_xor_b32 v54, s35, v54
    v_lshl_add_u32 v55, v54, 6, v55
    v_bfe_u32 v54, v0, 4, 1
    v_lshl_add_u32 v55, v54, 5, v55
    v_and_b32 v53, 3, v0
    v_lshl_add_u32 v55, v53, 3, v55
    v_add_u32 v{WA}, 0x4000, v55
    v_xor_b32 v{WA+1}, 64, v{WA}
    v_bfe_u32 v53, v0, 2, 1
    v_cmp_eq_u32 vcc, v53, v54
    v_mov_b32 v53, 0x3f803f80
    v_cndmask_b32 v{SEL}, 0, v53, vcc
    v_mov_b32 v{SEL+1}, v{SEL}
    v_mov_b32 v{SEL+2}, v{SEL}
    v_mov_b32 v{SEL+3}, v{SEL}
    """)
    for i in range(4): a(f"v_mov_b32 v{CS+i}, 0")
    for i in range(4): a(f"v_mfma_f32_32x32x16_bf16 {vr(ACC+16*i,16)}, {vr(CS,4)}, {vr(CS,4)}, 0")
    a("s_waitcnt lgkmcnt(0)")
    ws_srd()
    a("s_mov_b32 s36, 0")
    a(f"""
    s_cmp_eq_u32 s{CG}, 15
    s_cbranch_scc1 {L('mpf')}
    """)

    def reads(buf, par, ks):
        b = BUF[buf]; o = par * 32768
        wo = o + ks * 4096
        return [
            f"ds_read_b64_tr_b16 {vr(b+8,2)}, v{WA} offset:{wo}",
            f"ds_read_b64_tr_b16 {vr(b+10,2)}, v{WA} offset:{wo+1024}",
            f"ds_read_b128 {vr(b,4)}, v{XA+ks} offset:{o}",
            f"ds_read_b128 {vr(b+4,4)}, v{XA+ks} offset:{o+4096}",
            f"ds_read_b64_tr_b16 {vr(b+12,2)}, v{WA+1} offset:{wo}",
            f"ds_read_b64_tr_b16 {vr(b+14,2)}, v{WA+1} offset:{wo+1024}",
        ]
    def mf(buf, fi, ti, vmode):
        b = BUF[buf]; acc = ACC + 16 * (fi * 2 + ti)
        wv = vr(b + 8 + 4 * fi, 4); xv = vr(b + 4 * ti, 4)
        A, B = (xv, wv) if vmode else (wv, xv)
        return f"v_mfma_f32_32x32x16_bf16 {vr(acc,16)}, {A}, {B}, {vr(acc,16)}"
    def csm(cur):
        return f"v_mfma_f32_16x16x32_bf16 {vr(CS,4)}, {vr(SEL,4)}, {vr(BUF[cur]+8,4)}, {vr(CS,4)}"
    def kstep(cur, rd, vmode, pre=(), wait=6):
        a(f"s_waitcnt lgkmcnt({wait})")
        a(mf(cur, 0, 0, vmode))
        for x in pre: a(x)
        [a(x) for x in rd[0:2]]
        a(mf(cur, 0, 1, vmode)); [a(x) for x in rd[2:4]]
        a(mf(cur, 1, 0, vmode)); [a(x) for x in rd[4:6]]
        a(mf(cur, 1, 1, vmode))
        a(csm(cur))
    def mainloop(vmode, tag):
        a("s_mov_b32 s30, 10")
        a(".p2align 6")
        a.label(L("loop" + tag))
        if p1st:
            for k in range(1, 11):
                a(f"s_cmp_lg_u32 s30, {11-k}"); a(f"s_cbranch_scc1 {L('ps'+tag+str(k))}"); stamp(a, k, p1st); a.label(L("ps" + tag + str(k)))
        tg = [f"v_add_u32 v{r}, s37, v{r}" for r in list(range(XA, XA + 4)) + [WA, WA + 1]]
        kstep(0, reads(2, 0, 2), vmode, pre=["s_add_u32 s38, s36, 32768", "s_cmp_eq_u32 s38, 98304", "s_cselect_b32 s38, 0, s38", "s_sub_u32 s37, s38, s36", "s_mov_b32 s36, s38"])
        kstep(1, reads(3, 0, 3), vmode)
        a(f"s_cmp_eq_u32 s30, 1")
        a(f"s_cbranch_scc1 {L('fin'+tag)}")
        kstep(2, reads(0, 0, 0), vmode, pre=["s_barrier"] + tg, wait=0)
        kstep(3, reads(1, 0, 1), vmode)
        a(f"""
        s_sub_u32 s30, s30, 1
        s_branch {L('loop'+tag)}
        """)
        a.label(L("fin" + tag))
        kstep(2, [], vmode)
        a("s_waitcnt lgkmcnt(0)")
        a(csm(3))
        for fi in range(2):
            for ti in range(2): a(mf(3, fi, ti, vmode))
        a(f"""
        s_lshl_b32 s3, s35, 7
        v_lshl_add_u32 v55, v56, 2, s3
        v_add_u32 v55, {ST_CS}, v55
        ds_write_b32 v55, v{CS}
        s_waitcnt lgkmcnt(0)
        s_barrier
        """)
    stamp(a, 1, st)
    a("s_barrier")
    stamp(a, 2, st)
    for x in reads(0, 0, 0) + reads(1, 0, 1): a(x)
    a(f"""
    s_cmp_ge_u32 s{CG}, 10
    s_cbranch_scc1 {L('vpath')}
    """)
    a(f"""
    s_cmp_lt_u32 s{CG}, 5
    s_cselect_b32 s31, {f2u(QSCALE):#x}, 1.0
    s_cselect_b32 s32, 0, 5
    s_cselect_b32 s33, {QK_OFF}, {QK_OFF+QK_TYPE}
    s_sub_u32 s32, s{CG}, s32           ; cgt
    s_lshl_b32 s32, s32, 4
    s_lshl_b32 s3, s35, 2
    s_add_u32 s32, s32, s3
    s_lshl_b32 s32, s32, 15
    s_add_u32 s33, s33, s32
    s_lshl_b32 s3, s{TB}, 2
    s_lshl_b32 s32, s{TW}, 1
    s_add_u32 s3, s3, s32
    s_lshl_b32 s3, s3, 9                ; toktile*512
    s_add_u32 s33, s33, s3
    v_lshlrev_b32 v58, 4, v0
    s_lshl_b32 s3, s{TW}, 8
    v_lshl_add_u32 v59, v56, 2, s3
    v_add_u32 v59, {ST_M}, v59
    s_lshl_b32 s3, s35, 7
    v_lshl_add_u32 v60, v57, 4, s3
    v_add_u32 v60, {ST_CS}, v60
    v_xor_b32 v61, 128, v60
    """)
    mainloop(False, "qk")
    stamp(a, 3, st)
    a(f"""
    ds_read_b32 v2, v59
    ds_read_b32 v4, v59 offset:512
    ds_read_b32 v6, v59 offset:128
    ds_read_b32 v8, v59 offset:640
    """)
    for j in range(4): a(f"ds_read_b128 {vr(16+4*j,4)}, v60 offset:{32*j}")
    for j in range(4): a(f"ds_read_b128 {vr(32+4*j,4)}, v61 offset:{32*j}")
    a(f"""
    s_waitcnt lgkmcnt(4)
    v_mul_f32 v4, s31, v4
    v_mul_f32 v8, s31, v8
    """)
    for fi in range(2):
        if fi == 1: a("s_waitcnt lgkmcnt(0)")
        a(f"s_xor_b32 s34, s33, {fi*4*32768}")
        cs = 16 + 16 * fi
        for j in range(4):
            dst = ACC + 32 * fi + 4 * j
            for ti in range(2):
                acc = ACC + 16 * (fi * 2 + ti)
                m = 2 + 4 * ti; rs = 4 + 4 * ti
                for p in range(2):
                    r = acc + 4 * j + 2 * p
                    a(f"v_pk_fma_f32 {vr(r,2)}, {vr(cs+4*j+2*p,2)}, {vr(m,2)}, {vr(r,2)} op_sel_hi:[1,0,1] neg_lo:[0,1,0] neg_hi:[0,1,0]")
                for p in range(2):
                    r = acc + 4 * j + 2 * p
                    a(f"v_pk_mul_f32 {vr(r,2)}, {vr(r,2)}, {vr(rs,2)} op_sel_hi:[1,0]")
                for p in range(2):
                    r = acc + 4 * j + 2 * p
                    a(f"v_cvt_pk_bf16_f32 v{dst+2*ti+p}, v{r}, v{r+1}")
            a(f"buffer_store_dwordx4 {vr(dst,4)}, v58, {sr(SO,4)}, s34 offen{qsc}")
            if j < 3: a(f"s_add_u32 s34, s34, 32768")
    a(f"s_branch {L('pub')}")
    a.label(L("vpath"))
    a(f"""
    s_sub_u32 s32, s{CG}, 10
    s_lshl_b32 s32, s32, 2
    s_add_u32 s32, s32, s35
    s_lshl_b32 s32, s32, 9
    s_lshl_b32 s33, s{TB}, 2
    s_lshl_b32 s3, s{TW}, 1
    s_add_u32 s33, s33, s3              ; toktile
    s_mul_i32 s33, s33, 40960
    s_add_u32 s33, s33, {VT_OFF}
    v_mul_u32_u24 v58, 10240, v57
    v_lshl_add_u32 v58, v56, 4, v58
    s_lshl_b32 s3, s{TW}, 8
    v_lshl_add_u32 v59, v57, 4, s3
    v_add_u32 v59, {ST_M}, v59
    """)
    mainloop(True, "v")
    stamp(a, 3, st)

    MR = [16, 128]; RR = [32, 144]
    a(f"""
    v_xor_b32 v55, 128, v55
    ds_read_b32 v4, v55
    v_mov_b32 v2, v{CS}
    """)
    for ti in range(2):
        for j in range(4): a(f"ds_read_b128 {vr(MR[ti]+4*j,4)}, v59 offset:{128*ti+32*j}")
        for j in range(4): a(f"ds_read_b128 {vr(RR[ti]+4*j,4)}, v59 offset:{512+128*ti+32*j}")
    for ti in range(2):
        a(f"s_waitcnt lgkmcnt({8 if ti == 0 else 0})")
        for fi in range(2):
            acc = ACC + 16 * (fi * 2 + ti)
            a(f"""
            s_xor_b32 s34, s32, {fi*512}
            s_add_u32 s34, s34, s33
            s_add_u32 s34, s34, {ti*40960}
            """)
            for kb in range(2):
                for p in range(4):
                    r = acc + 8 * kb + 2 * p
                    a(f"v_pk_fma_f32 {vr(r,2)}, {vr(MR[ti]+8*kb+2*p,2)}, {vr(2+2*fi,2)}, {vr(r,2)} op_sel_hi:[1,0,1] neg_lo:[0,1,0] neg_hi:[0,1,0]")
                for p in range(4):
                    r = acc + 8 * kb + 2 * p
                    a(f"v_pk_mul_f32 {vr(r,2)}, {vr(r,2)}, {vr(RR[ti]+8*kb+2*p,2)}")
                for p in range(4):
                    r = acc + 8 * kb + 2 * p
                    a(f"v_cvt_pk_bf16_f32 v{acc+8*kb+p}, v{r}, v{r+1}")
                a(f"buffer_store_dwordx4 {vr(acc+8*kb,4)}, v58, {sr(SO,4)}, s34 offen{qsc}")
                if kb == 0: a("s_add_u32 s34, s34, 20480")
    a.label(L("pub"))
    if b11: a("s_barrier")
    stamp(a, 4, st)
    get_nonce(2)
    a(f"""
    s_lshl_b32 s3, s{CG}, 4
    s_add_u32 s3, s3, s{TB}
    s_lshl_b32 s3, s3, 4
    s_add_u32 s39, s3, {FQ_OFF}
    s_waitcnt vmcnt(0)
    """)
    signal(80, 4, 39, 2)
    a(f"s_branch {L('att')}")
    a.label(L("mpf"))
    srd(a, 20, 6, 640 * 3840 if pfw else 0)
    a(f"""
    s_lshl_b32 s3, s{TB}, 2
    s_add_u32 s3, s3, s{W}
    s_lshl_b32 s3, s3, 10
    s_add_u32 s3, s3, {64*3840}
    v_lshlrev_b32 v2, 4, v0
    """)
    for i in range(34):
        a(f"buffer_load_dwordx4 {vr(64+4*(i%16),4)}, v2, s[20:23], s3 offen")
        a("s_add_u32 s3, s3, 65536")
        if i == 5:
            for _ in range(4): a("s_barrier")
        if i in (9, 13, 17, 21, 25, 29, 33): a("s_barrier")
    if b11: a("s_barrier")
    a("s_waitcnt vmcnt(0)")
    get_nonce(2)
    a.label(L("att"))
    a("s_setprio 2")
    stamp(a, 5, st)
    HEAD, QB = 10, 11
    KA, VA = 2, 3
    M = [4, 5]
    QM = [8, 16]; QT = [12, 20]
    KM = [24, 32]; KT = [28, 36]
    V = [40, 48]
    P = [56, 64]
    S = [72, 88]
    O = [104, 120]
    KD, VD, EP, SA, PA, PL, SG, SGA = 136, 137, 138, 139, 140, 141, 142, 143
    QG, KH, MODE, CNT = 24, 25, 26, 27
    a(f"""
    s_and_b32 s3, s2, 7
    s_lshl_b32 s3, s3, 2
    s_bfe_u32 s{HEAD}, s2, 0x20003
    s_add_u32 s{HEAD}, s{HEAD}, s3
    s_lshr_b32 s{QB}, s2, 5
    s_lshr_b32 s3, s{HEAD}, 1
    s_mul_i32 s3, s3, 5
    s_and_b32 s13, s{HEAD}, 1           ; odd
    s_mul_i32 s14, s13, 3
    s_add_u32 s20, s3, s14
    s_add_u32 s21, s20, 1
    s_add_u32 s22, s3, 2
    s_lshl_b32 s20, s20, 15
    s_lshl_b32 s21, s21, 15
    s_lshl_b32 s22, s22, 15
    s_and_b32 s{QG}, s{W}, 3
    s_lshr_b32 s{KH}, s{W}, 2
    s_cmp_eq_u32 s{QG}, 0
    s_cselect_b32 s32, s20, s21
    s_cmp_eq_u32 s{QG}, 2
    s_cselect_b32 s32, s22, s32
    s_lshl_b32 s3, s{KH}, 14
    s_add_u32 s32, s32, s3
    s_add_u32 s32, s32, {QK_OFF+QK_TYPE}
    s_lshl_b32 s3, s{KH}, 6
    s_add_u32 s3, s3, s{QG}
    s_mul_i32 s3, s3, 20480
    s_mul_i32 s33, s{HEAD}, 320
    s_add_u32 s33, s33, s3
    s_add_u32 s33, s33, {VT_OFF}
    s_lshl_b32 s34, s{KH}, 13
    s_lshl_b32 s3, s{QG}, 10
    s_add_u32 s34, s34, s3
    s_mul_i32 s35, s{QB}, {rot_kv*1024}
    s_and_b32 s35, s35, 0x3fff
    v_lshlrev_b32 v{KD}, 4, v0
    v_lshrrev_b32 v7, 5, v0             ; h
    v_mul_u32_u24 v{VD}, 10240, v7
    v_and_b32 v1, 31, v0
    v_lshl_add_u32 v{VD}, v1, 4, v{VD}
    s_lshl_b32 s28, s{QB}, 3
    s_lshl_b32 s3, s{QG}, 1
    s_add_u32 s28, s28, s3
    s_add_u32 s28, s28, s{KH}
    v_lshlrev_b32 v6, 3, v0
    """)
    nkv = [0]
    def kv_issue():
        t = f"kv{nkv[0]}"; nkv[0] += 1
        return [f"s_mul_i32 s36, s35, 80",
                f"s_add_u32 s36, s36, s33",
                f"s_add_u32 m0, s34, 3072",
                "s_mov_b32 exec_lo, 0x000fffff",
                "s_mov_b32 exec_hi, 0x000fffff",
                f"buffer_load_dwordx4 v{VD}, {sr(SO,4)}, s36 offen{ldsc} lds",
                "s_mov_b64 exec, -1",
                f"s_cmp_eq_u32 s{QG}, 3",
                f"s_cbranch_scc1 {L(t)}",
                "s_mov_b32 m0, s34",
                "s_add_u32 s36, s32, s35",
                f"buffer_load_dwordx4 v{KD}, {sr(SO,4)}, s36 offen{ldsc} lds",
                f"{L(t)}:",
                f"s_xor_b32 s34, s34, {KV_SLOT}",
                "s_add_u32 s35, s35, 1024",
                "s_and_b32 s35, s35, 0x3fff"]
    def fill_rows():
        t = S[0]
        a(f"""
        v_lshrrev_b32 v{t+4}, 4, v0
        v_lshlrev_b32 v{t+4}, 9, v{t+4}
        v_and_b32 v{t+5}, 15, v0
        v_min_u32 v{t+5}, 11, v{t+5}
        v_lshl_add_u32 v{t+4}, v{t+5}, 4, v{t+4}
        s_lshr_b32 s3, s{W}, 1
        s_lshl_b32 s3, s3, 13
        s_and_b32 s36, s{W}, 1
        s_lshl_b32 s36, s36, 11
        s_add_u32 s3, s3, s36
        v_add_u32 v{t+4}, s3, v{t+4}
        v_cmp_eq_u32 vcc, 0, v{t+5}
        v_mov_b32 v{t+6}, 0x3f803f80
        v_cndmask_b32 v{t}, 0, v{t+6}, vcc
        v_mov_b32 v{t+1}, v{t}
        v_mov_b32 v{t+2}, v{t}
        v_mov_b32 v{t+3}, v{t}
        ds_write_b128 v{t+4}, {vr(t,4)} offset:{3072+320}
        """)
    fill_rows()
    a(f"""
    s_lshl_b32 s3, s{KH}, 13
    v_add_u32 v{VA}, s3, v{KD}
    v_mov_b32 v{KT[0]+2}, 0x3f803f80
    v_mov_b32 v{KT[0]+3}, 0x3f80
    v_mov_b32 v{KT[1]+2}, 0x3f803f80
    v_mov_b32 v{KT[1]+3}, 0x3f80
    v_mov_b32 v{EP}, 0
    s_lshl_b32 s3, s{W}, 2
    s_add_u32 s3, s3, {SYNC}
    v_mov_b32 v{SA}, s3
    v_and_b32 v{PA}, 7, v0
    v_lshlrev_b32 v{PA}, 2, v{PA}
    v_add_u32 v{PA}, {SYNC}, v{PA}
    v_mov_b32 v{SG}, 32
    v_mov_b32 v{SGA}, {SYNC+52}
    s_mov_b32 s{MODE}, 0
    """)
    nsb = [0]
    def arrive():
        return [f"v_add_u32 v{EP}, 1, v{EP}", f"ds_write_b32 v{SA}, v{EP}", f"ds_read_b32 v{PL}, v{PA}"]
    spins = []
    def check():
        t = f"sb{nsb[0]}"; nsb[0] += 1
        spins.append(t)
        return ["s_waitcnt lgkmcnt(0)", f"v_cmp_lt_u32 vcc, v{PL}, v{EP}", f"s_cbranch_vccnz {L(t+'s')}", f"{L(t+'r')}:"]
    def swbar():
        for x in arrive() + check(): a(x)
    a(f"""
    s_cmp_lg_u32 s{W}, {99 if nopoll else 0}
    s_cbranch_scc1 {L('pq_r')}
    """)
    a(f"""
    s_lshr_b32 s3, s{HEAD}, 1
    s_mul_i32 s3, s3, 40
    s_lshr_b32 s29, s3, 7
    s_add_u32 s30, s3, 39
    s_lshr_b32 s30, s30, 7
    s_sub_u32 s30, s30, s29              ; 0 or 1
    s_lshl_b32 s30, s30, 8
    s_lshl_b32 s29, s29, 8
    s_add_u32 s29, s29, {FQ_OFF}
    v_and_b32 v{S[1]}, 15, v0
    v_lshlrev_b32 v{S[1]}, 4, v{S[1]}
    v_bfe_u32 v{S[1]+1}, v0, 4, 1
    v_mul_u32_u24 v{S[1]+1}, s30, v{S[1]+1}
    v_add_u32 v{S[1]}, v{S[1]}, v{S[1]+1}
    v_mul_u32_u24 v{S[1]+1}, 1280, v7
    v_add_u32 v{S[1]+1}, v{S[1]}, v{S[1]+1}        ; + type k / v
    s_mov_b32 s31, 0x100000
    """)
    a.label(L("pq_l"))
    a(f"""
    buffer_load_dword v{S[1]+4}, v{S[1]+1}, {sr(SO,4)}, s29 offen offset:1280 sc1
    buffer_load_dword v{S[1]+5}, v{S[1]}, {sr(SO,4)}, s29 offen sc1
    s_sub_u32 s31, s31, 1
    s_cmp_eq_u32 s31, 0
    s_cbranch_scc1 {L('pq_r')}
    s_waitcnt vmcnt(0)
    v_xor_b32 v{S[1]+4}, s{NONCE}, v{S[1]+4}
    v_xor_b32 v{S[1]+5}, s{NONCE}, v{S[1]+5}
    v_or_b32 v{S[1]+4}, v{S[1]+4}, v{S[1]+5}
    v_cmp_ne_u32 vcc, 0, v{S[1]+4}
    s_cbranch_vccz {L('pq_r')}
    s_sleep {qslp}
    s_branch {L('pq_l')}
    """)
    a.label(L("pq_r"))
    swbar()
    a(f"ds_write_b32 v{SGA}, v{SG} offset:12")
    stamp(a, 6, st)
    for x in kv_issue(): a(x)
    for i in range(2):
        a(f"""
        s_xor_b32 s3, s28, {i}
        s_and_b32 s29, s3, 1
        s_lshl_b32 s29, s29, 3
        s_lshr_b32 s3, s3, 1
        s_lshl_b32 s3, s3, 10
        s_add_u32 s3, s3, s29
        s_add_u32 s29, s3, s20
        s_add_u32 s30, s3, s21
        s_add_u32 s31, s3, s22
        buffer_load_dwordx2 {vr(QM[i],2)}, v{KD}, {sr(SO,4)}, s29 offen{ldsc}
        buffer_load_dwordx2 {vr(QM[i]+2,2)}, v{KD}, {sr(SO,4)}, s30 offen{ldsc}
        buffer_load_dwordx2 {vr(QT[i],2)}, v{KD}, {sr(SO,4)}, s31 offen{ldsc}
        """)
    def rdK(b, t):
        return [f"ds_read2_b64 {vr(KM[b],4)}, v{VA} offset0:{t} offset1:{128+t}",
                f"ds_read_b64 {vr(KT[b],2)}, v{VA} offset:{2048+8*t}"]
    def rdV(b, t):
        return [f"ds_read_b128 {vr(V[b],4)}, v{VA} offset:{3072+t*2048}",
                f"ds_read_b128 {vr(V[b]+4,4)}, v{VA} offset:{3072+t*2048+1024}"]
    def qk(kb, q):
        return [f"v_mfma_f32_32x32x16_bf16 {vr(S[q],16)}, {vr(KM[kb],4)}, {vr(QM[q],4)}, 0",
                f"v_mfma_f32_32x32x16_bf16 {vr(S[q],16)}, {vr(KT[kb],4)}, {vr(QT[q],4)}, {vr(S[q],16)}"]
    def pv(vb, q):
        return [f"v_mfma_f32_32x32x16_bf16 {vr(O[q],16)}, {vr(V[vb],4)}, {vr(P[q],4)}, {vr(O[q],16)}",
                f"v_mfma_f32_32x32x16_bf16 {vr(O[q],16)}, {vr(V[vb]+4,4)}, {vr(P[q]+4,4)}, {vr(O[q],16)}"]
    def rowmax(q, dst, init):
        s = S[q]
        if init:
            a(f"v_max3_f32 v{dst}, v{s}, v{s+1}, v{s+2}"); rest = list(range(3, 16))
        else:
            rest = list(range(16))
        while len(rest) >= 2:
            a(f"v_max3_f32 v{dst}, v{dst}, v{s+rest[0]}, v{s+rest[1]}"); rest = rest[2:]
        if rest: a(f"v_max_f32 v{dst}, v{dst}, v{s+rest[0]}")
    def set_shift():
        a("v_cmp_eq_u32 vcc, 0, v7")
        for i in range(2):
            a(f"""
            v_mov_b32 v1, v{M[i]}
            v_permlane32_swap_b32 v{M[i]}, v1
            v_max_f32 v{M[i]}, v{M[i]}, v1
            v_sub_f32 v1, 0, v{M[i]}
            v_and_b32 v6, 0xffff0000, v1
            v_sub_f32 v1, v1, v6
            v_and_b32 v{P[0]}, 0xffff0000, v1
            v_sub_f32 v1, v1, v{P[0]}
            v_lshrrev_b32 v6, 16, v6
            v_or_b32 v6, v6, v{P[0]}
            v_lshrrev_b32 v1, 16, v1
            v_cndmask_b32 v{QT[i]+2}, 0, v6, vcc
            v_cndmask_b32 v{QT[i]+3}, 0, v1, vcc
            """)
    a("s_setprio 2")
    a("s_waitcnt vmcnt(0) lgkmcnt(0)")
    swbar()
    stamp(a, 7, st)
    for x in rdK(0, 0): a(x)
    for x in kv_issue(): a(x)
    a("v_cmp_eq_u32 vcc, s13, v7")
    for i in range(2):
        a(f"""
        v_cndmask_b32 v{QT[i]}, 0, v{QT[i]}, vcc
        v_cndmask_b32 v{QT[i]+1}, 0, v{QT[i]+1}, vcc
        v_mov_b32 v{QT[i]+2}, 0
        v_mov_b32 v{QT[i]+3}, 0
        """)
    a("s_waitcnt lgkmcnt(0)")
    for x in qk(0, 0) + qk(0, 1): a(x)
    def zero_state():
        for i in range(16):
            a(f"v_mov_b32 v{O[0]+i}, 0"); a(f"v_mov_b32 v{O[1]+i}, 0")
    zero_state()
    rowmax(0, M[0], True); rowmax(1, M[1], True)
    set_shift()
    a.label(L("restart"))
    for x in rdK(1, 1) + rdV(0, 0): a(x)
    for x in qk(0, 0): a(x)
    for i in range(8):
        a(f"v_mov_b32 v{P[1]+i}, 0"); a(f"v_mov_b32 v{V[1]+i}, 0")
    a(f"s_mov_b32 s{CNT}, 16")
    def phase(q, mf, extra=None, pre=None):
        extra = extra or {}
        for g in range(4):
            if pre and g in pre:
                for x in pre[g]: a(x)
            a(mf[g])
            for x in extra.get(g, []): a(x)
            for i in range(4): a(f"v_exp_f32 v{S[q]+4*g+i}, v{S[q]+4*g+i}")
            for i in range(2): a(f"v_cvt_pk_bf16_f32 v{P[q]+2*g+i}, v{S[q]+4*g+2*i}, v{S[q]+4*g+2*i+1}")
    a(".p2align 6")
    a.label(L("loop"))
    if epst:
        for k in range(1, 16):
            a(f"s_cmp_lg_u32 s{CNT}, {17-k}"); a(f"s_cbranch_scc1 {L('es'+str(k))}"); stamp(a, k, epst); a.label(L("es" + str(k)))
    pres = [{}, {0: ["s_waitcnt lgkmcnt(0)"]}]
    exs = [{}, {0: rdV(1, 1)}]
    if lowat: pres[lowat[0]].setdefault(lowat[1], []).insert(0, "s_setprio 1")
    phase(0, qk(0, 1) + pv(1, 1), pre=pres[0], extra=exs[0])
    phase(1, qk(1, 0) + pv(0, 0), pre=pres[1], extra=exs[1])
    skipkv = [f"s_cmp_le_u32 s{CNT}, 2", f"s_cbranch_scc1 {L('nokv')}"] + kv_issue() + [f"{L('nokv')}:"]
    phase(0, qk(1, 1) + pv(0, 1),
          pre={0: ["s_waitcnt vmcnt(0) lgkmcnt(0)", "s_barrier", "s_setprio 2", f"v_xor_b32 v{VA}, {KV_SLOT}, v{VA}"]},
          extra={0: rdK(0, 0), 1: skipkv})
    phase(1, qk(0, 0) + pv(1, 0), pre={0: ["s_waitcnt lgkmcnt(0)"]}, extra={0: rdK(1, 1), 1: rdV(0, 0)})
    a(f"""
    s_sub_u32 s{CNT}, s{CNT}, 1
    s_cmp_lg_u32 s{CNT}, 0
    s_cbranch_scc1 {L('loop')}
    """)
    for x in pv(1, 1): a(x)
    stamp(a, 8, st)
    a(f"""
    s_lshl_b32 s3, s{W}, 12
    v_add_u32 v6, s3, v{KD}
    v_mov_b32 v1, 0x5d800000
    s_lshl_b32 s3, s28, 5
    s_add_u32 s3, s3, s{HEAD}
    s_lshl_b32 s29, s3, 10
    s_add_u32 s29, s29, {OM_OFF}
    s_lshl_b32 s37, s3, 8
    s_add_u32 s37, s37, {OT_OFF}
    s_lshl_b32 s38, s{QB}, 5
    s_add_u32 s38, s38, s{HEAD}
    s_lshl_b32 s38, s38, 4
    s_add_u32 s38, s38, {OFL_OFF}
    s_waitcnt lgkmcnt(0)
    v_cmp_nle_f32 vcc, v{O[0]+8}, v1
    v_cmp_nle_f32 s[30:31], v{O[1]+8}, v1
    ds_write_b128 v6, {vr(O[1],4)} offset:{EX_OFF}
    ds_write_b128 v6, {vr(O[1]+4,4)} offset:{EX_OFF+1024}
    ds_write_b128 v6, {vr(O[1]+8,4)} offset:{EX_OFF+2048}
    ds_write_b32 v6, v{M[1]} offset:{EX_OFF+3072}
    s_or_b32 s30, s31, vcc_hi
    v_mov_b32 v1, {SYNC+48}
    s_cmp_eq_u32 s30, 0
    s_cbranch_scc1 {L('noflag')}
    v_mov_b32 v{P[0]}, 1
    ds_write_b32 v1, v{P[0]}
    """)
    a.label(L("noflag"))
    swbar()
    a(f"""
    ds_read_b32 v1, v1
    v_xor_b32 v6, 0x4000, v6
    ds_read_b32 v{S[0]+12}, v6 offset:{EX_OFF+3072}
    ds_read_b128 {vr(S[0]+8,4)}, v6 offset:{EX_OFF+2048}
    ds_read_b128 {vr(S[0],4)}, v6 offset:{EX_OFF}
    ds_read_b128 {vr(S[0]+4,4)}, v6 offset:{EX_OFF+1024}
    s_waitcnt lgkmcnt(3)
    v_readfirstlane_b32 s30, v1
    v_max_f32 v1, v{M[0]}, v{S[0]+12}
    v_sub_f32 v{P[0]}, v{M[0]}, v1
    v_sub_f32 v{P[0]+1}, v{S[0]+12}, v1
    s_andn2_b32 s30, s30, s{MODE}
    s_cmp_lg_u32 s30, 0
    s_cbranch_scc1 {L('slow')}
    v_exp_f32 v{P[0]}, v{P[0]}
    v_exp_f32 v{P[0]+1}, v{P[0]+1}
    s_waitcnt lgkmcnt(2)
    v_mul_f32 v1, v{O[0]+8}, v{P[0]}
    v_fmac_f32 v1, v{S[0]+8}, v{P[0]+1}
    v_mov_b32 v6, v1
    v_permlane32_swap_b32 v1, v6
    v_rcp_f32 v6, v6
    v_lshlrev_b32 v1, 3, v0
    v_mul_f32 v{P[0]}, v{P[0]}, v6
    v_mul_f32 v{P[0]+1}, v{P[0]+1}, v6
    s_waitcnt lgkmcnt(0)
    """)
    for i in range(12): a(f"v_mul_f32 v{O[0]+i}, v{O[0]+i}, v{P[0]}")
    for i in range(12): a(f"v_fmac_f32 v{O[0]+i}, v{S[0]+i}, v{P[0]+1}")
    for i in range(6):
        a(f"v_cvt_pk_bf16_f32 v{S[1]+i}, v{O[0]+2*i}, v{O[0]+2*i+1}")
    a(f"""
    buffer_store_dwordx4 {vr(S[1],4)}, v{KD}, {sr(SO,4)}, s29 offen sc1
    s_mov_b32 exec_hi, 0
    buffer_store_dwordx2 {vr(S[1]+4,2)}, v1, {sr(SO,4)}, s37 offen sc1
    """)
    stamp(a, 9, st)
    a(f"""
    s_waitcnt vmcnt(0)
    """)
    signal(76, 8, 38, P[0])
    stamp(a, 10, st)
    stamp_flush(a, 11, st, W, SO)
    stamp_flush(a, 16, epst or p1st, W, SO)
    a("s_endpgm")
    a.label(L("slow"))
    a(f"""
    s_mov_b32 s{MODE}, 1
    s_waitcnt lgkmcnt(0)
    """)
    swbar()
    fill_rows()
    for i in range(2):
        a(f"v_mov_b32 v{QT[i]+2}, 0"); a(f"v_mov_b32 v{QT[i]+3}, 0"); a(f"v_mov_b32 v{M[i]}, 0xff800000")
    for x in kv_issue(): a(x)
    a(f"s_mov_b32 s{CNT}, 16")
    a.label(L("maxloop"))
    a("s_waitcnt vmcnt(0) lgkmcnt(0)")
    swbar()
    for x in kv_issue(): a(x)
    for x in rdK(0, 0) + rdK(1, 1): a(x)
    a(f"v_xor_b32 v{VA}, {KV_SLOT}, v{VA}")
    a("s_waitcnt lgkmcnt(0)")
    for t in range(2):
        for x in qk(t, 0) + qk(t, 1): a(x)
        rowmax(0, M[0], False); rowmax(1, M[1], False)
    a(f"""
    s_sub_u32 s{CNT}, s{CNT}, 1
    s_cmp_lg_u32 s{CNT}, 0
    s_cbranch_scc1 {L('maxloop')}
    """)
    set_shift()
    zero_state()
    a("s_waitcnt vmcnt(0)")
    swbar()
    a(f"ds_write_b32 v{SGA}, v{SG}")
    for x in kv_issue(): a(x)
    for x in rdK(0, 0): a(x)
    a("s_waitcnt lgkmcnt(0)")
    a(f"s_branch {L('restart')}")
    for t in spins:
        a.label(L(t + "s"))
        a(f"""
        s_sleep {slp}
        ds_read_b32 v{PL}, v{PA}
        s_waitcnt lgkmcnt(0)
        v_cmp_lt_u32 vcc, v{PL}, v{EP}
        s_nop 1
        s_cbranch_vccnz {L(t+'s')}
        s_branch {L(t+'r')}
        """)
    a.label(L("end"))
    a("s_endpgm")
    return kernel_text(name, a.text(), 168, 102)
```

```python
from asmlib import *
from layout import *

def srd(a, base, lo, nbytes):
    a(f"s_mov_b32 s{base}, s{lo}")
    a(f"s_and_b32 s{base+1}, s{lo+1}, 0xffff")
    a(f"s_mov_b32 s{base+2}, {nbytes}")
    a(f"s_mov_b32 s{base+3}, 0x00020000")

K1_THREADS = 768
K1_LDS = 131072 + 2048
ST_M = 131072
ST_RS = 131072 + 512
ST_CS = 131072 + 1024

STAMP_OFF = 64 << 20
DBGK = [0]
def stamp(a, i, on):
    if on == "dbg":
        if i == 0:
            a("s_memrealtime s[60:61]")
            a("s_load_dwordx2 s[64:65], s[0:1], 64")
        return
    if on == "rt": a(f"s_memrealtime s[{60+2*i}:{61+2*i}]")
    elif on: a(f"s_memtime s[{60+2*i}:{61+2*i}]")
def stamp_flush(a, n, on, wreg, srdbase, nwaves=16):
    if not on: return
    if on == "dbg":
        k = DBGK[0]
        a("s_waitcnt vmcnt(0) lgkmcnt(0)")
        a("s_memrealtime s[62:63]")
        a(f"s_add_u32 s64, s64, {512*(2-k)}")
        a("s_addc_u32 s65, s65, 0")
        a("s_and_b32 s65, s65, 0xffff")
        a("s_mov_b32 s66, 256")
        a("s_mov_b32 s67, 0x20000")
        a("s_waitcnt lgkmcnt(0)")
        a("s_and_b32 s60, s60, 0xffffff")
        a("s_and_b32 s62, s62, 0xffffff")
        a("s_sub_u32 s61, 0x1000000, s60")
        a("s_mov_b64 exec, 1")
        a(f"s_cmp_eq_u32 s{wreg}, {8 if k == 1 else 0}")
        a("s_cselect_b32 s66, 256, 0")
        a("v_mov_b32 v1, 0")
        a("v_mov_b32 v2, s61")
        a(f"buffer_atomic_umax v2, v1, s[64:67], 0 offen offset:{16*k}")
        a("v_mov_b32 v3, s60")
        a(f"buffer_atomic_umax v3, v1, s[64:67], 0 offen offset:{16*k+4}")
        a("v_mov_b32 v4, s62")
        a(f"buffer_atomic_umax v4, v1, s[64:67], 0 offen offset:{16*k+8}")
        a("s_mov_b64 exec, -1")
        return
    a("s_waitcnt lgkmcnt(0)")
    a(f"s_mov_b32 s{srdbase+2}, 0x10000000")
    a(f"s_lshl_b32 s58, s2, 4")
    a(f"s_add_u32 s58, s58, s{wreg}")
    a(f"s_lshl_b32 s58, s58, 6")
    a(f"s_add_u32 s58, s58, {STAMP_OFF}")
    a("v_mov_b32 v1, 0")
    for i in range(n):
        a(f"v_mov_b32 v2, s{60+2*i}")
        a(f"buffer_store_dword v2, v1, s[{srdbase}:{srdbase+3}], s58 offen offset:{4*i}")

def gen_k1(name="k1_kernel", st=False, ahead=3, touch=False, nostat=False, sprio=0, mprio=2, nocs=False, nomem=False, dep=0, stouch=0):
    a = Asm()
    stamp(a, 0, st)
    L = lambda s: f"{name}_{s}"
    TB, CG, W = 10, 11, 12
    SX, SW, SO = 16, 20, 24
    a(f"""
    s_load_dwordx4 s[4:7], s[0:1], 0
    s_load_dwordx2 s[8:9], s[0:1], 72
    s_cmp_ge_u32 s2, 256
    s_cbranch_scc1 {L('end')}
    v_lshrrev_b32 v1, 6, v0
    v_and_b32 v0, 63, v0
    s_and_b32 s3, s2, 3
    s_lshl_b32 s3, s3, 2
    v_readfirstlane_b32 s{W}, v1
    s_bfe_u32 s15, s2, 0x20003
    s_add_u32 s{TB}, s3, s15
    s_bfe_u32 s3, s2, 0x10002
    s_lshl_b32 s3, s3, 3
    s_lshr_b32 s{CG}, s2, 5
    s_add_u32 s{CG}, s{CG}, s3
    s_cmp_ge_u32 s{CG}, 15
    s_cbranch_scc1 {L('zero')}
    s_cmp_lt_u32 s{W}, 4
    s_cbranch_scc1 {L('mfma')}
    s_cmp_lt_u32 s{W}, 8
    s_cbranch_scc1 {L('stat')}
    """)
    LW = 28
    a(f"""
    s_setprio 3
    s_sub_u32 s{LW}, s{W}, 8
    v_lshrrev_b32 v1, 3, v0             ; lane>>3
    v_lshrrev_b32 v2, 4, v0             ; lane>>4
    v_and_b32 v3, 7, v0
    v_xor_b32 v3, v3, v2
    s_lshl_b32 s3, s{TB}, 7
    s_lshl_b32 s29, s{LW}, 5
    s_add_u32 s3, s3, s29
    v_add_u32 v1, s3, v1
    v_mul_u32_u24 v1, 1280, v1
    v_lshl_add_u32 v4, v3, 4, v1        ; i=0
    v_xor_b32 v3, 4, v3
    v_lshl_add_u32 v5, v3, 4, v1
    v_add_u32 v5, {8*1280}, v5          ; i=1
    v_add_u32 v6, {16*1280}, v4         ; i=2
    v_add_u32 v7, {16*1280}, v5         ; i=3
    s_lshl_b32 s3, s{LW}, 4
    v_add_u32 v1, s3, v2
    v_mul_u32_u24 v1, 3840, v1
    v_and_b32 v3, 15, v0
    v_lshlrev_b32 v2, 2, v2
    v_xor_b32 v3, v3, v2
    v_lshl_add_u32 v8, v3, 4, v1
    s_lshl_b32 s3, s{CG}, 8
    v_add_u32 v8, s3, v8
    v_add_u32 v9, {4*3840}, v8
    v_add_u32 v10, {8*3840}, v8
    v_add_u32 v11, {12*3840}, v8
    s_lshl_b32 s33, s{LW}, 12
    s_mov_b32 s31, 0
    s_mov_b32 s32, 0
    s_waitcnt lgkmcnt(0)
    """)
    srd(a, SX, 4, 0 if nomem else 2048 * 1280)
    srd(a, SW, 6, 0 if nomem else 640 * 3840)
    def issue():
        for i in range(4):
            a(f"s_add_u32 m0, s33, {16384 + i*1024}")
            a(f"buffer_load_dwordx4 v{8+i}, {sr(SW,4)}, s32 offen lds")
            a(f"s_add_u32 m0, s33, {i*1024}")
            a(f"buffer_load_dwordx4 v{4+i}, {sr(SX,4)}, s31 offen lds")
        a(f"""
        s_add_u32 s33, s33, 32768
        s_and_b32 s33, s33, 0x1ffff
        s_add_u32 s31, s31, 128
        s_add_u32 s32, s32, {64*3840}
        """)
    stamp(a, 1, st)
    issue()
    a("s_mov_b32 s34, 9")
    a.label(L("lloop"))
    issue()
    a(f"""
    s_waitcnt vmcnt(8)
    s_barrier
    s_sub_u32 s34, s34, 1
    s_cmp_lg_u32 s34, 0
    s_cbranch_scc1 {L('lloop')}
    s_waitcnt vmcnt(0)
    s_barrier
    """)
    if st:
        stamp(a, 2, st); srd(a, SO, 8, WS_USED); stamp_flush(a, 3, st, W, SO)
    a("s_endpgm")
    a.label(L("stat"))
    SWV = 28
    a(f"""
    s_setprio {sprio}
    s_sub_u32 s{SWV}, s{W}, 4
    s_and_b32 s29, s{SWV}, 1
    s_lshr_b32 s30, s{SWV}, 1
    s_lshr_b32 s3, s2, 5
    s_lshl_b32 s3, s3, 4
    s_lshl_b32 s31, s30, 3
    s_add_u32 s3, s3, s31
    s_lshl_b32 s31, s{TB}, 7
    s_add_u32 s3, s3, s31
    v_add_u32 v1, s3, v0
    v_mul_u32_u24 v1, 1280, v1          ; x voffset
    s_lshl_b32 s3, s15, 5
    s_lshl_b32 s31, s30, 4
    s_add_u32 s3, s3, s31
    v_add_u32 v2, s3, v0
    v_lshrrev_b32 v3, 1, v2
    v_mul_u32_u24 v3, 3840, v3
    v_and_b32 v2, 1, v2
    v_lshl_add_u32 v3, v2, 7, v3
    s_lshl_b32 s3, s{CG}, 8
    v_add_u32 v3, s3, v3                ; W voffset
    s_cmp_eq_u32 s29, 0
    s_cselect_b32 s31, 8, 16
    s_mov_b32 s32, {64*3840}
    s_cselect_b32 s32, 128, s32
    s_cselect_b64 vcc, -1, 0
    v_cndmask_b32 v1, v3, v1, vcc
    v_cmp_gt_u32 vcc, s31, v0
    v_mov_b32 v2, 0x7f000000
    v_cndmask_b32 v14, v2, v1, vcc
    s_mov_b32 s33, s32
    s_waitcnt lgkmcnt(0)
    s_cmp_eq_u32 s29, 0
    s_cselect_b32 s{SX}, s4, s6
    s_cselect_b32 s{SX+1}, s5, s7
    s_mov_b32 s{SX+2}, {640*3840 if touch else 0}
    s_cselect_b32 s{SX+2}, {2048*1280 if touch else 0}, s{SX+2}
    s_and_b32 s{SX+1}, s{SX+1}, 0xffff
    s_mov_b32 s{SX+3}, 0x00020000
    """)
    if stouch:
        a(f"""
        s_lshl_b32 s3, s{TB}, 7
        s_lshr_b32 s36, s2, 5
        s_lshl_b32 s36, s36, 4
        s_add_u32 s3, s3, s36
        s_lshl_b32 s36, s{SWV}, 2
        s_add_u32 s3, s3, s36
        s_mul_i32 s3, s3, 1280
        s_add_u32 s44, s4, s3
        s_addc_u32 s45, s5, 0
        s_lshl_b32 s3, s15, 4
        s_add_u32 s3, s3, s36
        s_mul_i32 s3, s3, 3840
        s_lshl_b32 s36, s{CG}, 8
        s_add_u32 s3, s3, s36
        s_add_u32 s46, s6, s3
        s_addc_u32 s47, s7, 0
        s_mov_b32 s43, 0
        """)
    nst = [0]
    def stouch1():
        t = f"st{nst[0]}"; nst[0] += 1
        a(f"""
        s_add_u32 s43, s43, 1
        s_cmp_ge_u32 s43, 10
        s_cbranch_scc1 {L(t)}
        s_add_u32 s44, s44, 128
        s_addc_u32 s45, s45, 0
        s_add_u32 s46, s46, {64*3840}
        s_addc_u32 s47, s47, 0
        """)
        for i in range(4):
            a(f"s_load_dword s{48+i}, s[46:47], {i*3840}")
            a(f"s_load_dword s{52+i}, s[46:47], {i*3840+128}")
            a(f"s_load_dword s{56+i}, s[44:45], {i*1280}")
        a.label(L(t))
    for _ in range(stouch - 1): stouch1()
    def touch1():
        if stouch:
            stouch1(); return
        a(f"buffer_load_dword v15, v14, {sr(SX,4)}, s33 offen")
        a("s_add_u32 s33, s33, s32")
    for _ in range(0 if stouch else ahead - 1): touch1()
    srd(a, SO, 8, WS_USED)
    a(f"""
    v_and_b32 v1, 31, v0
    v_lshrrev_b32 v2, 5, v0
    v_bfe_u32 v3, v0, 1, 3
    s_lshl_b32 s3, s{SWV}, 12
    v_lshl_add_u32 v4, v1, 7, s3
    s_and_b32 s35, s{CG}, 3
    s_lshl_b32 s35, s35, 15
    v_add_u32 v4, s35, v4
    """)
    for ks in range(4):
        a(f"""
        v_or_b32 v5, {2*ks}, v2
        v_xor_b32 v5, v5, v3
        v_lshl_add_u32 v{6+ks}, v5, 4, v4
        """)
    a(f"""
    v_and_b32 v5, 15, v0
    v_lshl_add_u32 v4, v5, 7, s3
    v_lshrrev_b32 v12, 4, v0
    v_xor_b32 v13, v12, v3
    v_lshl_add_u32 v10, v13, 4, v4
    v_xor_b32 v11, 64, v10
    """)
    ONE = 48; G = [52, 56]; SM = [60, 64]
    for i in range(4): a(f"v_mov_b32 v{ONE+i}, 0x3f803f80")
    for i in range(16): a(f"v_mov_b32 v{52+i}, 0")
    a("s_mov_b32 s34, 0")
    a(".p2align 6")
    a.label(L("sloop"))
    for par in range(2):
        a("s_barrier")
        for q in range(4): a(f"ds_read_b128 {vr(16+4*q,4)}, v{10+q%2} offset:{par*32768 + (q//2)*2048}")
        a(f"s_cmp_ge_u32 s34, {10-ahead}")
        a(f"s_cselect_b32 s{SX+2}, 0, s{SX+2}")
        touch1()
        a(f"""
        s_cmp_lg_u32 s34, s{CG}
        s_cbranch_scc1 {L('nokeep'+str(par))}
        """)
        for ks in range(4): a(f"ds_read_b128 {vr(32+4*ks,4)}, v{6+ks}")
        a("s_waitcnt lgkmcnt(0)")
        a.label(L("nokeep" + str(par)))
        a("s_add_u32 s34, s34, 1")
        if par == 1:
            a("v_xor_b32 v10, 0x10000, v10"); a("v_xor_b32 v11, 0x10000, v11")
        for q in range(0 if nostat else 4):
            a(f"s_waitcnt lgkmcnt({3-q})")
            f = vr(16 + 4 * q, 4)
            a(f"v_mfma_f32_16x16x32_bf16 {vr(G[q//2],4)}, {f}, {f}, {vr(G[q//2],4)}")
            a(f"v_mfma_f32_16x16x32_bf16 {vr(SM[q//2],4)}, {vr(ONE,4)}, {f}, {vr(SM[q//2],4)}")
        if nostat and not stouch: a("s_waitcnt lgkmcnt(0)")
    a(f"""
    s_cmp_lg_u32 s34, 10
    s_cbranch_scc1 {L('sloop')}
    v_and_b32 v13, 3, v0
    v_cmp_eq_u32 s[36:37], 1, v13
    v_cmp_eq_u32 s[38:39], 2, v13
    v_cmp_eq_u32 s[40:41], 3, v13
    v_bfe_u32 v13, v0, 2, 2
    v_cmp_eq_u32 s[42:43], v13, v12
    s_lshl_b32 s3, s{SWV}, 7
    v_lshl_add_u32 v5, v5, 2, s3
    v_add_u32 v5, {ST_M}, v5
    """)
    for g in range(2):
        q = G[g]; m = SM[g]
        a(f"""
        v_cndmask_b32 v{q}, v{q}, v{q+1}, s[36:37]
        v_cndmask_b32 v{q}, v{q}, v{q+2}, s[38:39]
        v_cndmask_b32 v{q}, v{q}, v{q+3}, s[40:41]
        v_mul_f32 v{m}, {f2u(1/640):#x}, v{m}          ; mean
        v_mul_f32 v{q}, {f2u(1/640):#x}, v{q}
        v_fma_f32 v{q}, -v{m}, v{m}, v{q}              ; var
        v_max_f32 v{q}, 0, v{q}
        v_cvt_pk_bf16_f32 v{q+1}, v{m}, v{q}
        v_lshlrev_b32 v{m}, 16, v{q+1}
        v_and_b32 v{q}, 0xffff0000, v{q+1}
        v_add_f32 v{q}, {f2u(1e-5):#x}, v{q}
        v_cvt_pk_bf16_f32 v{q}, v{q}, v{q}
        v_and_b32 v{q}, 0xffff0000, v{q}
        v_sqrt_f32 v{q}, v{q}
        v_cvt_pk_bf16_f32 v{q}, v{q}, v{q}
        v_and_b32 v{q}, 0xffff0000, v{q}
        v_rcp_f32 v{q}, v{q}                           ; rstd
        """)
    a(f"""
    s_mov_b64 exec, s[42:43]
    ds_write_b32 v5, v{SM[0]}
    ds_write_b32 v5, v{G[0]} offset:512
    ds_write_b32 v5, v{SM[1]} offset:64
    ds_write_b32 v5, v{G[1]} offset:576
    s_mov_b64 exec, -1
    v_lshl_add_u32 v5, v1, 2, s3
    v_add_u32 v5, {ST_M}, v5
    s_waitcnt lgkmcnt(0)
    s_barrier
    ds_read_b32 v10, v5
    ds_read_b32 v12, v5 offset:512
    s_cmp_ge_u32 s{CG}, 10
    s_cbranch_scc1 {L('end')}
    s_lshl_b32 s3, s{TB}, 2
    s_add_u32 s3, s3, s{SWV}
    s_mul_i32 s3, s3, 40960
    s_lshl_b32 s31, s{CG}, 12
    s_add_u32 s31, s31, s3
    s_add_u32 s31, s31, {XN_OFF}
    v_lshlrev_b32 v7, 4, v0
    s_waitcnt lgkmcnt(0)
    v_mul_f32 v10, v10, v12
    v_sub_f32 v10, 0, v10                        ; -m*rs
    """)
    for ks in range(4):
        for i in range(4):
            s_ = 32 + 4 * ks + i; t = 48 + 2 * (i % 2)
            a(f"""
            v_lshlrev_b32 v{t}, 16, v{s_}
            v_and_b32 v{t+1}, 0xffff0000, v{s_}
            v_pk_fma_f32 {vr(t,2)}, {vr(t,2)}, v[12:13], v[10:11] op_sel_hi:[1,0,0]
            v_cvt_pk_bf16_f32 v{s_}, v{t}, v{t+1}
            """)
        a(f"buffer_store_dwordx4 {vr(32+4*ks,4)}, v7, {sr(SO,4)}, s31 offen offset:{ks*1024}")
    a("s_endpgm")
    a.label(L("mfma"))
    TW, FW = 28, 29
    XA = 2
    WA = 10
    SEL = 12
    CS = 48
    BUF = [16, 32, 128, 144]
    ACC = 64
    a(f"""
    s_setprio {mprio}
    s_lshr_b32 s{TW}, s{W}, 1
    s_and_b32 s{FW}, s{W}, 1
    v_and_b32 v56, 31, v0
    v_lshrrev_b32 v57, 5, v0            ; h
    v_bfe_u32 v52, v0, 1, 3             ; f
    s_lshl_b32 s3, s{TW}, 13            ; tw*64*128
    v_lshl_add_u32 v53, v56, 7, s3
    """)
    for ks in range(4):
        a(f"""
        v_or_b32 v54, {2*ks}, v57
        v_xor_b32 v54, v54, v52
        v_lshl_add_u32 v{XA+ks}, v54, 4, v53
        """)
    a(f"""
    v_bfe_u32 v54, v0, 2, 2             ; r
    v_lshl_add_u32 v55, v57, 3, v54     ; 8h+r
    v_lshlrev_b32 v55, 8, v55
    s_lshl_b32 s35, s{FW}, 1
    s_or_b32 s35, s35, s{TW}
    v_xor_b32 v54, s35, v54
    v_lshl_add_u32 v55, v54, 6, v55
    v_bfe_u32 v54, v0, 4, 1
    v_lshl_add_u32 v55, v54, 5, v55
    v_and_b32 v53, 3, v0
    v_lshl_add_u32 v55, v53, 3, v55
    v_add_u32 v{WA}, 0x4000, v55
    v_xor_b32 v{WA+1}, 64, v{WA}
    v_bfe_u32 v53, v0, 2, 1
    v_cmp_eq_u32 vcc, v53, v54
    v_mov_b32 v53, 0x3f803f80
    v_cndmask_b32 v{SEL}, 0, v53, vcc
    v_mov_b32 v{SEL+1}, v{SEL}
    v_mov_b32 v{SEL+2}, v{SEL}
    v_mov_b32 v{SEL+3}, v{SEL}
    """)
    for i in range(4): a(f"v_mov_b32 v{CS+i}, 0")
    for i in range(64): a(f"v_mov_b32 v{ACC+i}, 0")
    a("s_waitcnt lgkmcnt(0)")
    srd(a, SO, 8, WS_USED)

    def reads(buf, par, ks):
        b = BUF[buf]; o = par * 32768
        wo = o + ks * 4096
        return [
            f"ds_read_b64_tr_b16 {vr(b+8,2)}, v{WA} offset:{wo}",
            f"ds_read_b64_tr_b16 {vr(b+10,2)}, v{WA} offset:{wo+1024}",
            f"ds_read_b128 {vr(b,4)}, v{XA+ks} offset:{o}",
            f"ds_read_b128 {vr(b+4,4)}, v{XA+ks} offset:{o+4096}",
            f"ds_read_b64_tr_b16 {vr(b+12,2)}, v{WA+1} offset:{wo}",
            f"ds_read_b64_tr_b16 {vr(b+14,2)}, v{WA+1} offset:{wo+1024}",
        ]
    def mf(buf, fi, ti, vmode):
        b = BUF[buf]; acc = ACC + 16 * (fi * 2 + ti)
        wv = vr(b + 8 + 4 * fi, 4); xv = vr(b + 4 * ti, 4)
        A, B = (xv, wv) if vmode else (wv, xv)
        return f"v_mfma_f32_32x32x16_bf16 {vr(acc,16)}, {A}, {B}, {vr(acc,16)}"
    def csm(cur):
        return f"v_mfma_f32_16x16x32_bf16 {vr(CS,4)}, {vr(SEL,4)}, {vr(BUF[cur]+8,4)}, {vr(CS,4)}"
    def kstep(cur, rd, vmode, pre=(), wait=6):
        a(f"s_waitcnt lgkmcnt({wait})")
        a(mf(cur, 0, 0, vmode))
        for x in pre: a(x)
        [a(x) for x in rd[0:2]]
        a(mf(cur, 0, 1, vmode)); [a(x) for x in rd[2:4]]
        a(mf(cur, 1, 0, vmode)); [a(x) for x in rd[4:6]]
        a(mf(cur, 1, 1, vmode))
        if not nocs: a(csm(cur))
    def mainloop(vmode, tag):
        a("s_mov_b32 s30, 5")
        a(".p2align 6")
        a.label(L("loop" + tag))
        tg = [f"v_xor_b32 v{r}, 0x10000, v{r}" for r in list(range(XA, XA + 4)) + [WA, WA + 1]]
        for par in range(2):
            kstep(0, reads(2, par, 2), vmode)
            kstep(1, reads(3, par, 3), vmode)
            if par == 1:
                a(f"s_cmp_eq_u32 s30, 1")
                a(f"s_cbranch_scc1 {L('fin'+tag)}")
            kstep(2, reads(0, 1 - par, 0), vmode, pre=["s_barrier"] + (tg if par == 1 else []))
            kstep(3, reads(1, 1 - par, 1), vmode)
        a(f"""
        s_sub_u32 s30, s30, 1
        s_branch {L('loop'+tag)}
        """)
        a.label(L("fin" + tag))
        kstep(2, [], vmode)
        a("s_waitcnt lgkmcnt(0)")
        a(csm(3))
        for fi in range(2):
            for ti in range(2): a(mf(3, fi, ti, vmode))
        a(f"""
        s_lshl_b32 s3, s35, 7
        v_lshl_add_u32 v55, v56, 2, s3
        v_add_u32 v55, {ST_CS}, v55
        ds_write_b32 v55, v{CS}
        s_waitcnt lgkmcnt(0)
        s_barrier
        """)
    stamp(a, 1, st)
    a("s_barrier")
    stamp(a, 2, st)
    for x in reads(0, 0, 0) + reads(1, 0, 1): a(x)
    a(f"""
    s_cmp_ge_u32 s{CG}, 10
    s_cbranch_scc1 {L('vpath')}
    """)
    a(f"""
    s_cmp_lt_u32 s{CG}, 5
    s_cselect_b32 s31, {f2u(QSCALE):#x}, 1.0
    s_cselect_b32 s32, 0, 5
    s_cselect_b32 s33, {QK_OFF}, {QK_OFF+QK_TYPE}
    s_sub_u32 s32, s{CG}, s32           ; cgt
    s_lshl_b32 s32, s32, 4
    s_lshl_b32 s3, s35, 2
    s_add_u32 s32, s32, s3
    s_lshl_b32 s32, s32, 15
    s_add_u32 s33, s33, s32
    s_lshl_b32 s3, s{TB}, 2
    s_lshl_b32 s32, s{TW}, 1
    s_add_u32 s3, s3, s32
    s_lshl_b32 s3, s3, 9                ; toktile*512
    s_add_u32 s33, s33, s3
    v_lshlrev_b32 v58, 3, v0
    s_lshl_b32 s3, s{TW}, 8
    v_lshl_add_u32 v59, v56, 2, s3
    v_add_u32 v59, {ST_M}, v59
    s_lshl_b32 s3, s35, 7
    v_lshl_add_u32 v60, v57, 4, s3
    v_add_u32 v60, {ST_CS}, v60
    v_xor_b32 v61, 128, v60
    """)
    mainloop(False, "qk")
    stamp(a, 3, st)
    a(f"""
    ds_read_b32 v2, v59
    ds_read_b32 v4, v59 offset:512
    ds_read_b32 v6, v59 offset:128
    ds_read_b32 v8, v59 offset:640
    """)
    for j in range(4): a(f"ds_read_b128 {vr(16+4*j,4)}, v60 offset:{32*j}")
    for j in range(4): a(f"ds_read_b128 {vr(32+4*j,4)}, v61 offset:{32*j}")
    a(f"""
    s_waitcnt lgkmcnt(4)
    v_mul_f32 v4, s31, v4
    v_mul_f32 v8, s31, v8
    """)
    for fi in range(2):
        if fi == 1: a("s_waitcnt lgkmcnt(0)")
        for ti in range(2):
            acc = ACC + 16 * (fi * 2 + ti)
            cs = 16 + 16 * fi
            m = 2 + 4 * ti; rs = 4 + 4 * ti
            a(f"s_xor_b32 s34, s33, {fi*4*32768}")
            for j in range(4):
                for p in range(2):
                    r = acc + 4 * j + 2 * p
                    a(f"v_pk_fma_f32 {vr(r,2)}, {vr(cs+4*j+2*p,2)}, {vr(m,2)}, {vr(r,2)} op_sel_hi:[1,0,1] neg_lo:[0,1,0] neg_hi:[0,1,0]")
                for p in range(2):
                    r = acc + 4 * j + 2 * p
                    a(f"v_pk_mul_f32 {vr(r,2)}, {vr(r,2)}, {vr(rs,2)} op_sel_hi:[1,0]")
                for p in range(2):
                    r = acc + 4 * j + 2 * p
                    a(f"v_cvt_pk_bf16_f32 v{acc+4*j+p}, v{r}, v{r+1}")
                a(f"buffer_store_dwordx2 {vr(acc+4*j,2)}, v58, {sr(SO,4)}, s34 offen offset:{ti*512}")
                if j < 3: a(f"s_add_u32 s34, s34, 32768")
    stamp(a, 4, st)
    if st: a("s_waitcnt vmcnt(0)")
    stamp(a, 5, st)
    stamp_flush(a, 6, st, W, SO)
    a("s_endpgm")
    a.label(L("vpath"))
    a(f"""
    s_sub_u32 s32, s{CG}, 10
    s_lshl_b32 s32, s32, 2
    s_add_u32 s32, s32, s35
    s_lshl_b32 s32, s32, 9
    s_lshl_b32 s33, s{TB}, 2
    s_lshl_b32 s3, s{TW}, 1
    s_add_u32 s33, s33, s3              ; toktile
    s_mul_i32 s33, s33, 40960
    s_add_u32 s33, s33, {VT_OFF}
    v_mul_u32_u24 v58, 10240, v57
    v_lshl_add_u32 v58, v56, 4, v58
    s_lshl_b32 s3, s{TW}, 8
    v_lshl_add_u32 v59, v57, 4, s3
    v_add_u32 v59, {ST_M}, v59
    """)
    mainloop(True, "v")
    stamp(a, 3, st)
    MR = [16, 128]; RR = [32, 144]
    a(f"""
    v_xor_b32 v55, 128, v55
    ds_read_b32 v4, v55
    v_mov_b32 v2, v{CS}
    """)
    for ti in range(2):
        for j in range(4): a(f"ds_read_b128 {vr(MR[ti]+4*j,4)}, v59 offset:{128*ti+32*j}")
        for j in range(4): a(f"ds_read_b128 {vr(RR[ti]+4*j,4)}, v59 offset:{512+128*ti+32*j}")
    for ti in range(2):
        a(f"s_waitcnt lgkmcnt({8 if ti == 0 else 0})")
        for fi in range(2):
            acc = ACC + 16 * (fi * 2 + ti)
            a(f"""
            s_xor_b32 s34, s32, {fi*512}
            s_add_u32 s34, s34, s33
            s_add_u32 s34, s34, {ti*40960}
            """)
            for kb in range(2):
                for p in range(4):
                    r = acc + 8 * kb + 2 * p
                    a(f"v_pk_fma_f32 {vr(r,2)}, {vr(MR[ti]+8*kb+2*p,2)}, {vr(2+2*fi,2)}, {vr(r,2)} op_sel_hi:[1,0,1] neg_lo:[0,1,0] neg_hi:[0,1,0]")
                for p in range(4):
                    r = acc + 8 * kb + 2 * p
                    a(f"v_pk_mul_f32 {vr(r,2)}, {vr(r,2)}, {vr(RR[ti]+8*kb+2*p,2)}")
                for p in range(4):
                    r = acc + 8 * kb + 2 * p
                    a(f"v_cvt_pk_bf16_f32 v{acc+8*kb+p}, v{r}, v{r+1}")
                a(f"buffer_store_dwordx4 {vr(acc+8*kb,4)}, v58, {sr(SO,4)}, s34 offen")
                if kb == 0: a("s_add_u32 s34, s34, 20480")
    stamp(a, 4, st)
    if st: a("s_waitcnt vmcnt(0)")
    stamp(a, 5, st)
    stamp_flush(a, 6, st, W, SO)
    a("s_endpgm")
    a.label(L("zero"))
    a("s_waitcnt lgkmcnt(0)")
    srd(a, SO, 8, WS_USED)
    a(f"""
    s_cmp_ge_u32 s{W}, 3
    s_cbranch_scc1 {L('end')}
    s_mul_i32 s3, s{TB}, 768
    s_lshl_b32 s15, s{W}, 8
    s_add_u32 s3, s3, s15
    s_add_u32 s3, s3, {FLG_OFF}
    v_lshlrev_b32 v1, 2, v0
    v_mov_b32 v2, 0
    buffer_store_dword v2, v1, {sr(SO,4)}, s3 offen
    """)
    a.label(L("end"))
    a("s_endpgm")
    return kernel_text(name, a.text(), 160, 100 if st else 60)

if __name__ == "__main__":
    print(gen_k1())
```

```python
import sys
from build import *
from fk import *
def fused(path, single=False, **kw):
    n = NAME + "_kernel"
    build([(n, 256, 768, FK_LDS, gen_fk(n, **kw))], path, single)
if __name__ == "__main__":
    fused("f1.s", st=True)
    fused("f1r.s", st="rt")
    fused("f0.s")
    fused("f0s.s", single=True)
```

```python
from mkf import *
fused("g0.s", lst=True)
fused("g1.s", st="rt")
fused("g2.s", st="rt", rp1=(0,0,1))
fused("g3.s", st=True)
fused("h0.s", single=True)
fused("h1.s", single=True, rp1=(0,0,1))
fused("h2.s", single=True, rp1=(0,0,0), pfw=True)
fused("h3.s", single=True, rp1=(3,3,1))
```

```python
from asmlib import *
from layout import *
from k1 import srd, stamp, stamp_flush
from k2 import row192

KV_SLOT = 16384
EX_OFF = 0
FB = 32768
USLOT = 41024
UW1 = 16384
UW3D = 12288 + 32
SYNC = FB + 3 * USLOT
ST_M = SYNC + 320
ST_CS = ST_M + 1024
LNP = ST_M + 1536
FK_LDS = LNP + 256
NONCE = 99

def gen_fk(name, st=False, lowat=(1, 1), fprio=0, sprio=3, dprio=0, slp=1, sigat=(1, 0), sigw=4, ldsc=' sc1', gprio=1, qslp=2, upst=False, qsc=' sc1', fpause=2, nopoll=False, pf=0, dq=3, ptry=3, pfw=False, epst=False, p1st=False, wprio=1, b11=True, rup=(0, 0), pf2=True, tcb=(True,), rp1=(0, 0, 9), hprio=3, lst=False, peel=2, ramp=1, ng=4, pfall=True, pfd=4, pfn=12, pfh=False, pfc=False, pf0=False, osc=''):
    a = Asm()
    L = lambda s: f"{name}_{s}"
    rot_up = (0, 0); rot_dn = (0, 0); rot_kv = 0; nomem = False
    TB, CG, W = 10, 11, 12
    SO = 16
    stamp(a, 0, st or epst or p1st or lst)
    a(f"""
    s_load_dwordx4 s[4:7], s[0:1], 0
    s_load_dwordx4 s[92:95], s[0:1], 64
    s_cmp_ge_u32 s2, 256
    s_cbranch_scc1 {L('end')}
    v_lshrrev_b32 v1, 6, v0
    v_and_b32 v0, 63, v0
    s_and_b32 s3, s2, 3
    s_lshl_b32 s3, s3, 2
    v_readfirstlane_b32 s{W}, v1
    s_bfe_u32 s15, s2, 0x20003
    s_add_u32 s{TB}, s3, s15
    s_bfe_u32 s3, s2, 0x10002
    s_lshl_b32 s3, s3, 3
    s_lshr_b32 s{CG}, s2, 5
    s_add_u32 s{CG}, s{CG}, s3
    s_mov_b32 s{SO+2}, {WS_USED}
    s_mov_b32 s{SO+3}, 0x00020000
    s_cmp_lt_u32 s{W}, 4
    s_cbranch_scc1 {L('mfma')}
    s_cmp_lt_u32 s{W}, 8
    s_cbranch_scc1 {L('help')}
    """)
    def ws_srd():
        a(f"s_mov_b32 s{SO}, s94"); a(f"s_and_b32 s{SO+1}, s95, 0xffff")
    nsig = [0]
    def signal(cnt_off, n, soff, t0, issue=None):
        t = f"sg{nsig[0]}"; nsig[0] += 1
        a(f"""
        s_mov_b64 exec, 1
        v_mov_b32 v{t0}, {SYNC+cnt_off}
        v_mov_b32 v{t0+1}, 1
        ds_add_rtn_u32 v{t0+1}, v{t0}, v{t0+1}
        v_mov_b32 v{t0}, 0
        v_mov_b32 v{t0+2}, s{NONCE}
        s_waitcnt lgkmcnt(0)
        v_cmp_eq_u32 vcc, {n-1}, v{t0+1}
        s_cbranch_vccz {L(t)}
        """)
        a(f"buffer_store_dword v{t0+2}, v{t0}, {sr(SO,4)}, s{soff} offen sc1")
        a.label(L(t))
        a("s_mov_b64 exec, -1")
    def get_nonce(tmp):
        a(f"""
        v_mov_b32 v{tmp}, {SYNC+60}
        ds_read_b32 v{tmp}, v{tmp}
        s_waitcnt lgkmcnt(0)
        v_readfirstlane_b32 s{NONCE}, v{tmp}
        """)
    vm = VM(a)
    LW = 24
    SX, SW = 48, 20
    SWU, SXN, SW2 = 40, 44, 48
    TBU, FBK, TK, CB = 4, 5, 6, 7
    UP = 5; DN = 8
    XA, WA, HA, W2A, H2, FEP, FSA, FPA, FPL, JA, JV = 13, 14, 15, 16, 17, 18, 19, 20, 21, 22, 23
    NB = 59; DS = 57
    FBUF = [24, 44]
    ACC = 64
    LX, LWV = 160, 164
    a(f"""
    s_load_dwordx4 s[52:55], s[0:1], 32
    s_setprio 3
    s_sub_u32 s{LW}, s{W}, 8
    v_lshrrev_b32 v1, 3, v0             ; lane>>3
    v_lshrrev_b32 v2, 4, v0             ; lane>>4
    v_and_b32 v3, 7, v0
    v_xor_b32 v3, v3, v2
    s_lshl_b32 s3, s{TB}, 7
    s_lshl_b32 s29, s{LW}, 5
    s_add_u32 s3, s3, s29
    v_add_u32 v1, s3, v1
    v_mul_u32_u24 v1, 1280, v1
    v_lshl_add_u32 v{LX}, v3, 4, v1
    v_xor_b32 v3, 4, v3
    v_lshl_add_u32 v{LX+1}, v3, 4, v1
    v_add_u32 v{LX+1}, {8*1280-1024}, v{LX+1}
    v_add_u32 v{LX+2}, {16*1280-2048}, v{LX}
    v_add_u32 v{LX+3}, {16*1280-2048}, v{LX+1}
    s_lshl_b32 s3, s{LW}, 4
    v_add_u32 v1, s3, v2
    v_mul_u32_u24 v1, 3840, v1
    v_and_b32 v3, 15, v0
    v_lshlrev_b32 v2, 2, v2
    v_xor_b32 v3, v3, v2
    v_lshl_add_u32 v{LWV}, v3, 4, v1
    s_lshl_b32 s3, s{CG}, 8
    v_add_u32 v{LWV}, s3, v{LWV}
    v_add_u32 v{LWV+1}, {4*3840-1024}, v{LWV}
    v_add_u32 v{LWV+2}, {8*3840-2048}, v{LWV}
    v_add_u32 v{LWV+3}, {12*3840-3072}, v{LWV}
    s_lshl_b32 s34, s{LW}, 12
    s_mov_b32 s8, s34
    s_add_u32 s9, s34, 98304
    s_lshr_b32 s3, s2, 5
    s_mul_i32 s3, s3, {rp1[0]}
    s_mul_i32 s32, s15, {rp1[1]}
    s_add_u32 s32, s32, s3
    s_and_b32 s3, s2, {3 if rp1[2] == 9 else 7}
    s_mul_i32 s3, s3, {5 if rp1[2] == 9 else rp1[2]}
    s_lshr_b32 s3, s3, {1 if rp1[2] == 9 else 0}
    s_add_u32 s32, s32, s3
    s_mul_i32 s3, s32, 205
    s_lshr_b32 s3, s3, 11
    s_mul_i32 s3, s3, 10
    s_sub_u32 s32, s32, s3
    s_mul_i32 s33, s32, {64*3840}
    s_lshl_b32 s32, s32, 7
    s_waitcnt lgkmcnt(0)
    """)
    srd(a, SX, 4, 2048 * 1280)
    srd(a, SW, 6, 640 * 3840)
    a(f"""
    s_cmp_eq_u32 s{CG}, 15
    s_cselect_b32 s{SX+2}, 0, s{SX+2}
    s_cselect_b32 s{SW+2}, 0, s{SW+2}
    """)
    def issue(tag=None):
        iss = (lambda t: vm.issue(t, tag)) if tag else a
        a(f"s_add_u32 m0, s34, 16384")
        for i in range(4): iss(f"buffer_load_dwordx4 v{LWV+i}, {sr(SW,4)}, s33 offen offset:{i*1024} lds")
        a(f"s_mov_b32 m0, s34")
        for i in range(4): iss(f"buffer_load_dwordx4 v{LX+i}, {sr(SX,4)}, s32 offen offset:{i*1024} lds")
        a(f"""
        s_add_u32 s34, s34, 32768
        s_cmp_eq_u32 s34, s9
        s_cselect_b32 s34, s8, s34
        s_add_u32 s32, s32, 128
        s_add_u32 s33, s33, {64*3840}
        s_cmp_eq_u32 s32, 1280
        s_cselect_b32 s32, 0, s32
        s_cselect_b32 s33, 0, s33
        """)
    issue()
    ws_srd()
    a(f"""
    s_lshr_b32 s25, s{LW}, 1
    s_and_b32 s26, s{LW}, 1
    v_lshlrev_b32 v2, 4, v0             ; lane*16
    v_lshrrev_b32 v1, 5, v0             ; h
    v_and_b32 v4, 31, v0
    v_mov_b32 v{FEP}, 0
    s_lshl_b32 s3, s{LW}, 2
    s_add_u32 s3, s3, {SYNC+32}
    v_mov_b32 v{FSA}, s3
    ds_write_b32 v{FSA}, v{FEP}
    v_mov_b32 v11, {SYNC+48}
    ds_write_b32 v11, v{FEP}
    ds_write_b32 v11, v{FEP} offset:4
    ds_write_b32 v11, v{FEP} offset:16
    v_mov_b32 v12, -1
    ds_write_b32 v11, v12 offset:20
    ds_write_b32 v11, v{FEP} offset:24
    ds_write_b32 v11, v{FEP} offset:28
    ds_write_b32 v11, v{FEP} offset:32
    ds_write_b32 v11, v{FEP} offset:36
    v_and_b32 v11, 7, v0
    v_lshlrev_b32 v11, 2, v11
    v_add_u32 v11, {SYNC}, v11
    ds_write_b32 v11, v{FEP}
    """)
    b = a
    row192(b, UP, 3072, 11, 12)
    b(f"""
    s_mov_b32 s{TBU}, s{CG}
    s_mov_b32 s{FBK}, s{TB}
    s_lshl_b32 s36, s{TBU}, 2
    s_add_u32 s36, s36, s{LW}
    s_mul_i32 s36, s36, 40960
    s_add_u32 s36, s36, {XN_OFF}
    s_mul_i32 s37, s{FBK}, 192
    s_mul_i32 s3, s25, {2*16*3072}
    s_add_u32 s37, s37, s3               ; W cursor
    s_mov_b32 s28, s36
    s_add_u32 s29, s36, 40960
    s_mov_b32 s30, s37
    s_lshr_b32 s3, s2, 5
    s_mul_i32 s3, s3, {rup[0]}
    s_bfe_u32 s31, s2, 0x20003
    s_mul_i32 s31, s31, {rup[1]}
    s_add_u32 s31, s31, s3
    s_mul_i32 s3, s31, 26
    s_lshr_b32 s3, s3, 8
    s_mul_i32 s3, s3, 10
    s_sub_u32 s31, s31, s3
    s_lshl_b32 s3, s31, 12
    s_add_u32 s36, s36, s3
    s_mul_i32 s3, s31, {64*3072}
    s_add_u32 s37, s37, s3
    s_lshl_b32 s38, s{LW}, 12
    s_add_u32 s38, s38, {FB}
    s_mul_i32 s39, s26, {UW3D}
    s_mul_i32 s3, s25, 6144
    s_add_u32 s39, s39, s3
    s_add_u32 s39, s39, {FB+UW1}
    s_mov_b32 s{DS}, {2*USLOT}
    s_cmp_eq_u32 s26, 0
    s_cselect_b32 s{SWU}, s52, s54
    s_cselect_b32 s{SWU+1}, s53, s55
    s_and_b32 s{SWU+1}, s{SWU+1}, 0xffff
    s_mov_b32 s{SWU+2}, {640*3072}
    s_mov_b32 s{SWU+3}, 0x00020000
    s_mov_b32 s{SXN}, s{SO}
    s_mov_b32 s{SXN+1}, s{SO+1}
    s_mov_b32 s{SXN+2}, {WS_USED}
    s_mov_b32 s{SXN+3}, 0x00020000
    v_and_b32 v{FPA}, 3, v0
    v_lshlrev_b32 v{FPA}, 2, v{FPA}
    v_add_u32 v{FPA}, {SYNC+32}, v{FPA}
    """)
    row192(b, DN, 1280, 11, 12)
    b(f"""
    s_lshl_b32 s3, s25, 13
    s_add_u32 s3, s3, {FB+2*USLOT}
    v_add_u32 v{XA}, s3, v2
    v_bfe_u32 v11, v0, 2, 2              ; r
    v_lshl_add_u32 v12, v1, 3, v11       ; 8h+r
    v_mul_u32_u24 v12, 192, v12
    v_and_b32 v22, 3, v0
    v_lshl_add_u32 v12, v22, 3, v12
    v_bfe_u32 v23, v0, 4, 1              ; m
    v_mul_u32_u24 v3, {UW3D}, v23
    v_add_u32 v12, v12, v3
    s_mul_i32 s3, s26, 96
    s_add_u32 s3, s3, {FB+UW1+2*USLOT}
    v_add_u32 v{WA}, s3, v12
    s_mul_i32 s15, s{LW}, 30720
    s_add_u32 s15, s15, {FB}
    v_add_u32 v{HA}, s15, v2
    v_lshl_add_u32 v12, v1, 2, v11       ; 4h+r
    v_mul_u32_u24 v12, 192, v12
    v_lshl_add_u32 v12, v22, 3, v12
    v_lshl_add_u32 v12, v23, 5, v12
    v_add_u32 v{W2A}, s15, v12
    v_add_u32 v{H2}, {96*1024-1024}, v2
    s_mov_b32 s14, {2*USLOT}
    v_mov_b32 v{JA}, {SYNC+52}
    s_mov_b32 s{NB}, 0
    v_and_b32 v11, 15, v0
    v_lshlrev_b32 v11, 4, v11
    s_lshl_b32 s35, s{TBU}, 8
    s_add_u32 s35, s35, {FA_OFF}
    """)
    for i in range(4): a(f"v_mov_b32 v{24+i}, 0")
    for i in range(6): a(f"v_mfma_f32_32x32x16_bf16 {vr(ACC+16*i,16)}, v[24:27], v[24:27], 0")
    a(f"""
    s_cmp_eq_u32 s{CG}, 15
    s_cbranch_scc1 {L('fidle')}
    s_mov_b32 s13, 8
    """)
    if lst:
        for k in range(8):
            issue()
            a("s_waitcnt vmcnt(8) lgkmcnt(0)")
            stamp(a, 2 * k + 1, lst) if k < 7 else None
            a("s_barrier")
            stamp(a, 2 * k + 2, lst) if k < 7 else stamp(a, 15, lst)
        stamp_flush(a, 16, lst, W, SO)
        a(f"s_mov_b32 s{SO+2}, {WS_USED}"); a("v_lshlrev_b32 v2, 4, v0"); a("v_lshrrev_b32 v1, 5, v0"); a("s_waitcnt vmcnt(0)")
    else:
        a.label(L("lloop"))
        issue()
        a(f"""
        s_waitcnt vmcnt(8) lgkmcnt(0)
        s_barrier
        s_sub_u32 s13, s13, 1
        s_cmp_lg_u32 s13, 0
        s_cbranch_scc1 {L('lloop')}
        """)
    get_nonce(12)
    vm.q = ["p8"] * 8
    issue("p9")
    vm.wait("p8")
    a("s_barrier")
    a.label(L("pa_r"))
    def f_dmas(tag):
        g = []
        for k in range(2):
            for p in range(3):
                it = [(tag, f"buffer_load_dwordx4 v{UP+p}, {sr(SWU,4)}, s{37 if k == 0 else 58} offen offset:{p*1024} lds")]
                if p == 0:
                    it = ([f"s_add_u32 m0, s39, s{DS}"] if k == 0 else [f"s_add_u32 m0, m0, 3072", f"s_add_u32 s58, s37, {16*3072}"]) + it
                g.append(it)
        for ks in range(4):
            it = [(tag, f"buffer_load_dwordx4 v2, {sr(SXN,4)}, s36 offen offset:{ks*1024}{ldsc} lds")]
            if ks == 0: it = [f"s_add_u32 m0, s38, s{DS}"] + it
            g.append(it)
        g[-1] = g[-1] + ["s_add_u32 s36, s36, 4096", f"s_add_u32 s37, s37, {64*3072}", "s_cmp_eq_u32 s36, s29",
                         "s_cselect_b32 s36, s28, s36", "s_cselect_b32 s37, s30, s37",
                         f"s_sub_u32 s{DS}, s{DS}, {USLOT}", f"s_cselect_b32 s{DS}, {2*USLOT}, s{DS}"]
        return g
    def emit_group(grp, track=True):
        for x in grp:
            if isinstance(x, tuple):
                if track: vm.issue(x[1], x[0])
                else: a(x[1])
            else: a(x)
    for g in f_dmas("f0"): emit_group(g)
    vm.wait("p9")
    def do_pause():
        if fpause:
            a.label(L("fp_l"))
            a(f"""
            s_sleep 2
            ds_read_b32 v{JV}, v{JA} offset:{12 if fpause == 1 else 28}
            s_waitcnt lgkmcnt(0)
            v_cmp_gt_u32 vcc, {1 if fpause == 1 else 4}, v{JV}
            s_cmp_eq_u32 s{CG}, 15
            s_cbranch_scc1 {L('fp_r')}
            s_cbranch_vccnz {L('fp_l')}
            """)
            a.label(L("fp_r"))
    if peel:
        a(f"""
        s_cmp_eq_u32 s{CG}, 15
        s_cbranch_scc1 {L('f9a')}
        s_barrier
        """)
        a.label(L("f9a"))
        for g in f_dmas("f1"): emit_group(g)
        a(f"""
        s_cmp_eq_u32 s{CG}, 15
        s_cbranch_scc1 {L('f9')}
        s_barrier
        s_barrier
        """)
        a.label(L("f9"))
        a(f"s_setprio {gprio}")
    else:
        a(f"""
        s_cmp_eq_u32 s{CG}, 15
        s_cbranch_scc1 {L('f9')}
        s_barrier
        s_barrier
        s_barrier
        """)
        a.label(L("f9"))
        do_pause()
        a(f"s_setprio {gprio}")
        for g in f_dmas("f1"): emit_group(g)
    fspins = []
    def farrive(o=0):
        return [f"v_add_u32 v{FEP+o}, 1, v{FEP+o}", f"ds_write_b32 v{FSA+o}, v{FEP+o}", f"ds_read_b32 v{FPL+o}, v{FPA+o}"]
    def fcheck(o=0):
        t = f"fb{len(fspins)}"; fspins.append((t, o))
        return ["s_waitcnt lgkmcnt(0)", f"v_cmp_lt_u32 vcc, v{FPL+o}, v{FEP+o}", f"s_cbranch_vccnz {L(t+'s')}", f"{L(t+'r')}:"]
    njoin = [0]
    def jread(o=0): return [f"ds_read_b32 v{JV+o}, v{JA+o}"]
    def jtest(o=0):
        t = f"j{njoin[0]}"; njoin[0] += 1
        return [f"v_cmp_lt_u32 vcc, s{NB}, v{JV+o}", f"s_cbranch_vccz {L(t)}", "s_barrier", f"s_add_u32 s{NB}, s{NB}, 1", f"{L(t)}:"]
    MD = 56
    ncb = [0]
    def cbar():
        t = f"cb{ncb[0]}"; ncb[0] += 1
        return [f"s_cmp_ge_u32 s{NB}, s{MD}", f"s_cbranch_scc1 {L(t)}", "s_barrier", f"s_add_u32 s{NB}, s{NB}, 1", f"{L(t)}:"]
    a(f"s_mov_b32 s{MD}, 0")
    vm.wait("f0")
    for x in farrive() + fcheck(): a(x)
    stamp(a, 1, st)
    def up_reads(b, ks):
        f = FBUF[b]; out = []
        out.append(f"ds_read_b128 {vr(f,4)}, v{XA} offset:{ks*1024}")
        for ft in range(3):
            for half in range(2):
                out.append(f"ds_read_b64_tr_b16 {vr(f+8+4*ft+2*half,2)}, v{WA} offset:{ks*3072 + half*768 + ft*32}")
            if ft == 0: out.append(f"ds_read_b128 {vr(f+4,4)}, v{XA} offset:{4096+ks*1024}")
        return out
    def mfmas(b, first=False):
        f = FBUF[b]; out = []
        for ft in range(3):
            for tt in range(2):
                acc = ACC + 16 * (ft * 2 + tt)
                c = "0" if first else vr(acc, 16)
                out.append(f"v_mfma_f32_32x32x16_bf16 {vr(acc,16)}, {vr(f+8+4*ft,4)}, {vr(f+4*tt,4)}, {c}")
        return out
    def kstep(b, nxt, groups, track, first=False, ng=4, join=False):
        a("s_waitcnt lgkmcnt(0)")
        m = mfmas(b, first)
        for i in range(6):
            a(m[i])
            if join and i == 0:
                for x in jtest(): a(x)
            if join and i == 5:
                for x in jread(): a(x)
            if i < 4:
                for x in nxt[2*i:2*i+2]: a(x)
            if i >= 6 - ng and groups: emit_group(groups.pop(0), track)
    for x in up_reads(0, 0): a(x)
    a("s_mov_b32 s13, 10")
    def adv_rd():
        a(f"""
        s_sub_u32 s3, s14, {USLOT}
        s_cselect_b32 s3, {2*USLOT}, s3
        s_sub_u32 s27, s3, s14
        s_mov_b32 s14, s3
        v_add_u32 v{XA}, s27, v{XA}
        v_add_u32 v{WA}, s27, v{WA}
        """)
    if peel == 1:
        for ks in range(3): kstep(ks % 2, up_reads((ks + 1) % 2, ks + 1), [], False)
        do_pause()
        for g in f_dmas("f"): emit_group(g, False)
        a(f"s_branch {L('upmid')}")
    if peel == 2:
        if not pfall:
            a(f"""
            s_cmp_eq_u32 s{CG}, 15
            s_cbranch_scc1 {L('uploop')}
            """)
        for ks in range(3): kstep(ks % 2, up_reads((ks + 1) % 2, ks + 1), [], False)
        adv_rd()
        a("s_waitcnt vmcnt(0) lgkmcnt(0)")
        for x in farrive() + fcheck(): a(x)
        m_ = mfmas(1); nx_ = up_reads(0, 0)
        for i in range(6):
            a(m_[i])
            for x in nx_[2*i:2*i+2]: a(x)
        for ks in range(3): kstep(ks % 2, up_reads((ks + 1) % 2, ks + 1), [], False)
        a.label(L("fq_l"))
        a(f"""
        s_sleep 1
        ds_read_b32 v{JV}, v{JA} offset:12
        s_waitcnt lgkmcnt(0)
        v_cmp_gt_u32 vcc, 33, v{JV}
        s_cbranch_vccnz {L('fq_l')}
        s_setprio 3
        """)
        for g in f_dmas("f") + f_dmas("f"): emit_group(g, False)
        a(f"""
        s_mov_b32 s{MD}, 16
        s_mov_b32 s13, 9
        s_branch {L('upmid')}
        """)
    a(".p2align 6")
    a.label(L("uploop"))
    if upst:
        for k in range(1, 10):
            a(f"s_cmp_lg_u32 s13, {10-k}"); a(f"s_cbranch_scc1 {L('us'+str(k))}"); stamp(a, 1 + k, st); a.label(L("us" + str(k)))
    a(f"""
    s_cmp_le_u32 s13, 2
    s_cselect_b32 s{SWU+2}, 0, s{SWU+2}
    s_cselect_b32 s{SXN+2}, 0, s{SXN+2}
    """)
    groups = f_dmas("f")
    for ks in range(3): kstep(ks % 2, up_reads((ks + 1) % 2, ks + 1), groups, False, ng=(4, 3, 3)[ks])
    assert not groups
    a.label(L("upmid"))
    m = mfmas(1)
    a(f"""
    s_sub_u32 s3, s14, {USLOT}
    s_cselect_b32 s3, {2*USLOT}, s3
    s_sub_u32 s27, s3, s14
    s_mov_b32 s14, s3
    s_setprio 3
    v_add_u32 v{XA}, s27, v{XA}
    v_add_u32 v{WA}, s27, v{WA}
    s_cmp_eq_u32 s{MD}, 0
    s_cbranch_scc1 {L('gsync')}
    s_setprio {fprio}
    s_waitcnt vmcnt(10) lgkmcnt(0)
    s_barrier
    s_add_u32 s{NB}, s{NB}, 1
    """)
    a.label(L("gback"))
    nx = up_reads(0, 0)
    for i in range(6):
        a(m[i])
        for x in nx[2*i:2*i+2]: a(x)
    a(f"""
    s_sub_u32 s13, s13, 1
    s_cmp_lg_u32 s13, 0
    s_cbranch_scc1 {L('uploop')}
    """)
    st_save = st
    if upst:
        stamp(a, 11, st); st = False
    stamp(a, 2, st)
    a(f"""
    s_setprio {sprio}
    s_load_dwordx2 s[52:53], s[0:1], 48
    s_load_dwordx2 s[92:93], s[0:1], 0
    s_load_dwordx2 s[94:95], s[0:1], 16
    s_load_dwordx2 s[96:97], s[0:1], 56
    s_mov_b32 s{SWU}, {f2u(-1.4426950408889634):#x}
    s_lshl_b32 s3, s{TBU}, 2
    s_lshl_b32 s36, s25, 1
    s_add_u32 s3, s3, s36
    s_mul_i32 s36, s3, 96                ; toktile*96
    s_mul_i32 s3, s{FBK}, 6
    s_add_u32 s36, s36, s3
    s_mul_i32 s3, s26, 3
    s_add_u32 s36, s36, s3
    s_lshl_b32 s36, s36, 10
    s_add_u32 s36, s36, {H_OFF}
    s_add_u32 s37, s36, {96*1024}
    s_waitcnt lgkmcnt(0)
    """)
    vm.q = ["z"] * 10
    srd(a, SW2, 52, 1536 * 1280)
    for ft in range(3):
        for tt in range(2):
            n = ft * 2 + tt
            g = ACC + 16 * n; u = g + 8
            T = 24 + 8 * (n % 2)
            for i in range(8): a(f"v_mul_f32 v{T+i}, s{SWU}, v{g+i}")
            for i in range(8): a(f"v_exp_f32 v{T+i}, v{T+i}")
            for i in range(8): a(f"v_mul_f32 v{g+i}, v{g+i}, v{u+i}")
            for i in range(8): a(f"v_add_f32 v{T+i}, 1.0, v{T+i}")
            for i in range(8): a(f"v_rcp_f32 v{T+i}, v{T+i}")
            for i in range(8): a(f"v_mul_f32 v{g+i}, v{g+i}, v{T+i}")
            for i in range(4): a(f"v_cvt_pk_bf16_f32 v{u+i}, v{g+2*i}, v{g+2*i+1}")
            vm.issue(f"buffer_store_dwordx4 {vr(u,4)}, v2, {sr(SO,4)}, s{36+tt} offen offset:{ft*1024} sc1", "hs")
    stamp(a, 3, st)
    vm.wait("z")
    for x in farrive(): a(x)
    a(f"""
    s_lshl_b32 s3, s{TBU}, 4
    s_add_u32 s3, s3, s{FBK}
    s_lshl_b32 s3, s3, 4
    s_add_u32 s55, s3, {FLG_OFF}
    v_mov_b32 v11, 0
    v_mov_b32 v12, s{NONCE}
    s_lshr_b32 s3, s2, 3
    s_cmp_ge_u32 s3, 28
    s_cselect_b32 s{SW2+2}, 0, s{SW2+2}
    s_lshr_b32 s{CB}, s3, 2
    s_and_b32 s3, s3, 3
    s_and_b32 s{TK}, s2, 7
    s_lshl_b32 s{TK}, s{TK}, 2
    s_add_u32 s{TK}, s{TK}, s3
    s_mul_i32 s30, s{LW}, {24*16*1280}
    s_mul_i32 s3, s{CB}, 192
    s_add_u32 s30, s30, s3
    s_add_u32 s31, s30, {24*16*1280}
    s_mul_i32 s28, s{TK}, 192
    s_mul_i32 s3, s{LW}, 24
    s_add_u32 s28, s28, s3
    s_lshl_b32 s28, s28, 10
    s_add_u32 s28, s28, {H_OFF}
    s_add_u32 s29, s28, {24*1024}
    s_mul_i32 s58, s{CB}, {rot_dn[0]}
    s_and_b32 s3, s{TK}, 3
    s_mul_i32 s3, s3, {rot_dn[1]}
    s_add_u32 s58, s58, s3
    s_cmp_ge_u32 s58, 24
    s_cselect_b32 s3, 24, 0
    s_sub_u32 s58, s58, s3
    s_lshl_b32 s36, s58, 10
    s_add_u32 s36, s36, s28              ; h cursor
    s_mul_i32 s37, s58, {16*1280}
    s_add_u32 s37, s37, s30              ; w2 cursor
    s_lshr_b32 s3, s{TK}, 1
    s_lshl_b32 s3, s3, 8
    s_lshl_b32 s39, s{LW}, 6
    s_add_u32 s39, s39, s3
    s_add_u32 s39, s39, {FLG_OFF}
    """)
    for x in fcheck(): a(x)
    def w2_groups(j, adv=True):
        o = (j % 6) * 5120; g = []
        for p in range(3):
            it = [(f"d{j}", f"buffer_load_dwordx4 v{DN+p}, {sr(SW2,4)}, s37 offen offset:{p*1024} lds")]
            if p == 0: it = [f"s_add_u32 m0, s15, {o}"] + it
            if p == 2 and adv: it += [f"s_add_u32 s37, s37, {16*1280}", "s_cmp_eq_u32 s37, s31", "s_cselect_b32 s37, s30, s37"]
            g.append(it)
        return g
    def h_groups(j, both=False):
        o = (j % 6) * 5120 + 3072
        adv = ["s_add_u32 s36, s36, 1024", "s_cmp_eq_u32 s36, s29", "s_cselect_b32 s36, s28, s36"]
        if both: adv = [f"s_add_u32 s37, s37, {16*1280}"] + adv + ["s_cselect_b32 s37, s30, s37"]
        return [[f"s_add_u32 m0, s15, {o}", (f"d{j}", f"buffer_load_dwordx4 v2, {sr(SO,4)}, s36 offen{ldsc} lds")],
                [(f"d{j}", f"buffer_load_dwordx4 v{H2}, {sr(SO,4)}, s36 offen offset:1024{ldsc} lds")] + adv]
    for j in range(2):
        for gg in w2_groups(j): emit_group(gg)
    a(f"s_setprio {dprio}")
    if tcb[0]:
        for x in cbar(): a(x)
    a("s_setprio 3")
    vm.wait("hs")
    signal(72, 4, 55, 24, lambda t: vm.issue(t, "fl"))
    stamp(a, 4, st)
    a(f"""
    s_lshr_b32 s3, s2, 3
    s_cmp_ge_u32 s3, 28
    s_cbranch_scc1 {L('pf2' if (pf2 and not pfh) else 'end')}
    """)
    for j in range(2, 4):
        for gg in w2_groups(j): emit_group(gg)
    def poll(tag, voff, soff):
        a(f"s_mov_b32 s13, 0x100000")
        a.label(L("poll" + tag))
        a(f"""
        buffer_load_dword v12, v{voff}, {sr(SO,4)}, s{soff} offen sc1
        s_sub_u32 s13, s13, 1
        s_cmp_eq_u32 s13, 0
        s_cbranch_scc1 {L('polled'+tag)}
        """)
        for x in jread() + ["s_waitcnt lgkmcnt(0)"] + jtest(): a(x)
        a(f"""
        s_waitcnt vmcnt(0)
        v_cmp_ne_u32 vcc, s{NONCE}, v12
        s_nop 4
        s_cbranch_vccnz {L('poll'+tag)}
        """)
        a.label(L("polled" + tag))
        vm.wait_all()
    a(f"""
    v_and_b32 v11, 3, v0
    v_lshlrev_b32 v11, 4, v11
    """)
    srd(a, SXN, 94, 640 * 1280)
    a(f"""
    s_mul_i32 s38, s{LW}, {160*1280}
    s_mul_i32 s3, s{CB}, 192
    s_add_u32 s38, s38, s3
    """)
    stamp(a, 5, st)
    a(f"s_mov_b32 s{MD}, 16")
    a(f"s_mov_b32 s13, 0x100000")
    a.label(L("hp_l"))
    a(f"buffer_load_dword v12, v11, {sr(SO,4)}, s39 offen sc1")
    for x in cbar(): a(x)
    a(f"""
    s_sub_u32 s13, s13, 1
    s_cmp_eq_u32 s13, 0
    s_cbranch_scc1 {L('hp_r')}
    s_waitcnt vmcnt(0)
    v_cmp_ne_u32 vcc, s{NONCE}, v12
    s_cbranch_vccz {L('hp_r')}
    buffer_load_dword v12, v11, {sr(SO,4)}, s39 offen sc1
    s_waitcnt vmcnt(0)
    v_cmp_ne_u32 vcc, s{NONCE}, v12
    s_cbranch_vccnz {L('hp_l')}
    """)
    a.label(L("hp_r"))
    vm.wait_all()
    stamp(a, 6, st)
    for j in range(6):
        if j >= 4:
            for gg in w2_groups(j): emit_group(gg)
        for g in h_groups(j): emit_group(g)
    a(f"s_setprio {dprio}")
    def wo_groups(i):
        g = []
        for n in range(5 * i, 5 * i + 5):
            p = n % 3
            it = [(f"w{n}", f"buffer_load_dwordx4 v{DN+p}, {sr(SXN,4)}, s38 offen offset:{p*1024} lds")]
            if p == 0 or n == 5 * i: it = [f"s_add_u32 m0, s15, {(n-p)*1024}"] + it
            if p == 2: it.append(f"s_add_u32 s38, s38, {16*1280}")
            g.append(it)
        return g
    def dn_reads(b, j):
        f = FBUF[b]; o = (j % 6) * 5120; out = []
        out.append(f"ds_read_b128 {vr(f,4)}, v{HA} offset:{o+3072}")
        for ct in range(3):
            for half in range(2):
                out.append(f"ds_read_b64_tr_b16 {vr(f+8+4*ct+2*half,2)}, v{W2A} offset:{o + half*1536 + ct*64}")
            if ct == 0: out.append(f"ds_read_b128 {vr(f+4,4)}, v{HA} offset:{o+4096}")
        return out
    vm.wait("d0")
    stamp(a, 7, st)
    for x in dn_reads(0, 0): a(x)
    for j in range(24):
        nxt = []
        if j + 1 < 24:
            vm.wait(f"d{j+1}")
            nxt = dn_reads((j + 1) % 2, j + 1)
        groups = (w2_groups(j + 6, adv=False) + h_groups(j + 6, both=True)) if j + 6 < 24 else wo_groups(j - 18)
        kstep(j % 2, nxt, groups, True, first=(j == 0), ng=5)
        if (j - ramp + 1) % dq == 0:
            for x in cbar(): a(x)
        if j in (5, 11, 17): stamp(a, 8 + (j - 5) // 6, st)
    stamp(a, 11, st)
    OW = 24
    WFR = [[8, 12, 16], [20, 160, 164]]
    a(f"""
    s_setprio {wprio}
    v_readfirstlane_b32 s57, v{FEP}
    v_mov_b32 v5, v{W2A}
    v_mul_u32_u24 v6, {36*192}, v1
    v_add_u32 v6, v6, v5
    v_lshlrev_b32 v7, 3, v4
    v_lshl_add_u32 v7, v1, 9, v7
    v_and_b32 v11, 7, v0
    v_lshlrev_b32 v11, 4, v11
    s_lshl_b32 s34, s{TK}, 6
    s_lshl_b32 s3, s{LW}, 3
    s_add_u32 s34, s34, s3               ; (tk*2)*32 + 8w
    s_lshr_b32 s39, s{TK}, 2
    s_lshl_b32 s39, s39, 5
    s_add_u32 s39, s39, s3
    s_lshl_b32 s39, s39, 4
    s_add_u32 s39, s39, {OFL_OFF}
    s_lshl_b32 s35, s34, 8
    s_add_u32 s35, s35, {OT_OFF}
    s_lshl_b32 s34, s34, 10
    s_add_u32 s34, s34, {OM_OFF}
    s_add_u32 s36, s34, 32768
    s_add_u32 s37, s35, 8192
    s_add_u32 s32, s34, 4096
    s_add_u32 s33, s36, 4096
    s_lshl_b32 s3, s{LW}, 6
    v_add_u32 v3, s3, v0
    s_mul_i32 s38, s{TK}, {64*1280}
    s_mul_i32 s3, s{CB}, 192
    s_add_u32 s38, s38, s3
    s_cmp_eq_u32 s{CB}, 6
    s_cselect_b32 s27, 8, 12
    """)
    srd(a, SWU, 92, 2048 * 1280)
    srd(a, SW2, 96, 2048 * 1280)
    a.label(L("drain"))
    a(f"""
    s_cmp_ge_u32 s{NB}, 16
    s_cbranch_scc1 {L('drained')}
    s_barrier
    s_add_u32 s{NB}, s{NB}, 1
    s_branch {L('drain')}
    """)
    a.label(L("drained"))
    poll("o", 11, 39)
    stamp(a, 12, st)
    steps = [("m", 0), ("m", 1), ("m", 2), ("m", 3), ("t", 0), ("m", 4), ("m", 5), ("m", 6), ("m", 7), ("t", 1)]
    def o_load(j):
        k, i = steps[j]; b = OW + 8 * (j % 5)
        if k == "m":
            for tt in range(2):
                so = (34, 36)[tt] if i < 4 else (32, 33)[tt]
                vm.issue(f"buffer_load_dwordx4 {vr(b+4*tt,4)}, v2, {sr(SO,4)}, s{so} offen offset:{(i%4)*1024}{ldsc}", f"o{j}")
        else:
            for tt in range(2):
                for q in range(2):
                    vm.issue(f"buffer_load_dwordx2 {vr(b+4*tt+2*q,2)}, v7, {sr(SO,4)}, s{(35,37)[tt]} offen offset:{i*1024+q*256}{ldsc}", f"o{j}")
    def wo_rd(j):
        k, i = steps[j]; out = []
        for ct in range(3):
            for half in range(2):
                if k == "m": ad, off = 5, 20 * i * 192 + half * 1536 + ct * 64
                else: ad, off = 6, (80 * i + 16 + 20 * half) * 192 + ct * 64
                out.append(f"ds_read_b64_tr_b16 {vr(WFR[j%2][ct]+2*half,2)}, v{ad} offset:{off}")
        return out
    for j in range(5): o_load(j)
    for x in wo_rd(0): a(x)
    GO, LO, LO2, WR = 40, 43, 46, 49
    for j in range(10):
        vm.wait(f"o{j}", extra="lgkmcnt(0)")
        nxt = wo_rd(j + 1) if j + 1 < 10 else []
        b = OW + 8 * (j % 5)
        n = 0
        for ct in range(3):
            for tt in range(2):
                acc = ACC + 16 * (ct * 2 + tt)
                a(f"v_mfma_f32_32x32x16_bf16 {vr(acc,16)}, {vr(WFR[j%2][ct],4)}, {vr(b+4*tt,4)}, {vr(acc,16)}")
                if n < 3:
                    for x in nxt[2*n:2*n+2]: a(x)
                n += 1
        if j + 5 < 10: o_load(j + 5)
        if j == 6:
            for n in range(3):
                a(f"""
                v_add_u32 v36, {256*n}, v3
                v_mul_u32_u24 v37, 0xaab, v36
                v_lshrrev_b32 v37, 15, v37           ; token
                v_mul_u32_u24 v38, 12, v37
                v_sub_u32 v36, v36, v38              ; g
                v_mul_u32_u24 v38, 1280, v37
                v_lshl_add_u32 v38, v36, 4, v38
                v_cmp_gt_u32 vcc, s27, v36
                v_mov_b32 v39, 0x7f000000
                v_cndmask_b32 v38, v39, v38, vcc
                """)
                vm.issue(f"buffer_load_dwordx4 {vr(24+4*n,4)}, v38, {sr(SWU,4)}, s38 offen", "x")
        if j == 8:
            for n in range(3):
                a(f"""
                v_add_u32 v36, {256*n}, v3
                v_mul_u32_u24 v37, 0xaab, v36
                v_lshrrev_b32 v37, 15, v37
                v_mul_u32_u24 v38, 12, v37
                v_sub_u32 v36, v36, v38
                v_mul_u32_u24 v38, 1280, v37
                v_lshl_add_u32 v{GO+n}, v36, 4, v38
                v_cmp_gt_u32 vcc, s27, v36
                v_mul_u32_u24 v38, 400, v37
                v_cndmask_b32 v{GO+n}, v39, v{GO+n}, vcc
                v_lshl_add_u32 v{LO+n}, v36, 5, v38
                v_add_u32 v{LO+n}, {FB}, v{LO+n}
                v_add_u32 v{LO2+n}, 61440, v{LO+n}
                """)
            a(f"""
            v_mul_u32_u24 v{WR}, 400, v4
            v_lshl_add_u32 v{WR}, v1, 4, v{WR}
            v_add_u32 v{WR}, s15, v{WR}
            v_mov_b32 v{FEP+32}, s57
            v_mov_b32 v{JA+32}, {SYNC+52}
            s_lshl_b32 s3, s{LW}, 2
            s_add_u32 s3, s3, {SYNC+32}
            v_mov_b32 v{FSA+32}, s3
            v_and_b32 v{FPA+32}, 3, v0
            v_lshlrev_b32 v{FPA+32}, 2, v{FPA+32}
            v_add_u32 v{FPA+32}, {SYNC+32}, v{FPA+32}
            """)
    stamp(a, 13, st)
    for ct in range(3):
        for tt in range(2):
            for j in range(4):
                a(f"ds_write_b128 v{WR}, {vr(ACC+16*(ct*2+tt)+4*j,4)} offset:{tt*12800 + ct*128 + j*32}")
    for x in farrive(32) + fcheck(32): a(x)
    for n in range(3):
        for w in range(4):
            ad = f"v{LO+n}" if w < 2 else f"v{LO2+n}"
            for hf in range(2):
                a(f"ds_read_b128 {vr(ACC+32*n+8*w+4*hf,4)}, {ad} offset:{(w%2)*30720 + hf*16}")
    vm.wait_all()
    for n in range(3):
        a(f"s_waitcnt lgkmcnt({min(15, 8*(2-n))})")
        b = ACC + 32 * n; x = 24 + 4 * n
        for i in range(0, 8, 2):
            a(f"v_pk_add_f32 {vr(b+i,2)}, {vr(b+i,2)}, {vr(b+8+i,2)}")
            a(f"v_pk_add_f32 {vr(b+16+i,2)}, {vr(b+16+i,2)}, {vr(b+24+i,2)}")
            a(f"v_lshlrev_b32 v{b+8+i}, 16, v{x+i//2}")
            a(f"v_and_b32 v{b+9+i}, 0xffff0000, v{x+i//2}")
            a(f"v_pk_add_f32 {vr(b+i,2)}, {vr(b+i,2)}, {vr(b+16+i,2)}")
            a(f"v_pk_add_f32 {vr(b+i,2)}, {vr(b+i,2)}, {vr(b+8+i,2)}")
            a(f"v_cvt_pk_bf16_f32 v{x+i//2}, v{b+i}, v{b+i+1}")
        a(f"buffer_store_dwordx4 {vr(x,4)}, v{GO+n}, {sr(SW2,4)}, s38 offen{osc}")
    a(f"""
    s_or_b32 s3, s2, s{LW}
    s_cmp_lg_u32 s3, 0
    s_cbranch_scc1 {L('nrst')}
    s_load_dwordx2 s[52:53], s[0:1], 64
    v_mov_b32 v36, 0
    s_waitcnt lgkmcnt(0)
    """)
    srd(a, SXN, 52, 256)
    a(f"""
    s_mov_b64 exec, 1
    buffer_store_dword v36, v36, {sr(SXN,4)}, 0 offen sc1
    s_mov_b64 exec, -1
    """)
    a.label(L("nrst"))
    stamp(a, 14, st)
    if st: a("s_waitcnt vmcnt(0)")
    stamp(a, 15, st)
    st = st_save
    stamp_flush(a, 12 if upst else 16, st, W, SO)
    a("s_endpgm")
    for t, o in fspins:
        a.label(L(t + "s"))
        a(f"""
        s_sleep 1
        ds_read_b32 v{FPL+o}, v{FPA+o}
        """)
        if o:
            for x in jread(o) + ["s_waitcnt lgkmcnt(0)"] + jtest(o): a(x)
        a(f"""
        s_waitcnt lgkmcnt(0)
        v_cmp_lt_u32 vcc, v{FPL+o}, v{FEP+o}
        s_nop 1
        s_cbranch_vccnz {L(t+'s')}
        s_branch {L(t+'r')}
        """)
    a.label(L("gsync"))
    a(f"""
    ds_read_b32 v{JV}, v{JA} offset:12
    v_add_u32 v{FEP}, 1, v{FEP}
    s_waitcnt vmcnt(10) lgkmcnt(0)
    v_readfirstlane_b32 s3, v{JV}
    s_cmp_eq_u32 s{LW}, 0
    s_cselect_b32 s3, s3, 0
    s_cmp_eq_u32 s3, 0
    s_cbranch_scc1 {L('gs1')}
    ds_write_b32 v{JA}, v{FEP} offset:16        ; SW_AT
    """)
    a.label(L("gs1"))
    a(f"ds_write_b32 v{FSA}, v{FEP}")
    a.label(L("gs2"))
    a(f"""
    ds_read_b32 v{FPL}, v{FPA}
    ds_read_b32 v{JV}, v{JA} offset:16
    s_waitcnt lgkmcnt(0)
    v_cmp_lt_u32 vcc, v{FPL}, v{FEP}
    s_cbranch_vccnz {L('gs2')}
    v_cmp_le_u32 vcc, v{JV}, v{FEP}
    s_setprio {gprio}
    s_cbranch_vccnz {L('gs4')}
    s_cmp_gt_u32 s13, {11-ng}
    s_cbranch_scc1 {L('gback')}
    """)
    a.label(L("gs3"))
    a(f"""
    s_sleep 1
    ds_read_b32 v{JV}, v{JA} offset:12
    s_waitcnt lgkmcnt(0)
    v_cmp_gt_u32 vcc, 33, v{JV}
    s_cbranch_vccnz {L('gs3')}
    """)
    a.label(L("gs4"))
    a(f"""
    s_mov_b32 s{MD}, 16
    s_setprio {fprio}
    s_branch {L('gback')}
    """)
    a.label(L("pf2"))
    srd(a, SW2, 52, 1536 * 1280)
    srd(a, SXN, 94, 640 * 1280)
    a(f"""
    s_sub_u32 s3, s2, 224
    s_lshl_b32 s3, s3, 2
    s_add_u32 s3, s3, s{LW}
    s_lshl_b32 s3, s3, 10
    s_mov_b32 s13, s3
    """)
    for i in range(15):
        a(f"buffer_load_dwordx4 {vr(64+4*i,4)}, v2, {sr(SW2,4)}, s3 offen"); a("s_add_u32 s3, s3, 131072")
        if i % 5 == 4:
            for x in cbar(): a(x)
    for i in range(7):
        a(f"buffer_load_dwordx4 {vr(124+4*i,4)}, v2, {sr(SXN,4)}, s13 offen"); a("s_add_u32 s13, s13, 131072")
        if i == 3:
            for x in cbar(): a(x)
    a("s_endpgm")
    a.label(L("fidle"))
    a("s_waitcnt lgkmcnt(0)")
    for _ in range(12 if b11 else 11): a("s_barrier")
    get_nonce(12)
    a(f"s_branch {L('pa_r')}")
    a.label(L("help"))
    HW = 28; SXH = 20; SD = 24
    a(f"""
    s_setprio {hprio}
    s_sub_u32 s{HW}, s{W}, 4
    s_memrealtime s[40:41]
    s_load_dwordx2 s[44:45], s[0:1], 16
    s_load_dwordx4 s[48:51], s[0:1], 32
    s_load_dwordx2 s[46:47], s[0:1], 48
    v_and_b32 v1, 7, v0
    v_lshrrev_b32 v2, 3, v0
    s_lshl_b32 s3, s{HW}, 3
    v_add_u32 v2, s3, v2                 ; g 0..31
    s_lshl_b32 s29, s{TB}, 7
    s_lshl_b32 s3, s{CG}, 3
    s_add_u32 s29, s29, s3
    v_add_u32 v3, s29, v1                ; token
    v_mul_u32_u24 v4, 1280, v3
    v_lshl_add_u32 v4, v2, 4, v4
    s_cmp_lt_u32 s{HW}, 2
    s_mov_b32 s30, 0x7f000000
    s_cselect_b32 s30, 0, s30
    v_add_u32 v5, s30, v4
    v_mov_b32 v6, 0
    s_waitcnt lgkmcnt(0)
    """)
    srd(a, SXH, 4, 2048 * 1280)
    srd(a, SD, 92, 256)
    ws_srd()
    a(f"""
    buffer_load_dwordx4 v[8:11], v4, {sr(SXH,4)}, 0 offen
    buffer_load_dwordx4 v[12:15], v4, {sr(SXH,4)}, 0 offen offset:512
    buffer_load_dwordx4 v[16:19], v5, {sr(SXH,4)}, 0 offen offset:1024
    """)
    def pf_touch(lo, nbytes, dst):
        nl = nbytes // 128
        per = (nl + 255) // 256
        pw = (per + 3) // 4
        srd(a, 52, lo, nbytes)
        a(f"""
        s_mul_i32 s3, s2, {4*pw}
        s_mul_i32 s31, s{HW}, {pw}
        s_add_u32 s3, s3, s31
        s_lshl_b32 s3, s3, 7
        s_mov_b64 exec, {(1 << pw) - 1}
        buffer_load_dword v{dst}, v58, s[52:55], s3 offen
        s_mov_b64 exec, -1
        """)
    a("v_lshlrev_b32 v58, 7, v0")
    if pfc:
        a(f"""
        s_cmp_lg_u32 s{HW}, 1
        s_cbranch_scc1 {L('npc')}
        s_getpc_b64 s[52:53]
        """)
        a.label(L("pc0"))
        a(f"""
        s_sub_u32 s52, s52, {L('pc0')}-{name}
        s_subb_u32 s53, s53, 0
        s_and_b32 s53, s53, 0xffff
        s_mov_b32 s54, {L('end')}-{name}
        s_mov_b32 s55, 0x00020000
        s_lshr_b32 s3, s2, 3
        s_lshl_b32 s3, s3, 10
        v_lshlrev_b32 v59, 4, v0
        buffer_load_dwordx4 v[60:63], v59, s[52:55], s3 offen
        """)
        a.label(L("npc"))
    if pf >= 1: pf_touch(6, 640 * 3840, 59)
    if pf == 2:
        pf_touch(48, 640 * 3072, 60); pf_touch(50, 640 * 3072, 61); pf_touch(46, 1536 * 1280, 62); pf_touch(44, 640 * 1280, 63)
    a(f"""
    s_or_b32 s3, s2, s{HW}
    s_cmp_lg_u32 s3, 0
    s_cbranch_scc1 {L('nononce')}
    s_or_b32 s40, s40, 1
    v_mov_b32 v7, s40
    s_mov_b64 exec, 1
    buffer_store_dword v7, v6, {sr(SD,4)}, 0 offen sc1
    s_mov_b64 exec, -1
    """)
    a.label(L("nononce"))
    a(f"""
    v_lshrrev_b32 v7, 5, v3
    v_mul_u32_u24 v7, 40960, v7
    v_lshl_add_u32 v7, v2, 9, v7
    v_and_b32 v20, 31, v3
    v_lshl_add_u32 v7, v20, 4, v7
    v_add_u32 v21, 16384, v7
    v_add_u32 v22, 32768, v7
    v_add_u32 v22, s30, v22
    s_lshl_b32 s3, s{HW}, 6
    v_lshl_add_u32 v23, v1, 3, s3
    v_add_u32 v23, {LNP}, v23
    v_lshlrev_b32 v24, 3, v1
    v_add_u32 v24, {LNP}, v24
    v_mov_b32 v26, 0
    v_mov_b32 v27, 0
    s_barrier
    s_waitcnt vmcnt(0)
    """)
    for i in range(12):
        a(f"""
        v_lshlrev_b32 v{32+2*i}, 16, v{8+i}
        v_and_b32 v{33+2*i}, 0xffff0000, v{8+i}
        v_add_f32 v26, v26, v{32+2*i}
        v_fmac_f32 v27, v{32+2*i}, v{32+2*i}
        v_add_f32 v26, v26, v{33+2*i}
        v_fmac_f32 v27, v{33+2*i}, v{33+2*i}
        """)
    for r in (26, 27):
        a(f"""
        v_add_f32_dpp v{r}, v{r}, v{r} row_ror:8 row_mask:0xf bank_mask:0xf
        v_mov_b32 v28, v{r}
        v_permlane16_swap_b32 v{r}, v28
        v_add_f32 v{r}, v{r}, v28
        v_mov_b32 v28, v{r}
        v_permlane32_swap_b32 v{r}, v28
        v_add_f32 v{r}, v{r}, v28
        """)
    a(f"""
    ds_write_b64 v23, v[26:27]
    s_waitcnt lgkmcnt(0)
    s_barrier
    ds_read_b64 v[26:27], v24
    ds_read_b64 v[28:29], v24 offset:64
    ds_read_b64 v[30:31], v24 offset:128
    ds_read_b64 v[56:57], v24 offset:192
    buffer_load_dword v25, v6, {sr(SD,4)}, 0 offen sc1
    s_waitcnt lgkmcnt(0)
    v_add_f32 v26, v26, v28
    v_add_f32 v27, v27, v29
    v_add_f32 v30, v30, v56
    v_add_f32 v31, v31, v57
    v_add_f32 v26, v26, v30
    v_add_f32 v27, v27, v31
    v_mul_f32 v26, {f2u(1/640):#x}, v26          ; mean
    v_mul_f32 v27, {f2u(1/640):#x}, v27
    v_fma_f32 v27, -v26, v26, v27                ; var
    v_max_f32 v27, 0, v27
    v_cvt_pk_bf16_f32 v28, v26, v27
    v_lshlrev_b32 v26, 16, v28
    v_and_b32 v27, 0xffff0000, v28
    v_add_f32 v27, {f2u(1e-5):#x}, v27
    v_cvt_pk_bf16_f32 v27, v27, v27
    v_and_b32 v27, 0xffff0000, v27
    v_sqrt_f32 v27, v27
    v_cvt_pk_bf16_f32 v27, v27, v27
    v_and_b32 v27, 0xffff0000, v27
    v_rcp_f32 v27, v27                           ; rstd
    s_mov_b32 s31, {XN_OFF}
    v_mul_f32 v28, v26, v27
    """)
    for q in range(3):
        for i in range(4 * q, 4 * q + 4):
            a(f"""
            v_fma_f32 v{32+2*i}, v{32+2*i}, v27, -v28
            v_fma_f32 v{33+2*i}, v{33+2*i}, v27, -v28
            v_cvt_pk_bf16_f32 v{8+i}, v{32+2*i}, v{33+2*i}
            """)
        a(f"buffer_store_dwordx4 {vr(8+4*q,4)}, v{(7,21,22)[q]}, {sr(SO,4)}, s31 offen sc1")
    a(f"""
    s_cmp_lg_u32 s{HW}, 0
    s_cbranch_scc1 {L('nostat')}
    v_lshlrev_b32 v29, 3, v3
    s_mov_b32 s31, {STG_OFF}
    s_mov_b64 exec, 0xff
    buffer_store_dwordx2 v[26:27], v29, {sr(SO,4)}, s31 offen sc1
    s_mov_b64 exec, -1
    """)
    a.label(L("nostat"))
    if pf == 3:
        pf_touch(48, 640 * 3072, 60); pf_touch(50, 640 * 3072, 61); pf_touch(46, 1536 * 1280, 62); pf_touch(44, 640 * 1280, 63)
    a(f"""
    s_barrier
    s_barrier
    s_mov_b32 s13, 0x100000
    """)
    a.label(L("nn_l"))
    a(f"""
    s_waitcnt vmcnt(0)
    v_readfirstlane_b32 s{NONCE}, v25
    s_sub_u32 s13, s13, 1
    s_cmp_eq_u32 s13, 0
    s_cbranch_scc1 {L('nn_r')}
    s_cmp_lg_u32 s{NONCE}, 0
    s_cbranch_scc1 {L('nn_r')}
    buffer_load_dword v25, v6, {sr(SD,4)}, 0 offen sc1
    s_branch {L('nn_l')}
    """)
    a.label(L("nn_r"))
    a(f"""
    s_lshl_b32 s31, s{TB}, 8
    s_add_u32 s31, s31, {FA_OFF}
    s_lshl_b32 s3, s{CG}, 4
    s_add_u32 s33, s3, s31
    """)
    signal(84, 4, 33, 28)
    a(f"""
    v_mov_b32 v26, {SYNC+60}
    ds_write_b32 v26, v25
    v_and_b32 v27, 15, v0
    v_lshlrev_b32 v27, 4, v27
    s_mov_b32 s31, {FA_OFF}
    v_mov_b32 v28, s{TB}
    v_mov_b32 v29, s{CG}
    v_cmp_gt_u32 vcc, 32, v0
    v_cndmask_b32 v28, v29, v28, vcc
    v_lshl_add_u32 v27, v28, 8, v27
    s_waitcnt lgkmcnt(0)
    s_barrier
    s_barrier
    s_barrier
    s_cmp_lg_u32 s{HW}, 0
    s_cbranch_scc1 {L('hrest')}
    buffer_load_dword v28, v27, {sr(SO,4)}, s31 offen sc1
    s_barrier
    s_mov_b32 s13, 0x100000
    """)
    a.label(L("ha_l"))
    a(f"""
    s_waitcnt vmcnt(0)
    v_cmp_ne_u32 vcc, s{NONCE}, v28
    s_sub_u32 s13, s13, 1
    s_cmp_eq_u32 s13, 0
    s_cbranch_scc1 {L('ha_r')}
    s_cbranch_vccz {L('ha_r')}
    buffer_load_dword v28, v27, {sr(SO,4)}, s31 offen sc1
    s_branch {L('ha_l')}
    """)
    a.label(L("ha_r"))
    a(f"""
    s_lshl_b32 s3, s{TB}, 10
    s_add_u32 s3, s3, {STG_OFF}
    v_lshlrev_b32 v30, 4, v0
    buffer_load_dwordx4 v[32:35], v30, {sr(SO,4)}, s3 offen sc1
    v_lshlrev_b32 v29, 3, v0
    v_add_u32 v29, {ST_M}, v29
    s_barrier
    s_barrier
    s_waitcnt vmcnt(0)
    ds_write2_b32 v29, v32, v34 offset0:0 offset1:1
    ds_write2_b32 v29, v33, v35 offset0:128 offset1:129
    s_waitcnt lgkmcnt(0)
    s_branch {L('h10')}
    """)
    a.label(L("hrest"))
    a("""
    s_barrier
    s_barrier
    s_barrier
    """)
    a.label(L("h10"))
    if pfh:
        srd(a, SXH, 46, 1536 * 1280); srd(a, SD, 44, 640 * 1280)
        a(f"""
        s_lshl_b32 s3, s2, 2
        s_add_u32 s3, s3, s{HW}
        s_lshl_b32 s3, s3, 10
        s_add_u32 s31, s3, 0x100000
        v_lshlrev_b32 v30, 4, v0
        """)
    a("s_barrier")
    if pfh:
        a(f"""
        buffer_load_dwordx4 v[144:147], v30, {sr(SXH,4)}, s3 offen
        buffer_load_dwordx4 v[148:151], v30, {sr(SXH,4)}, s31 offen
        buffer_load_dwordx4 v[152:155], v30, {sr(SD,4)}, s3 offen
        """)
    if b11: a("s_barrier")
    a(f"s_branch {L('att')}")
    a.label(L("mfma"))
    TW, FW = 28, 29
    XA = 2
    WA = 10
    SEL = 12
    CS = 48
    BUF = [16, 32, 128, 144]
    ACC = 64
    a(f"""
    s_setprio 2
    s_lshr_b32 s{TW}, s{W}, 1
    s_and_b32 s{FW}, s{W}, 1
    v_and_b32 v56, 31, v0
    v_lshrrev_b32 v57, 5, v0            ; h
    v_bfe_u32 v52, v0, 1, 3             ; f
    s_lshl_b32 s3, s{TW}, 13            ; tw*64*128
    v_lshl_add_u32 v53, v56, 7, s3
    """)
    for ks in range(4):
        a(f"""
        v_or_b32 v54, {2*ks}, v57
        v_xor_b32 v54, v54, v52
        v_lshl_add_u32 v{XA+ks}, v54, 4, v53
        """)
    a(f"""
    v_bfe_u32 v54, v0, 2, 2             ; r
    v_lshl_add_u32 v55, v57, 3, v54     ; 8h+r
    v_lshlrev_b32 v55, 8, v55
    s_lshl_b32 s35, s{FW}, 1
    s_or_b32 s35, s35, s{TW}
    v_xor_b32 v54, s35, v54
    v_lshl_add_u32 v55, v54, 6, v55
    v_bfe_u32 v54, v0, 4, 1
    v_lshl_add_u32 v55, v54, 5, v55
    v_and_b32 v53, 3, v0
    v_lshl_add_u32 v55, v53, 3, v55
    v_add_u32 v{WA}, 0x4000, v55
    v_xor_b32 v{WA+1}, 64, v{WA}
    v_bfe_u32 v53, v0, 2, 1
    v_cmp_eq_u32 vcc, v53, v54
    v_mov_b32 v53, 0x3f803f80
    v_cndmask_b32 v{SEL}, 0, v53, vcc
    v_mov_b32 v{SEL+1}, v{SEL}
    v_mov_b32 v{SEL+2}, v{SEL}
    v_mov_b32 v{SEL+3}, v{SEL}
    """)
    for i in range(4): a(f"v_mov_b32 v{CS+i}, 0")
    for i in range(4): a(f"v_mfma_f32_32x32x16_bf16 {vr(ACC+16*i,16)}, {vr(CS,4)}, {vr(CS,4)}, 0")
    a("s_waitcnt lgkmcnt(0)")
    ws_srd()
    a("s_mov_b32 s36, 0")
    a(f"""
    s_cmp_eq_u32 s{CG}, 15
    s_cbranch_scc1 {L('mpf')}
    """)

    def reads(buf, par, ks):
        b = BUF[buf]; o = par * 32768
        wo = o + ks * 4096
        return [
            f"ds_read_b64_tr_b16 {vr(b+8,2)}, v{WA} offset:{wo}",
            f"ds_read_b64_tr_b16 {vr(b+10,2)}, v{WA} offset:{wo+1024}",
            f"ds_read_b128 {vr(b,4)}, v{XA+ks} offset:{o}",
            f"ds_read_b128 {vr(b+4,4)}, v{XA+ks} offset:{o+4096}",
            f"ds_read_b64_tr_b16 {vr(b+12,2)}, v{WA+1} offset:{wo}",
            f"ds_read_b64_tr_b16 {vr(b+14,2)}, v{WA+1} offset:{wo+1024}",
        ]
    def mf(buf, fi, ti, vmode):
        b = BUF[buf]; acc = ACC + 16 * (fi * 2 + ti)
        wv = vr(b + 8 + 4 * fi, 4); xv = vr(b + 4 * ti, 4)
        A, B = (xv, wv) if vmode else (wv, xv)
        return f"v_mfma_f32_32x32x16_bf16 {vr(acc,16)}, {A}, {B}, {vr(acc,16)}"
    def csm(cur):
        return f"v_mfma_f32_16x16x32_bf16 {vr(CS,4)}, {vr(SEL,4)}, {vr(BUF[cur]+8,4)}, {vr(CS,4)}"
    def kstep(cur, rd, vmode, pre=(), wait=6):
        a(f"s_waitcnt lgkmcnt({wait})")
        a(mf(cur, 0, 0, vmode))
        for x in pre: a(x)
        [a(x) for x in rd[0:2]]
        a(mf(cur, 0, 1, vmode)); [a(x) for x in rd[2:4]]
        a(mf(cur, 1, 0, vmode)); [a(x) for x in rd[4:6]]
        a(mf(cur, 1, 1, vmode))
        a(csm(cur))
    def mainloop(vmode, tag):
        a("s_mov_b32 s30, 10")
        a(".p2align 6")
        a.label(L("loop" + tag))
        if p1st:
            for k in range(1, 11):
                a(f"s_cmp_lg_u32 s30, {11-k}"); a(f"s_cbranch_scc1 {L('ps'+tag+str(k))}"); stamp(a, k, p1st); a.label(L("ps" + tag + str(k)))
        tg = [f"v_add_u32 v{r}, s37, v{r}" for r in list(range(XA, XA + 4)) + [WA, WA + 1]]
        kstep(0, reads(2, 0, 2), vmode, pre=["s_add_u32 s38, s36, 32768", "s_cmp_eq_u32 s38, 98304", "s_cselect_b32 s38, 0, s38", "s_sub_u32 s37, s38, s36", "s_mov_b32 s36, s38"])
        kstep(1, reads(3, 0, 3), vmode)
        a(f"s_cmp_eq_u32 s30, 1")
        a(f"s_cbranch_scc1 {L('fin'+tag)}")
        kstep(2, reads(0, 0, 0), vmode, pre=["s_barrier"] + tg, wait=0)
        kstep(3, reads(1, 0, 1), vmode)
        a(f"""
        s_sub_u32 s30, s30, 1
        s_branch {L('loop'+tag)}
        """)
        a.label(L("fin" + tag))
        kstep(2, [], vmode)
        a("s_waitcnt lgkmcnt(0)")
        a(csm(3))
        for fi in range(2):
            for ti in range(2): a(mf(3, fi, ti, vmode))
        a(f"""
        s_lshl_b32 s3, s35, 7
        v_lshl_add_u32 v55, v56, 2, s3
        v_add_u32 v55, {ST_CS}, v55
        ds_write_b32 v55, v{CS}
        s_waitcnt lgkmcnt(0)
        s_barrier
        """)
    stamp(a, 1, st)
    a("s_barrier")
    stamp(a, 2, st)
    for x in reads(0, 0, 0) + reads(1, 0, 1): a(x)
    a(f"""
    s_cmp_ge_u32 s{CG}, 10
    s_cbranch_scc1 {L('vpath')}
    """)
    a(f"""
    s_cmp_lt_u32 s{CG}, 5
    s_cselect_b32 s31, {f2u(QSCALE):#x}, 1.0
    s_cselect_b32 s32, 0, 5
    s_cselect_b32 s33, {QK_OFF}, {QK_OFF+QK_TYPE}
    s_sub_u32 s32, s{CG}, s32           ; cgt
    s_lshl_b32 s32, s32, 4
    s_lshl_b32 s3, s35, 2
    s_add_u32 s32, s32, s3
    s_lshl_b32 s32, s32, 15
    s_add_u32 s33, s33, s32
    s_lshl_b32 s3, s{TB}, 2
    s_lshl_b32 s32, s{TW}, 1
    s_add_u32 s3, s3, s32
    s_lshl_b32 s3, s3, 9                ; toktile*512
    s_add_u32 s33, s33, s3
    v_lshlrev_b32 v58, 4, v0
    s_lshl_b32 s3, s{TW}, 8
    v_lshl_add_u32 v59, v56, 2, s3
    v_add_u32 v59, {ST_M}, v59
    s_lshl_b32 s3, s35, 7
    v_lshl_add_u32 v60, v57, 4, s3
    v_add_u32 v60, {ST_CS}, v60
    v_xor_b32 v61, 128, v60
    """)
    mainloop(False, "qk")
    stamp(a, 3, st)
    a(f"""
    ds_read_b32 v2, v59
    ds_read_b32 v4, v59 offset:512
    ds_read_b32 v6, v59 offset:128
    ds_read_b32 v8, v59 offset:640
    """)
    for j in range(4): a(f"ds_read_b128 {vr(16+4*j,4)}, v60 offset:{32*j}")
    for j in range(4): a(f"ds_read_b128 {vr(32+4*j,4)}, v61 offset:{32*j}")
    a(f"""
    s_waitcnt lgkmcnt(4)
    v_mul_f32 v4, s31, v4
    v_mul_f32 v8, s31, v8
    """)
    for fi in range(2):
        if fi == 1: a("s_waitcnt lgkmcnt(0)")
        a(f"s_xor_b32 s34, s33, {fi*4*32768}")
        cs = 16 + 16 * fi
        for j in range(4):
            dst = ACC + 32 * fi + 4 * j
            for ti in range(2):
                acc = ACC + 16 * (fi * 2 + ti)
                m = 2 + 4 * ti; rs = 4 + 4 * ti
                for p in range(2):
                    r = acc + 4 * j + 2 * p
                    a(f"v_pk_fma_f32 {vr(r,2)}, {vr(cs+4*j+2*p,2)}, {vr(m,2)}, {vr(r,2)} op_sel_hi:[1,0,1] neg_lo:[0,1,0] neg_hi:[0,1,0]")
                for p in range(2):
                    r = acc + 4 * j + 2 * p
                    a(f"v_pk_mul_f32 {vr(r,2)}, {vr(r,2)}, {vr(rs,2)} op_sel_hi:[1,0]")
                for p in range(2):
                    r = acc + 4 * j + 2 * p
                    a(f"v_cvt_pk_bf16_f32 v{dst+2*ti+p}, v{r}, v{r+1}")
            a(f"buffer_store_dwordx4 {vr(dst,4)}, v58, {sr(SO,4)}, s34 offen{qsc}")
            if j < 3: a(f"s_add_u32 s34, s34, 32768")
    a(f"s_branch {L('pub')}")
    a.label(L("vpath"))
    a(f"""
    s_sub_u32 s32, s{CG}, 10
    s_lshl_b32 s32, s32, 2
    s_add_u32 s32, s32, s35
    s_lshl_b32 s32, s32, 9
    s_lshl_b32 s33, s{TB}, 2
    s_lshl_b32 s3, s{TW}, 1
    s_add_u32 s33, s33, s3              ; toktile
    s_mul_i32 s33, s33, 40960
    s_add_u32 s33, s33, {VT_OFF}
    v_mul_u32_u24 v58, 10240, v57
    v_lshl_add_u32 v58, v56, 4, v58
    s_lshl_b32 s3, s{TW}, 8
    v_lshl_add_u32 v59, v57, 4, s3
    v_add_u32 v59, {ST_M}, v59
    """)
    mainloop(True, "v")
    stamp(a, 3, st)

    MR = [16, 128]; RR = [32, 144]
    a(f"""
    v_xor_b32 v55, 128, v55
    ds_read_b32 v4, v55
    v_mov_b32 v2, v{CS}
    """)
    for ti in range(2):
        for j in range(4): a(f"ds_read_b128 {vr(MR[ti]+4*j,4)}, v59 offset:{128*ti+32*j}")
        for j in range(4): a(f"ds_read_b128 {vr(RR[ti]+4*j,4)}, v59 offset:{512+128*ti+32*j}")
    for ti in range(2):
        a(f"s_waitcnt lgkmcnt({8 if ti == 0 else 0})")
        for fi in range(2):
            acc = ACC + 16 * (fi * 2 + ti)
            a(f"""
            s_xor_b32 s34, s32, {fi*512}
            s_add_u32 s34, s34, s33
            s_add_u32 s34, s34, {ti*40960}
            """)
            for kb in range(2):
                for p in range(4):
                    r = acc + 8 * kb + 2 * p
                    a(f"v_pk_fma_f32 {vr(r,2)}, {vr(MR[ti]+8*kb+2*p,2)}, {vr(2+2*fi,2)}, {vr(r,2)} op_sel_hi:[1,0,1] neg_lo:[0,1,0] neg_hi:[0,1,0]")
                for p in range(4):
                    r = acc + 8 * kb + 2 * p
                    a(f"v_pk_mul_f32 {vr(r,2)}, {vr(r,2)}, {vr(RR[ti]+8*kb+2*p,2)}")
                for p in range(4):
                    r = acc + 8 * kb + 2 * p
                    a(f"v_cvt_pk_bf16_f32 v{acc+8*kb+p}, v{r}, v{r+1}")
                a(f"buffer_store_dwordx4 {vr(acc+8*kb,4)}, v58, {sr(SO,4)}, s34 offen{qsc}")
                if kb == 0: a("s_add_u32 s34, s34, 20480")
    a.label(L("pub"))
    if b11: a("s_barrier")
    stamp(a, 4, st)
    get_nonce(2)
    a(f"""
    s_lshl_b32 s3, s{CG}, 4
    s_add_u32 s3, s3, s{TB}
    s_lshl_b32 s3, s3, 4
    s_add_u32 s39, s3, {FQ_OFF}
    s_waitcnt vmcnt(0)
    """)
    signal(80, 4, 39, 2)
    a(f"s_branch {L('att')}")
    a.label(L("mpf"))
    if pfall:
        a(f"""
        s_load_dwordx4 s[40:43], s[0:1], 32
        s_load_dwordx2 s[44:45], s[0:1], 48
        s_load_dwordx2 s[46:47], s[0:1], 16
        s_lshl_b32 s3, s{TB}, 2
        s_add_u32 s3, s3, s{W}
        s_lshl_b32 s31, s3, 10
        v_lshlrev_b32 v2, 4, v0
        s_waitcnt lgkmcnt(0)
        """)
        srd(a, 20, 40, 640 * 3072); srd(a, 24, 42, 640 * 3072); srd(a, 48, 44, 1536 * 1280); srd(a, 52, 46, 640 * 1280)
        for _ in range(pfd): a("s_barrier")
        def ploop(tag, sa, sb):
            a(f"s_add_u32 s3, s31, {0 if pf0 else (15-pfn)*131072}"); a(f"s_mov_b32 s30, {pfn}")
            a.label(L(tag))
            for i in range(2):
                a(f"buffer_load_dwordx4 {vr(64+8*i,4)}, v2, {sr(sa,4)}, s3 offen")
                a(f"buffer_load_dwordx4 {vr(68+8*i,4)}, v2, {sr(sb,4)}, s3 offen")
                a("s_add_u32 s3, s3, 65536")
            a(f"""
            s_sub_u32 s30, s30, 1
            s_cmp_lg_u32 s30, 0
            s_cbranch_scc1 {L(tag)}
            """)
        ploop("pl1", 20, 24)
        for _ in range(11 - pfd): a("s_barrier")
        if b11: a("s_barrier")
        a("s_waitcnt vmcnt(0)")
        get_nonce(2)
        a(f"s_branch {L('att')}")
    srd(a, 20, 6, 640 * 3840 if pfw else 0)
    a(f"""
    s_lshl_b32 s3, s{TB}, 2
    s_add_u32 s3, s3, s{W}
    s_lshl_b32 s3, s3, 10
    s_add_u32 s3, s3, {64*3840}
    v_lshlrev_b32 v2, 4, v0
    """)
    for i in range(34):
        a(f"buffer_load_dwordx4 {vr(64+4*(i%16),4)}, v2, s[20:23], s3 offen")
        a("s_add_u32 s3, s3, 65536")
        if i == 5:
            for _ in range(4): a("s_barrier")
        if i in (9, 13, 17, 21, 25, 29, 33): a("s_barrier")
    if b11: a("s_barrier")
    a("s_waitcnt vmcnt(0)")
    get_nonce(2)
    a.label(L("att"))
    a("s_setprio 2")
    stamp(a, 5, st)
    HEAD, QB = 10, 11
    KA, VA = 2, 3
    M = [4, 5]
    QM = [8, 16]; QT = [12, 20]
    KM = [24, 32]; KT = [28, 36]
    V = [40, 48]
    P = [56, 64]
    S = [72, 88]
    O = [104, 120]
    KD, VD, EP, SA, PA, PL, SG, SGA = 136, 137, 138, 139, 140, 141, 142, 143
    QG, KH, MODE, CNT = 24, 25, 26, 27
    a(f"""
    s_and_b32 s3, s2, 7
    s_lshl_b32 s3, s3, 2
    s_bfe_u32 s{HEAD}, s2, 0x20003
    s_add_u32 s{HEAD}, s{HEAD}, s3
    s_lshr_b32 s{QB}, s2, 5
    s_lshr_b32 s3, s{HEAD}, 1
    s_mul_i32 s3, s3, 5
    s_and_b32 s13, s{HEAD}, 1           ; odd
    s_mul_i32 s14, s13, 3
    s_add_u32 s20, s3, s14
    s_add_u32 s21, s20, 1
    s_add_u32 s22, s3, 2
    s_lshl_b32 s20, s20, 15
    s_lshl_b32 s21, s21, 15
    s_lshl_b32 s22, s22, 15
    s_and_b32 s{QG}, s{W}, 3
    s_lshr_b32 s{KH}, s{W}, 2
    s_cmp_eq_u32 s{QG}, 0
    s_cselect_b32 s32, s20, s21
    s_cmp_eq_u32 s{QG}, 2
    s_cselect_b32 s32, s22, s32
    s_lshl_b32 s3, s{KH}, 14
    s_add_u32 s32, s32, s3
    s_add_u32 s32, s32, {QK_OFF+QK_TYPE}
    s_lshl_b32 s3, s{KH}, 6
    s_add_u32 s3, s3, s{QG}
    s_mul_i32 s3, s3, 20480
    s_mul_i32 s33, s{HEAD}, 320
    s_add_u32 s33, s33, s3
    s_add_u32 s33, s33, {VT_OFF}
    s_lshl_b32 s34, s{KH}, 13
    s_lshl_b32 s3, s{QG}, 10
    s_add_u32 s34, s34, s3
    s_mul_i32 s35, s{QB}, {rot_kv*1024}
    s_and_b32 s35, s35, 0x3fff
    v_lshlrev_b32 v{KD}, 4, v0
    v_lshrrev_b32 v7, 5, v0             ; h
    v_mul_u32_u24 v{VD}, 10240, v7
    v_and_b32 v1, 31, v0
    v_lshl_add_u32 v{VD}, v1, 4, v{VD}
    s_lshl_b32 s28, s{QB}, 3
    s_lshl_b32 s3, s{QG}, 1
    s_add_u32 s28, s28, s3
    s_add_u32 s28, s28, s{KH}
    v_lshlrev_b32 v6, 3, v0
    """)
    nkv = [0]
    def kv_issue():
        t = f"kv{nkv[0]}"; nkv[0] += 1
        return [f"s_mul_i32 s36, s35, 80",
                f"s_add_u32 s36, s36, s33",
                f"s_add_u32 m0, s34, 3072",
                "s_mov_b32 exec_lo, 0x000fffff",
                "s_mov_b32 exec_hi, 0x000fffff",
                f"buffer_load_dwordx4 v{VD}, {sr(SO,4)}, s36 offen{ldsc} lds",
                "s_mov_b64 exec, -1",
                f"s_cmp_eq_u32 s{QG}, 3",
                f"s_cbranch_scc1 {L(t)}",
                "s_mov_b32 m0, s34",
                "s_add_u32 s36, s32, s35",
                f"buffer_load_dwordx4 v{KD}, {sr(SO,4)}, s36 offen{ldsc} lds",
                f"{L(t)}:",
                f"s_xor_b32 s34, s34, {KV_SLOT}",
                "s_add_u32 s35, s35, 1024",
                "s_and_b32 s35, s35, 0x3fff"]
    def fill_rows():
        t = S[0]
        a(f"""
        v_lshrrev_b32 v{t+4}, 4, v0
        v_lshlrev_b32 v{t+4}, 9, v{t+4}
        v_and_b32 v{t+5}, 15, v0
        v_min_u32 v{t+5}, 11, v{t+5}
        v_lshl_add_u32 v{t+4}, v{t+5}, 4, v{t+4}
        s_lshr_b32 s3, s{W}, 1
        s_lshl_b32 s3, s3, 13
        s_and_b32 s36, s{W}, 1
        s_lshl_b32 s36, s36, 11
        s_add_u32 s3, s3, s36
        v_add_u32 v{t+4}, s3, v{t+4}
        v_cmp_eq_u32 vcc, 0, v{t+5}
        v_mov_b32 v{t+6}, 0x3f803f80
        v_cndmask_b32 v{t}, 0, v{t+6}, vcc
        v_mov_b32 v{t+1}, v{t}
        v_mov_b32 v{t+2}, v{t}
        v_mov_b32 v{t+3}, v{t}
        ds_write_b128 v{t+4}, {vr(t,4)} offset:{3072+320}
        """)
    fill_rows()
    a(f"""
    s_lshl_b32 s3, s{KH}, 13
    v_add_u32 v{VA}, s3, v{KD}
    v_mov_b32 v{KT[0]+2}, 0x3f803f80
    v_mov_b32 v{KT[0]+3}, 0x3f80
    v_mov_b32 v{KT[1]+2}, 0x3f803f80
    v_mov_b32 v{KT[1]+3}, 0x3f80
    v_mov_b32 v{EP}, 0
    s_lshl_b32 s3, s{W}, 2
    s_add_u32 s3, s3, {SYNC}
    v_mov_b32 v{SA}, s3
    v_and_b32 v{PA}, 7, v0
    v_lshlrev_b32 v{PA}, 2, v{PA}
    v_add_u32 v{PA}, {SYNC}, v{PA}
    v_mov_b32 v{SG}, 32
    v_mov_b32 v{SGA}, {SYNC+52}
    s_mov_b32 s{MODE}, 0
    """)
    nsb = [0]
    def arrive():
        return [f"v_add_u32 v{EP}, 1, v{EP}", f"ds_write_b32 v{SA}, v{EP}", f"ds_read_b32 v{PL}, v{PA}"]
    spins = []
    def check():
        t = f"sb{nsb[0]}"; nsb[0] += 1
        spins.append(t)
        return ["s_waitcnt lgkmcnt(0)", f"v_cmp_lt_u32 vcc, v{PL}, v{EP}", f"s_cbranch_vccnz {L(t+'s')}", f"{L(t+'r')}:"]
    def swbar():
        for x in arrive() + check(): a(x)
    a(f"""
    s_cmp_lg_u32 s{W}, {99 if nopoll else 0}
    s_cbranch_scc1 {L('pq_r')}
    """)
    a(f"""
    s_lshr_b32 s3, s{HEAD}, 1
    s_mul_i32 s3, s3, 40
    s_lshr_b32 s29, s3, 7
    s_add_u32 s30, s3, 39
    s_lshr_b32 s30, s30, 7
    s_sub_u32 s30, s30, s29              ; 0 or 1
    s_lshl_b32 s30, s30, 8
    s_lshl_b32 s29, s29, 8
    s_add_u32 s29, s29, {FQ_OFF}
    v_and_b32 v{S[1]}, 15, v0
    v_lshlrev_b32 v{S[1]}, 4, v{S[1]}
    v_bfe_u32 v{S[1]+1}, v0, 4, 1
    v_mul_u32_u24 v{S[1]+1}, s30, v{S[1]+1}
    v_add_u32 v{S[1]}, v{S[1]}, v{S[1]+1}
    v_mul_u32_u24 v{S[1]+1}, 1280, v7
    v_add_u32 v{S[1]+1}, v{S[1]}, v{S[1]+1}        ; + type k / v
    s_mov_b32 s31, 0x100000
    """)
    a.label(L("pq_l"))
    a(f"""
    buffer_load_dword v{S[1]+4}, v{S[1]+1}, {sr(SO,4)}, s29 offen offset:1280 sc1
    buffer_load_dword v{S[1]+5}, v{S[1]}, {sr(SO,4)}, s29 offen sc1
    s_sub_u32 s31, s31, 1
    s_cmp_eq_u32 s31, 0
    s_cbranch_scc1 {L('pq_r')}
    s_waitcnt vmcnt(0)
    v_xor_b32 v{S[1]+4}, s{NONCE}, v{S[1]+4}
    v_xor_b32 v{S[1]+5}, s{NONCE}, v{S[1]+5}
    v_or_b32 v{S[1]+4}, v{S[1]+4}, v{S[1]+5}
    v_cmp_ne_u32 vcc, 0, v{S[1]+4}
    s_cbranch_vccz {L('pq_r')}
    s_sleep {qslp}
    s_branch {L('pq_l')}
    """)
    a.label(L("pq_r"))
    swbar()
    a(f"ds_write_b32 v{SGA}, v{SG} offset:12")
    stamp(a, 6, st)
    for x in kv_issue(): a(x)
    for i in range(2):
        a(f"""
        s_xor_b32 s3, s28, {i}
        s_and_b32 s29, s3, 1
        s_lshl_b32 s29, s29, 3
        s_lshr_b32 s3, s3, 1
        s_lshl_b32 s3, s3, 10
        s_add_u32 s3, s3, s29
        s_add_u32 s29, s3, s20
        s_add_u32 s30, s3, s21
        s_add_u32 s31, s3, s22
        buffer_load_dwordx2 {vr(QM[i],2)}, v{KD}, {sr(SO,4)}, s29 offen{ldsc}
        buffer_load_dwordx2 {vr(QM[i]+2,2)}, v{KD}, {sr(SO,4)}, s30 offen{ldsc}
        buffer_load_dwordx2 {vr(QT[i],2)}, v{KD}, {sr(SO,4)}, s31 offen{ldsc}
        """)
    def rdK(b, t):
        return [f"ds_read2_b64 {vr(KM[b],4)}, v{VA} offset0:{t} offset1:{128+t}",
                f"ds_read_b64 {vr(KT[b],2)}, v{VA} offset:{2048+8*t}"]
    def rdV(b, t):
        return [f"ds_read_b128 {vr(V[b],4)}, v{VA} offset:{3072+t*2048}",
                f"ds_read_b128 {vr(V[b]+4,4)}, v{VA} offset:{3072+t*2048+1024}"]
    def qk(kb, q):
        return [f"v_mfma_f32_32x32x16_bf16 {vr(S[q],16)}, {vr(KM[kb],4)}, {vr(QM[q],4)}, 0",
                f"v_mfma_f32_32x32x16_bf16 {vr(S[q],16)}, {vr(KT[kb],4)}, {vr(QT[q],4)}, {vr(S[q],16)}"]
    def pv(vb, q):
        return [f"v_mfma_f32_32x32x16_bf16 {vr(O[q],16)}, {vr(V[vb],4)}, {vr(P[q],4)}, {vr(O[q],16)}",
                f"v_mfma_f32_32x32x16_bf16 {vr(O[q],16)}, {vr(V[vb]+4,4)}, {vr(P[q]+4,4)}, {vr(O[q],16)}"]
    def rowmax(q, dst, init):
        s = S[q]
        if init:
            a(f"v_max3_f32 v{dst}, v{s}, v{s+1}, v{s+2}"); rest = list(range(3, 16))
        else:
            rest = list(range(16))
        while len(rest) >= 2:
            a(f"v_max3_f32 v{dst}, v{dst}, v{s+rest[0]}, v{s+rest[1]}"); rest = rest[2:]
        if rest: a(f"v_max_f32 v{dst}, v{dst}, v{s+rest[0]}")
    def set_shift():
        a("v_cmp_eq_u32 vcc, 0, v7")
        for i in range(2):
            a(f"""
            v_mov_b32 v1, v{M[i]}
            v_permlane32_swap_b32 v{M[i]}, v1
            v_max_f32 v{M[i]}, v{M[i]}, v1
            v_sub_f32 v1, 0, v{M[i]}
            v_and_b32 v6, 0xffff0000, v1
            v_sub_f32 v1, v1, v6
            v_and_b32 v{P[0]}, 0xffff0000, v1
            v_sub_f32 v1, v1, v{P[0]}
            v_lshrrev_b32 v6, 16, v6
            v_or_b32 v6, v6, v{P[0]}
            v_lshrrev_b32 v1, 16, v1
            v_cndmask_b32 v{QT[i]+2}, 0, v6, vcc
            v_cndmask_b32 v{QT[i]+3}, 0, v1, vcc
            """)
    a("s_setprio 2")
    a("s_waitcnt vmcnt(0) lgkmcnt(0)")
    swbar()
    a(f"v_mov_b32 v1, 33"); a(f"ds_write_b32 v{SGA}, v1 offset:12")
    stamp(a, 7, st)
    for x in rdK(0, 0): a(x)
    for x in kv_issue(): a(x)
    a("v_cmp_eq_u32 vcc, s13, v7")
    for i in range(2):
        a(f"""
        v_cndmask_b32 v{QT[i]}, 0, v{QT[i]}, vcc
        v_cndmask_b32 v{QT[i]+1}, 0, v{QT[i]+1}, vcc
        v_mov_b32 v{QT[i]+2}, 0
        v_mov_b32 v{QT[i]+3}, 0
        """)
    a("s_waitcnt lgkmcnt(0)")
    for x in qk(0, 0) + qk(0, 1): a(x)
    def zero_state():
        for i in range(16):
            a(f"v_mov_b32 v{O[0]+i}, 0"); a(f"v_mov_b32 v{O[1]+i}, 0")
    zero_state()
    rowmax(0, M[0], True); rowmax(1, M[1], True)
    set_shift()
    a.label(L("restart"))
    for x in rdK(1, 1) + rdV(0, 0): a(x)
    for x in qk(0, 0): a(x)
    for i in range(8):
        a(f"v_mov_b32 v{P[1]+i}, 0"); a(f"v_mov_b32 v{V[1]+i}, 0")
    a(f"s_mov_b32 s{CNT}, 16")
    def phase(q, mf, extra=None, pre=None):
        extra = extra or {}
        for g in range(4):
            if pre and g in pre:
                for x in pre[g]: a(x)
            a(mf[g])
            for x in extra.get(g, []): a(x)
            for i in range(4): a(f"v_exp_f32 v{S[q]+4*g+i}, v{S[q]+4*g+i}")
            for i in range(2): a(f"v_cvt_pk_bf16_f32 v{P[q]+2*g+i}, v{S[q]+4*g+2*i}, v{S[q]+4*g+2*i+1}")
    a(".p2align 6")
    a.label(L("loop"))
    if epst:
        for k in range(1, 16):
            a(f"s_cmp_lg_u32 s{CNT}, {17-k}"); a(f"s_cbranch_scc1 {L('es'+str(k))}"); stamp(a, k, epst); a.label(L("es" + str(k)))
    pres = [{}, {0: ["s_waitcnt lgkmcnt(0)"]}]
    exs = [{}, {0: rdV(1, 1)}]
    if lowat: pres[lowat[0]].setdefault(lowat[1], []).insert(0, "s_setprio 1")
    phase(0, qk(0, 1) + pv(1, 1), pre=pres[0], extra=exs[0])
    phase(1, qk(1, 0) + pv(0, 0), pre=pres[1], extra=exs[1])
    skipkv = [f"s_cmp_le_u32 s{CNT}, 2", f"s_cbranch_scc1 {L('nokv')}"] + kv_issue() + [f"{L('nokv')}:"]
    phase(0, qk(1, 1) + pv(0, 1),
          pre={0: ["s_waitcnt vmcnt(0) lgkmcnt(0)", "s_barrier", "s_setprio 2", f"v_xor_b32 v{VA}, {KV_SLOT}, v{VA}"]},
          extra={0: rdK(0, 0), 1: skipkv})
    phase(1, qk(0, 0) + pv(1, 0), pre={0: ["s_waitcnt lgkmcnt(0)"]}, extra={0: rdK(1, 1), 1: rdV(0, 0)})
    a(f"""
    s_sub_u32 s{CNT}, s{CNT}, 1
    s_cmp_lg_u32 s{CNT}, 0
    s_cbranch_scc1 {L('loop')}
    """)
    for x in pv(1, 1): a(x)
    stamp(a, 8, st)
    a(f"""
    s_lshl_b32 s3, s{W}, 12
    v_add_u32 v6, s3, v{KD}
    v_mov_b32 v1, 0x5d800000
    s_lshl_b32 s3, s28, 5
    s_add_u32 s3, s3, s{HEAD}
    s_lshl_b32 s29, s3, 10
    s_add_u32 s29, s29, {OM_OFF}
    s_lshl_b32 s37, s3, 8
    s_add_u32 s37, s37, {OT_OFF}
    s_lshl_b32 s38, s{QB}, 5
    s_add_u32 s38, s38, s{HEAD}
    s_lshl_b32 s38, s38, 4
    s_add_u32 s38, s38, {OFL_OFF}
    s_waitcnt lgkmcnt(0)
    v_cmp_nle_f32 vcc, v{O[0]+8}, v1
    v_cmp_nle_f32 s[30:31], v{O[1]+8}, v1
    ds_write_b128 v6, {vr(O[1],4)} offset:{EX_OFF}
    ds_write_b128 v6, {vr(O[1]+4,4)} offset:{EX_OFF+1024}
    ds_write_b128 v6, {vr(O[1]+8,4)} offset:{EX_OFF+2048}
    ds_write_b32 v6, v{M[1]} offset:{EX_OFF+3072}
    s_or_b32 s30, s31, vcc_hi
    v_mov_b32 v1, {SYNC+48}
    s_cmp_eq_u32 s30, 0
    s_cbranch_scc1 {L('noflag')}
    v_mov_b32 v{P[0]}, 1
    ds_write_b32 v1, v{P[0]}
    """)
    a.label(L("noflag"))
    swbar()
    a(f"""
    ds_read_b32 v1, v1
    v_xor_b32 v6, 0x4000, v6
    ds_read_b32 v{S[0]+12}, v6 offset:{EX_OFF+3072}
    ds_read_b128 {vr(S[0]+8,4)}, v6 offset:{EX_OFF+2048}
    ds_read_b128 {vr(S[0],4)}, v6 offset:{EX_OFF}
    ds_read_b128 {vr(S[0]+4,4)}, v6 offset:{EX_OFF+1024}
    s_waitcnt lgkmcnt(3)
    v_readfirstlane_b32 s30, v1
    v_max_f32 v1, v{M[0]}, v{S[0]+12}
    v_sub_f32 v{P[0]}, v{M[0]}, v1
    v_sub_f32 v{P[0]+1}, v{S[0]+12}, v1
    s_andn2_b32 s30, s30, s{MODE}
    s_cmp_lg_u32 s30, 0
    s_cbranch_scc1 {L('slow')}
    v_exp_f32 v{P[0]}, v{P[0]}
    v_exp_f32 v{P[0]+1}, v{P[0]+1}
    s_waitcnt lgkmcnt(2)
    v_mul_f32 v1, v{O[0]+8}, v{P[0]}
    v_fmac_f32 v1, v{S[0]+8}, v{P[0]+1}
    v_mov_b32 v6, v1
    v_permlane32_swap_b32 v1, v6
    v_rcp_f32 v6, v6
    v_lshlrev_b32 v1, 3, v0
    v_mul_f32 v{P[0]}, v{P[0]}, v6
    v_mul_f32 v{P[0]+1}, v{P[0]+1}, v6
    s_waitcnt lgkmcnt(0)
    """)
    for i in range(12): a(f"v_mul_f32 v{O[0]+i}, v{O[0]+i}, v{P[0]}")
    for i in range(12): a(f"v_fmac_f32 v{O[0]+i}, v{S[0]+i}, v{P[0]+1}")
    for i in range(6):
        a(f"v_cvt_pk_bf16_f32 v{S[1]+i}, v{O[0]+2*i}, v{O[0]+2*i+1}")
    a(f"""
    buffer_store_dwordx4 {vr(S[1],4)}, v{KD}, {sr(SO,4)}, s29 offen sc1
    s_mov_b32 exec_hi, 0
    buffer_store_dwordx2 {vr(S[1]+4,2)}, v1, {sr(SO,4)}, s37 offen sc1
    """)
    stamp(a, 9, st)
    a(f"""
    s_waitcnt vmcnt(0)
    """)
    signal(76, 8, 38, P[0])
    stamp(a, 10, st)
    stamp_flush(a, 11, st, W, SO)
    stamp_flush(a, 16, epst or p1st, W, SO)
    a("s_endpgm")
    a.label(L("slow"))
    a(f"""
    s_mov_b32 s{MODE}, 1
    s_waitcnt lgkmcnt(0)
    """)
    swbar()
    fill_rows()
    for i in range(2):
        a(f"v_mov_b32 v{QT[i]+2}, 0"); a(f"v_mov_b32 v{QT[i]+3}, 0"); a(f"v_mov_b32 v{M[i]}, 0xff800000")
    for x in kv_issue(): a(x)
    a(f"s_mov_b32 s{CNT}, 16")
    a.label(L("maxloop"))
    a("s_waitcnt vmcnt(0) lgkmcnt(0)")
    swbar()
    for x in kv_issue(): a(x)
    for x in rdK(0, 0) + rdK(1, 1): a(x)
    a(f"v_xor_b32 v{VA}, {KV_SLOT}, v{VA}")
    a("s_waitcnt lgkmcnt(0)")
    for t in range(2):
        for x in qk(t, 0) + qk(t, 1): a(x)
        rowmax(0, M[0], False); rowmax(1, M[1], False)
    a(f"""
    s_sub_u32 s{CNT}, s{CNT}, 1
    s_cmp_lg_u32 s{CNT}, 0
    s_cbranch_scc1 {L('maxloop')}
    """)
    set_shift()
    zero_state()
    a("s_waitcnt vmcnt(0)")
    swbar()
    a(f"ds_write_b32 v{SGA}, v{SG}")
    for x in kv_issue(): a(x)
    for x in rdK(0, 0): a(x)
    a("s_waitcnt lgkmcnt(0)")
    a(f"s_branch {L('restart')}")
    for t in spins:
        a.label(L(t + "s"))
        a(f"""
        s_sleep {slp}
        ds_read_b32 v{PL}, v{PA}
        s_waitcnt lgkmcnt(0)
        v_cmp_lt_u32 vcc, v{PL}, v{EP}
        s_nop 1
        s_cbranch_vccnz {L(t+'s')}
        s_branch {L(t+'r')}
        """)
    a.label(L("end"))
    a("s_endpgm")
    return kernel_text(name, a.text(), 168, 102)
```

```python
from mkf import *
fused("g0.s", st="rt", pfc=False, pf0=False)
fused("g1.s", st="rt", pf0=False)
fused("g2.s", st="rt")
fused("h0.s", single=True, pfc=False, pf0=False)
fused("h1.s", single=True, pf0=False)
fused("h2.s", single=True)
fused("h3.s", single=True, pfall=False, ng=3)
fused("h4.s", single=True, pfh=True)
```

```python
from asmlib import *
from layout import *
from k1 import srd, stamp, stamp_flush
from k2 import row192

KV_SLOT = 16384
EX_OFF = 0
FB = 32768
USLOT = 41024
UW1 = 16384
UW3D = 12288 + 32
SYNC = FB + 3 * USLOT
ST_M = SYNC + 320
ST_CS = ST_M + 1024
LNP = ST_M + 1536
FK_LDS = LNP + 256
NONCE = 99

def gen_fk(name, st=False, lowat=(1, 1), fprio=0, sprio=3, dprio=0, slp=1, sigat=(1, 0), sigw=4, ldsc=' sc1', gprio=1, qslp=2, upst=False, qsc=' sc1', fpause=2, nopoll=False, pf=0, dq=3, ptry=3, pfw=False, epst=False, p1st=False, wprio=1, b11=True, rup=(0, 0), pf2=True, tcb=(True,), rp1=(0, 0, 9), hprio=3, lst=False, peel=2, ramp=1, ng=4, pfall=True, pfd=4, pfn=12, pfh=False, pfc=False, pf0=False, osc='', fixdur=0):
    a = Asm()
    L = lambda s: f"{name}_{s}"
    rot_up = (0, 0); rot_dn = (0, 0); rot_kv = 0; nomem = False
    TB, CG, W = 10, 11, 12
    SO = 16
    stamp(a, 0, st or epst or p1st or lst)
    a(f"""
    s_load_dwordx4 s[4:7], s[0:1], 0
    s_load_dwordx4 s[92:95], s[0:1], 64
    s_cmp_ge_u32 s2, 256
    s_cbranch_scc1 {L('end')}
    v_lshrrev_b32 v1, 6, v0
    v_and_b32 v0, 63, v0
    s_and_b32 s3, s2, 3
    s_lshl_b32 s3, s3, 2
    v_readfirstlane_b32 s{W}, v1
    s_bfe_u32 s15, s2, 0x20003
    s_add_u32 s{TB}, s3, s15
    s_bfe_u32 s3, s2, 0x10002
    s_lshl_b32 s3, s3, 3
    s_lshr_b32 s{CG}, s2, 5
    s_add_u32 s{CG}, s{CG}, s3
    s_mov_b32 s{SO+2}, {WS_USED}
    s_mov_b32 s{SO+3}, 0x00020000
    s_cmp_lt_u32 s{W}, 4
    s_cbranch_scc1 {L('mfma')}
    s_cmp_lt_u32 s{W}, 8
    s_cbranch_scc1 {L('help')}
    """)
    def ws_srd():
        a(f"s_mov_b32 s{SO}, s94"); a(f"s_and_b32 s{SO+1}, s95, 0xffff")
    nsig = [0]
    def signal(cnt_off, n, soff, t0, issue=None):
        t = f"sg{nsig[0]}"; nsig[0] += 1
        a(f"""
        s_mov_b64 exec, 1
        v_mov_b32 v{t0}, {SYNC+cnt_off}
        v_mov_b32 v{t0+1}, 1
        ds_add_rtn_u32 v{t0+1}, v{t0}, v{t0+1}
        v_mov_b32 v{t0}, 0
        v_mov_b32 v{t0+2}, s{NONCE}
        s_waitcnt lgkmcnt(0)
        v_cmp_eq_u32 vcc, {n-1}, v{t0+1}
        s_cbranch_vccz {L(t)}
        """)
        a(f"buffer_store_dword v{t0+2}, v{t0}, {sr(SO,4)}, s{soff} offen sc1")
        a.label(L(t))
        a("s_mov_b64 exec, -1")
    def get_nonce(tmp):
        a(f"""
        v_mov_b32 v{tmp}, {SYNC+60}
        ds_read_b32 v{tmp}, v{tmp}
        s_waitcnt lgkmcnt(0)
        v_readfirstlane_b32 s{NONCE}, v{tmp}
        """)
    vm = VM(a)
    LW = 24
    SX, SW = 48, 20
    SWU, SXN, SW2 = 40, 44, 48
    TBU, FBK, TK, CB = 4, 5, 6, 7
    UP = 5; DN = 8
    XA, WA, HA, W2A, H2, FEP, FSA, FPA, FPL, JA, JV = 13, 14, 15, 16, 17, 18, 19, 20, 21, 22, 23
    NB = 59; DS = 57
    FBUF = [24, 44]
    ACC = 64
    LX, LWV = 160, 164
    a(f"""
    s_load_dwordx4 s[52:55], s[0:1], 32
    s_setprio 3
    s_sub_u32 s{LW}, s{W}, 8
    v_lshrrev_b32 v1, 3, v0             ; lane>>3
    v_lshrrev_b32 v2, 4, v0             ; lane>>4
    v_and_b32 v3, 7, v0
    v_xor_b32 v3, v3, v2
    s_lshl_b32 s3, s{TB}, 7
    s_lshl_b32 s29, s{LW}, 5
    s_add_u32 s3, s3, s29
    v_add_u32 v1, s3, v1
    v_mul_u32_u24 v1, 1280, v1
    v_lshl_add_u32 v{LX}, v3, 4, v1
    v_xor_b32 v3, 4, v3
    v_lshl_add_u32 v{LX+1}, v3, 4, v1
    v_add_u32 v{LX+1}, {8*1280-1024}, v{LX+1}
    v_add_u32 v{LX+2}, {16*1280-2048}, v{LX}
    v_add_u32 v{LX+3}, {16*1280-2048}, v{LX+1}
    s_lshl_b32 s3, s{LW}, 4
    v_add_u32 v1, s3, v2
    v_mul_u32_u24 v1, 3840, v1
    v_and_b32 v3, 15, v0
    v_lshlrev_b32 v2, 2, v2
    v_xor_b32 v3, v3, v2
    v_lshl_add_u32 v{LWV}, v3, 4, v1
    s_lshl_b32 s3, s{CG}, 8
    v_add_u32 v{LWV}, s3, v{LWV}
    v_add_u32 v{LWV+1}, {4*3840-1024}, v{LWV}
    v_add_u32 v{LWV+2}, {8*3840-2048}, v{LWV}
    v_add_u32 v{LWV+3}, {12*3840-3072}, v{LWV}
    s_lshl_b32 s34, s{LW}, 12
    s_mov_b32 s8, s34
    s_add_u32 s9, s34, 98304
    s_lshr_b32 s3, s2, 5
    s_mul_i32 s3, s3, {rp1[0]}
    s_mul_i32 s32, s15, {rp1[1]}
    s_add_u32 s32, s32, s3
    s_and_b32 s3, s2, {3 if rp1[2] == 9 else 7}
    s_mul_i32 s3, s3, {5 if rp1[2] == 9 else rp1[2]}
    s_lshr_b32 s3, s3, {1 if rp1[2] == 9 else 0}
    s_add_u32 s32, s32, s3
    s_mul_i32 s3, s32, 205
    s_lshr_b32 s3, s3, 11
    s_mul_i32 s3, s3, 10
    s_sub_u32 s32, s32, s3
    s_mul_i32 s33, s32, {64*3840}
    s_lshl_b32 s32, s32, 7
    s_waitcnt lgkmcnt(0)
    """)
    srd(a, SX, 4, 2048 * 1280)
    srd(a, SW, 6, 640 * 3840)
    a(f"""
    s_cmp_eq_u32 s{CG}, 15
    s_cselect_b32 s{SX+2}, 0, s{SX+2}
    s_cselect_b32 s{SW+2}, 0, s{SW+2}
    """)
    def issue(tag=None):
        iss = (lambda t: vm.issue(t, tag)) if tag else a
        a(f"s_add_u32 m0, s34, 16384")
        for i in range(4): iss(f"buffer_load_dwordx4 v{LWV+i}, {sr(SW,4)}, s33 offen offset:{i*1024} lds")
        a(f"s_mov_b32 m0, s34")
        for i in range(4): iss(f"buffer_load_dwordx4 v{LX+i}, {sr(SX,4)}, s32 offen offset:{i*1024} lds")
        a(f"""
        s_add_u32 s34, s34, 32768
        s_cmp_eq_u32 s34, s9
        s_cselect_b32 s34, s8, s34
        s_add_u32 s32, s32, 128
        s_add_u32 s33, s33, {64*3840}
        s_cmp_eq_u32 s32, 1280
        s_cselect_b32 s32, 0, s32
        s_cselect_b32 s33, 0, s33
        """)
    issue()
    ws_srd()
    a(f"""
    s_lshr_b32 s25, s{LW}, 1
    s_and_b32 s26, s{LW}, 1
    v_lshlrev_b32 v2, 4, v0             ; lane*16
    v_lshrrev_b32 v1, 5, v0             ; h
    v_and_b32 v4, 31, v0
    v_mov_b32 v{FEP}, 0
    s_lshl_b32 s3, s{LW}, 2
    s_add_u32 s3, s3, {SYNC+32}
    v_mov_b32 v{FSA}, s3
    ds_write_b32 v{FSA}, v{FEP}
    v_mov_b32 v11, {SYNC+48}
    ds_write_b32 v11, v{FEP}
    ds_write_b32 v11, v{FEP} offset:4
    ds_write_b32 v11, v{FEP} offset:16
    v_mov_b32 v12, -1
    ds_write_b32 v11, v12 offset:20
    ds_write_b32 v11, v{FEP} offset:24
    ds_write_b32 v11, v{FEP} offset:28
    ds_write_b32 v11, v{FEP} offset:32
    ds_write_b32 v11, v{FEP} offset:36
    v_and_b32 v11, 7, v0
    v_lshlrev_b32 v11, 2, v11
    v_add_u32 v11, {SYNC}, v11
    ds_write_b32 v11, v{FEP}
    """)
    b = a
    row192(b, UP, 3072, 11, 12)
    b(f"""
    s_mov_b32 s{TBU}, s{CG}
    s_mov_b32 s{FBK}, s{TB}
    s_lshl_b32 s36, s{TBU}, 2
    s_add_u32 s36, s36, s{LW}
    s_mul_i32 s36, s36, 40960
    s_add_u32 s36, s36, {XN_OFF}
    s_mul_i32 s37, s{FBK}, 192
    s_mul_i32 s3, s25, {2*16*3072}
    s_add_u32 s37, s37, s3               ; W cursor
    s_mov_b32 s28, s36
    s_add_u32 s29, s36, 40960
    s_mov_b32 s30, s37
    s_lshr_b32 s3, s2, 5
    s_mul_i32 s3, s3, {rup[0]}
    s_bfe_u32 s31, s2, 0x20003
    s_mul_i32 s31, s31, {rup[1]}
    s_add_u32 s31, s31, s3
    s_mul_i32 s3, s31, 26
    s_lshr_b32 s3, s3, 8
    s_mul_i32 s3, s3, 10
    s_sub_u32 s31, s31, s3
    s_lshl_b32 s3, s31, 12
    s_add_u32 s36, s36, s3
    s_mul_i32 s3, s31, {64*3072}
    s_add_u32 s37, s37, s3
    s_lshl_b32 s38, s{LW}, 12
    s_add_u32 s38, s38, {FB}
    s_mul_i32 s39, s26, {UW3D}
    s_mul_i32 s3, s25, 6144
    s_add_u32 s39, s39, s3
    s_add_u32 s39, s39, {FB+UW1}
    s_mov_b32 s{DS}, {2*USLOT}
    s_cmp_eq_u32 s26, 0
    s_cselect_b32 s{SWU}, s52, s54
    s_cselect_b32 s{SWU+1}, s53, s55
    s_and_b32 s{SWU+1}, s{SWU+1}, 0xffff
    s_mov_b32 s{SWU+2}, {640*3072}
    s_mov_b32 s{SWU+3}, 0x00020000
    s_mov_b32 s{SXN}, s{SO}
    s_mov_b32 s{SXN+1}, s{SO+1}
    s_mov_b32 s{SXN+2}, {WS_USED}
    s_mov_b32 s{SXN+3}, 0x00020000
    v_and_b32 v{FPA}, 3, v0
    v_lshlrev_b32 v{FPA}, 2, v{FPA}
    v_add_u32 v{FPA}, {SYNC+32}, v{FPA}
    """)
    row192(b, DN, 1280, 11, 12)
    b(f"""
    s_lshl_b32 s3, s25, 13
    s_add_u32 s3, s3, {FB+2*USLOT}
    v_add_u32 v{XA}, s3, v2
    v_bfe_u32 v11, v0, 2, 2              ; r
    v_lshl_add_u32 v12, v1, 3, v11       ; 8h+r
    v_mul_u32_u24 v12, 192, v12
    v_and_b32 v22, 3, v0
    v_lshl_add_u32 v12, v22, 3, v12
    v_bfe_u32 v23, v0, 4, 1              ; m
    v_mul_u32_u24 v3, {UW3D}, v23
    v_add_u32 v12, v12, v3
    s_mul_i32 s3, s26, 96
    s_add_u32 s3, s3, {FB+UW1+2*USLOT}
    v_add_u32 v{WA}, s3, v12
    s_mul_i32 s15, s{LW}, 30720
    s_add_u32 s15, s15, {FB}
    v_add_u32 v{HA}, s15, v2
    v_lshl_add_u32 v12, v1, 2, v11       ; 4h+r
    v_mul_u32_u24 v12, 192, v12
    v_lshl_add_u32 v12, v22, 3, v12
    v_lshl_add_u32 v12, v23, 5, v12
    v_add_u32 v{W2A}, s15, v12
    v_add_u32 v{H2}, {96*1024-1024}, v2
    s_mov_b32 s14, {2*USLOT}
    v_mov_b32 v{JA}, {SYNC+52}
    s_mov_b32 s{NB}, 0
    v_and_b32 v11, 15, v0
    v_lshlrev_b32 v11, 4, v11
    s_lshl_b32 s35, s{TBU}, 8
    s_add_u32 s35, s35, {FA_OFF}
    """)
    for i in range(4): a(f"v_mov_b32 v{24+i}, 0")
    for i in range(6): a(f"v_mfma_f32_32x32x16_bf16 {vr(ACC+16*i,16)}, v[24:27], v[24:27], 0")
    a(f"""
    s_cmp_eq_u32 s{CG}, 15
    s_cbranch_scc1 {L('fidle')}
    s_mov_b32 s13, 8
    """)
    if lst:
        for k in range(8):
            issue()
            a("s_waitcnt vmcnt(8) lgkmcnt(0)")
            stamp(a, 2 * k + 1, lst) if k < 7 else None
            a("s_barrier")
            stamp(a, 2 * k + 2, lst) if k < 7 else stamp(a, 15, lst)
        stamp_flush(a, 16, lst, W, SO)
        a(f"s_mov_b32 s{SO+2}, {WS_USED}"); a("v_lshlrev_b32 v2, 4, v0"); a("v_lshrrev_b32 v1, 5, v0"); a("s_waitcnt vmcnt(0)")
    else:
        a.label(L("lloop"))
        issue()
        a(f"""
        s_waitcnt vmcnt(8) lgkmcnt(0)
        s_barrier
        s_sub_u32 s13, s13, 1
        s_cmp_lg_u32 s13, 0
        s_cbranch_scc1 {L('lloop')}
        """)
    get_nonce(12)
    vm.q = ["p8"] * 8
    issue("p9")
    vm.wait("p8")
    a("s_barrier")
    a.label(L("pa_r"))
    def f_dmas(tag):
        g = []
        for k in range(2):
            for p in range(3):
                it = [(tag, f"buffer_load_dwordx4 v{UP+p}, {sr(SWU,4)}, s{37 if k == 0 else 58} offen offset:{p*1024} lds")]
                if p == 0:
                    it = ([f"s_add_u32 m0, s39, s{DS}"] if k == 0 else [f"s_add_u32 m0, m0, 3072", f"s_add_u32 s58, s37, {16*3072}"]) + it
                g.append(it)
        for ks in range(4):
            it = [(tag, f"buffer_load_dwordx4 v2, {sr(SXN,4)}, s36 offen offset:{ks*1024}{ldsc} lds")]
            if ks == 0: it = [f"s_add_u32 m0, s38, s{DS}"] + it
            g.append(it)
        g[-1] = g[-1] + ["s_add_u32 s36, s36, 4096", f"s_add_u32 s37, s37, {64*3072}", "s_cmp_eq_u32 s36, s29",
                         "s_cselect_b32 s36, s28, s36", "s_cselect_b32 s37, s30, s37",
                         f"s_sub_u32 s{DS}, s{DS}, {USLOT}", f"s_cselect_b32 s{DS}, {2*USLOT}, s{DS}"]
        return g
    def emit_group(grp, track=True):
        for x in grp:
            if isinstance(x, tuple):
                if track: vm.issue(x[1], x[0])
                else: a(x[1])
            else: a(x)
    for g in f_dmas("f0"): emit_group(g)
    vm.wait("p9")
    def do_pause():
        if fpause:
            a.label(L("fp_l"))
            a(f"""
            s_sleep 2
            ds_read_b32 v{JV}, v{JA} offset:{12 if fpause == 1 else 28}
            s_waitcnt lgkmcnt(0)
            v_cmp_gt_u32 vcc, {1 if fpause == 1 else 4}, v{JV}
            s_cmp_eq_u32 s{CG}, 15
            s_cbranch_scc1 {L('fp_r')}
            s_cbranch_vccnz {L('fp_l')}
            """)
            a.label(L("fp_r"))
    if peel:
        a(f"""
        s_cmp_eq_u32 s{CG}, 15
        s_cbranch_scc1 {L('f9a')}
        s_barrier
        """)
        a.label(L("f9a"))
        for g in f_dmas("f1"): emit_group(g)
        a(f"""
        s_cmp_eq_u32 s{CG}, 15
        s_cbranch_scc1 {L('f9')}
        s_barrier
        s_barrier
        """)
        a.label(L("f9"))
        a(f"s_setprio {gprio}")
    else:
        a(f"""
        s_cmp_eq_u32 s{CG}, 15
        s_cbranch_scc1 {L('f9')}
        s_barrier
        s_barrier
        s_barrier
        """)
        a.label(L("f9"))
        do_pause()
        a(f"s_setprio {gprio}")
        for g in f_dmas("f1"): emit_group(g)
    fspins = []
    def farrive(o=0):
        return [f"v_add_u32 v{FEP+o}, 1, v{FEP+o}", f"ds_write_b32 v{FSA+o}, v{FEP+o}", f"ds_read_b32 v{FPL+o}, v{FPA+o}"]
    def fcheck(o=0):
        t = f"fb{len(fspins)}"; fspins.append((t, o))
        return ["s_waitcnt lgkmcnt(0)", f"v_cmp_lt_u32 vcc, v{FPL+o}, v{FEP+o}", f"s_cbranch_vccnz {L(t+'s')}", f"{L(t+'r')}:"]
    njoin = [0]
    def jread(o=0): return [f"ds_read_b32 v{JV+o}, v{JA+o}"]
    def jtest(o=0):
        t = f"j{njoin[0]}"; njoin[0] += 1
        return [f"v_cmp_lt_u32 vcc, s{NB}, v{JV+o}", f"s_cbranch_vccz {L(t)}", "s_barrier", f"s_add_u32 s{NB}, s{NB}, 1", f"{L(t)}:"]
    MD = 56
    ncb = [0]
    def cbar():
        t = f"cb{ncb[0]}"; ncb[0] += 1
        return [f"s_cmp_ge_u32 s{NB}, s{MD}", f"s_cbranch_scc1 {L(t)}", "s_barrier", f"s_add_u32 s{NB}, s{NB}, 1", f"{L(t)}:"]
    a(f"s_mov_b32 s{MD}, 0")
    vm.wait("f0")
    for x in farrive() + fcheck(): a(x)
    stamp(a, 1, st)
    def up_reads(b, ks):
        f = FBUF[b]; out = []
        out.append(f"ds_read_b128 {vr(f,4)}, v{XA} offset:{ks*1024}")
        for ft in range(3):
            for half in range(2):
                out.append(f"ds_read_b64_tr_b16 {vr(f+8+4*ft+2*half,2)}, v{WA} offset:{ks*3072 + half*768 + ft*32}")
            if ft == 0: out.append(f"ds_read_b128 {vr(f+4,4)}, v{XA} offset:{4096+ks*1024}")
        return out
    def mfmas(b, first=False):
        f = FBUF[b]; out = []
        for ft in range(3):
            for tt in range(2):
                acc = ACC + 16 * (ft * 2 + tt)
                c = "0" if first else vr(acc, 16)
                out.append(f"v_mfma_f32_32x32x16_bf16 {vr(acc,16)}, {vr(f+8+4*ft,4)}, {vr(f+4*tt,4)}, {c}")
        return out
    def kstep(b, nxt, groups, track, first=False, ng=4, join=False):
        a("s_waitcnt lgkmcnt(0)")
        m = mfmas(b, first)
        for i in range(6):
            a(m[i])
            if join and i == 0:
                for x in jtest(): a(x)
            if join and i == 5:
                for x in jread(): a(x)
            if i < 4:
                for x in nxt[2*i:2*i+2]: a(x)
            if i >= 6 - ng and groups: emit_group(groups.pop(0), track)
    for x in up_reads(0, 0): a(x)
    a("s_mov_b32 s13, 10")
    def adv_rd():
        a(f"""
        s_sub_u32 s3, s14, {USLOT}
        s_cselect_b32 s3, {2*USLOT}, s3
        s_sub_u32 s27, s3, s14
        s_mov_b32 s14, s3
        v_add_u32 v{XA}, s27, v{XA}
        v_add_u32 v{WA}, s27, v{WA}
        """)
    if peel == 1:
        for ks in range(3): kstep(ks % 2, up_reads((ks + 1) % 2, ks + 1), [], False)
        do_pause()
        for g in f_dmas("f"): emit_group(g, False)
        a(f"s_branch {L('upmid')}")
    if peel == 2:
        if not pfall:
            a(f"""
            s_cmp_eq_u32 s{CG}, 15
            s_cbranch_scc1 {L('uploop')}
            """)
        for ks in range(3): kstep(ks % 2, up_reads((ks + 1) % 2, ks + 1), [], False)
        adv_rd()
        a("s_waitcnt vmcnt(0) lgkmcnt(0)")
        for x in farrive() + fcheck(): a(x)
        m_ = mfmas(1); nx_ = up_reads(0, 0)
        for i in range(6):
            a(m_[i])
            for x in nx_[2*i:2*i+2]: a(x)
        for ks in range(3): kstep(ks % 2, up_reads((ks + 1) % 2, ks + 1), [], False)
        a.label(L("fq_l"))
        a(f"""
        s_sleep 1
        ds_read_b32 v{JV}, v{JA} offset:12
        s_waitcnt lgkmcnt(0)
        v_cmp_gt_u32 vcc, 33, v{JV}
        s_cbranch_vccnz {L('fq_l')}
        s_setprio 3
        """)
        for g in f_dmas("f") + f_dmas("f"): emit_group(g, False)
        a(f"""
        s_mov_b32 s{MD}, 16
        s_mov_b32 s13, 9
        s_branch {L('upmid')}
        """)
    a(".p2align 6")
    a.label(L("uploop"))
    if upst:
        for k in range(1, 10):
            a(f"s_cmp_lg_u32 s13, {10-k}"); a(f"s_cbranch_scc1 {L('us'+str(k))}"); stamp(a, 1 + k, st); a.label(L("us" + str(k)))
    a(f"""
    s_cmp_le_u32 s13, 2
    s_cselect_b32 s{SWU+2}, 0, s{SWU+2}
    s_cselect_b32 s{SXN+2}, 0, s{SXN+2}
    """)
    groups = f_dmas("f")
    for ks in range(3): kstep(ks % 2, up_reads((ks + 1) % 2, ks + 1), groups, False, ng=(4, 3, 3)[ks])
    assert not groups
    a.label(L("upmid"))
    m = mfmas(1)
    a(f"""
    s_sub_u32 s3, s14, {USLOT}
    s_cselect_b32 s3, {2*USLOT}, s3
    s_sub_u32 s27, s3, s14
    s_mov_b32 s14, s3
    s_setprio 3
    v_add_u32 v{XA}, s27, v{XA}
    v_add_u32 v{WA}, s27, v{WA}
    s_cmp_eq_u32 s{MD}, 0
    s_cbranch_scc1 {L('gsync')}
    s_setprio {fprio}
    s_waitcnt vmcnt(10) lgkmcnt(0)
    s_barrier
    s_add_u32 s{NB}, s{NB}, 1
    """)
    a.label(L("gback"))
    nx = up_reads(0, 0)
    for i in range(6):
        a(m[i])
        for x in nx[2*i:2*i+2]: a(x)
    a(f"""
    s_sub_u32 s13, s13, 1
    s_cmp_lg_u32 s13, 0
    s_cbranch_scc1 {L('uploop')}
    """)
    st_save = st
    if upst:
        stamp(a, 11, st); st = False
    stamp(a, 2, st)
    a(f"""
    s_setprio {sprio}
    s_load_dwordx2 s[52:53], s[0:1], 48
    s_load_dwordx2 s[92:93], s[0:1], 0
    s_load_dwordx2 s[94:95], s[0:1], 16
    s_load_dwordx2 s[96:97], s[0:1], 56
    s_mov_b32 s{SWU}, {f2u(-1.4426950408889634):#x}
    s_lshl_b32 s3, s{TBU}, 2
    s_lshl_b32 s36, s25, 1
    s_add_u32 s3, s3, s36
    s_mul_i32 s36, s3, 96                ; toktile*96
    s_mul_i32 s3, s{FBK}, 6
    s_add_u32 s36, s36, s3
    s_mul_i32 s3, s26, 3
    s_add_u32 s36, s36, s3
    s_lshl_b32 s36, s36, 10
    s_add_u32 s36, s36, {H_OFF}
    s_add_u32 s37, s36, {96*1024}
    s_waitcnt lgkmcnt(0)
    """)
    vm.q = ["z"] * 10
    srd(a, SW2, 52, 1536 * 1280)
    for ft in range(3):
        for tt in range(2):
            n = ft * 2 + tt
            g = ACC + 16 * n; u = g + 8
            T = 24 + 8 * (n % 2)
            for i in range(8): a(f"v_mul_f32 v{T+i}, s{SWU}, v{g+i}")
            for i in range(8): a(f"v_exp_f32 v{T+i}, v{T+i}")
            for i in range(8): a(f"v_mul_f32 v{g+i}, v{g+i}, v{u+i}")
            for i in range(8): a(f"v_add_f32 v{T+i}, 1.0, v{T+i}")
            for i in range(8): a(f"v_rcp_f32 v{T+i}, v{T+i}")
            for i in range(8): a(f"v_mul_f32 v{g+i}, v{g+i}, v{T+i}")
            for i in range(4): a(f"v_cvt_pk_bf16_f32 v{u+i}, v{g+2*i}, v{g+2*i+1}")
            vm.issue(f"buffer_store_dwordx4 {vr(u,4)}, v2, {sr(SO,4)}, s{36+tt} offen offset:{ft*1024} sc1", "hs")
    stamp(a, 3, st)
    vm.wait("z")
    for x in farrive(): a(x)
    a(f"""
    s_lshl_b32 s3, s{TBU}, 4
    s_add_u32 s3, s3, s{FBK}
    s_lshl_b32 s3, s3, 4
    s_add_u32 s55, s3, {FLG_OFF}
    v_mov_b32 v11, 0
    v_mov_b32 v12, s{NONCE}
    s_lshr_b32 s3, s2, 3
    s_cmp_ge_u32 s3, 28
    s_cselect_b32 s{SW2+2}, 0, s{SW2+2}
    s_lshr_b32 s{CB}, s3, 2
    s_and_b32 s3, s3, 3
    s_and_b32 s{TK}, s2, 7
    s_lshl_b32 s{TK}, s{TK}, 2
    s_add_u32 s{TK}, s{TK}, s3
    s_mul_i32 s30, s{LW}, {24*16*1280}
    s_mul_i32 s3, s{CB}, 192
    s_add_u32 s30, s30, s3
    s_add_u32 s31, s30, {24*16*1280}
    s_mul_i32 s28, s{TK}, 192
    s_mul_i32 s3, s{LW}, 24
    s_add_u32 s28, s28, s3
    s_lshl_b32 s28, s28, 10
    s_add_u32 s28, s28, {H_OFF}
    s_add_u32 s29, s28, {24*1024}
    s_mul_i32 s58, s{CB}, {rot_dn[0]}
    s_and_b32 s3, s{TK}, 3
    s_mul_i32 s3, s3, {rot_dn[1]}
    s_add_u32 s58, s58, s3
    s_cmp_ge_u32 s58, 24
    s_cselect_b32 s3, 24, 0
    s_sub_u32 s58, s58, s3
    s_lshl_b32 s36, s58, 10
    s_add_u32 s36, s36, s28              ; h cursor
    s_mul_i32 s37, s58, {16*1280}
    s_add_u32 s37, s37, s30              ; w2 cursor
    s_lshr_b32 s3, s{TK}, 1
    s_lshl_b32 s3, s3, 8
    s_lshl_b32 s39, s{LW}, 6
    s_add_u32 s39, s39, s3
    s_add_u32 s39, s39, {FLG_OFF}
    """)
    for x in fcheck(): a(x)
    def w2_groups(j, adv=True):
        o = (j % 6) * 5120; g = []
        for p in range(3):
            it = [(f"d{j}", f"buffer_load_dwordx4 v{DN+p}, {sr(SW2,4)}, s37 offen offset:{p*1024} lds")]
            if p == 0: it = [f"s_add_u32 m0, s15, {o}"] + it
            if p == 2 and adv: it += [f"s_add_u32 s37, s37, {16*1280}", "s_cmp_eq_u32 s37, s31", "s_cselect_b32 s37, s30, s37"]
            g.append(it)
        return g
    def h_groups(j, both=False):
        o = (j % 6) * 5120 + 3072
        adv = ["s_add_u32 s36, s36, 1024", "s_cmp_eq_u32 s36, s29", "s_cselect_b32 s36, s28, s36"]
        if both: adv = [f"s_add_u32 s37, s37, {16*1280}"] + adv + ["s_cselect_b32 s37, s30, s37"]
        return [[f"s_add_u32 m0, s15, {o}", (f"d{j}", f"buffer_load_dwordx4 v2, {sr(SO,4)}, s36 offen{ldsc} lds")],
                [(f"d{j}", f"buffer_load_dwordx4 v{H2}, {sr(SO,4)}, s36 offen offset:1024{ldsc} lds")] + adv]
    for j in range(2):
        for gg in w2_groups(j): emit_group(gg)
    a(f"s_setprio {dprio}")
    if tcb[0]:
        for x in cbar(): a(x)
    a("s_setprio 3")
    vm.wait("hs")
    signal(72, 4, 55, 24, lambda t: vm.issue(t, "fl"))
    stamp(a, 4, st)
    a(f"""
    s_lshr_b32 s3, s2, 3
    s_cmp_ge_u32 s3, 28
    s_cbranch_scc1 {L('pf2' if (pf2 and not pfh) else 'end')}
    """)
    for j in range(2, 4):
        for gg in w2_groups(j): emit_group(gg)
    def poll(tag, voff, soff):
        a(f"s_mov_b32 s13, 0x100000")
        a.label(L("poll" + tag))
        a(f"""
        buffer_load_dword v12, v{voff}, {sr(SO,4)}, s{soff} offen sc1
        s_sub_u32 s13, s13, 1
        s_cmp_eq_u32 s13, 0
        s_cbranch_scc1 {L('polled'+tag)}
        """)
        for x in jread() + ["s_waitcnt lgkmcnt(0)"] + jtest(): a(x)
        a(f"""
        s_waitcnt vmcnt(0)
        v_cmp_ne_u32 vcc, s{NONCE}, v12
        s_nop 4
        s_cbranch_vccnz {L('poll'+tag)}
        """)
        a.label(L("polled" + tag))
        vm.wait_all()
    a(f"""
    v_and_b32 v11, 3, v0
    v_lshlrev_b32 v11, 4, v11
    """)
    srd(a, SXN, 94, 640 * 1280)
    a(f"""
    s_mul_i32 s38, s{LW}, {160*1280}
    s_mul_i32 s3, s{CB}, 192
    s_add_u32 s38, s38, s3
    """)
    stamp(a, 5, st)
    a(f"s_mov_b32 s{MD}, 16")
    a(f"s_mov_b32 s13, 0x100000")
    a.label(L("hp_l"))
    a(f"buffer_load_dword v12, v11, {sr(SO,4)}, s39 offen sc1")
    for x in cbar(): a(x)
    a(f"""
    s_sub_u32 s13, s13, 1
    s_cmp_eq_u32 s13, 0
    s_cbranch_scc1 {L('hp_r')}
    s_waitcnt vmcnt(0)
    v_cmp_ne_u32 vcc, s{NONCE}, v12
    s_cbranch_vccz {L('hp_r')}
    buffer_load_dword v12, v11, {sr(SO,4)}, s39 offen sc1
    s_waitcnt vmcnt(0)
    v_cmp_ne_u32 vcc, s{NONCE}, v12
    s_cbranch_vccnz {L('hp_l')}
    """)
    a.label(L("hp_r"))
    vm.wait_all()
    stamp(a, 6, st)
    for j in range(6):
        if j >= 4:
            for gg in w2_groups(j): emit_group(gg)
        for g in h_groups(j): emit_group(g)
    a(f"s_setprio {dprio}")
    def wo_groups(i):
        g = []
        for n in range(5 * i, 5 * i + 5):
            p = n % 3
            it = [(f"w{n}", f"buffer_load_dwordx4 v{DN+p}, {sr(SXN,4)}, s38 offen offset:{p*1024} lds")]
            if p == 0 or n == 5 * i: it = [f"s_add_u32 m0, s15, {(n-p)*1024}"] + it
            if p == 2: it.append(f"s_add_u32 s38, s38, {16*1280}")
            g.append(it)
        return g
    def dn_reads(b, j):
        f = FBUF[b]; o = (j % 6) * 5120; out = []
        out.append(f"ds_read_b128 {vr(f,4)}, v{HA} offset:{o+3072}")
        for ct in range(3):
            for half in range(2):
                out.append(f"ds_read_b64_tr_b16 {vr(f+8+4*ct+2*half,2)}, v{W2A} offset:{o + half*1536 + ct*64}")
            if ct == 0: out.append(f"ds_read_b128 {vr(f+4,4)}, v{HA} offset:{o+4096}")
        return out
    vm.wait("d0")
    stamp(a, 7, st)
    for x in dn_reads(0, 0): a(x)
    for j in range(24):
        nxt = []
        if j + 1 < 24:
            vm.wait(f"d{j+1}")
            nxt = dn_reads((j + 1) % 2, j + 1)
        groups = (w2_groups(j + 6, adv=False) + h_groups(j + 6, both=True)) if j + 6 < 24 else wo_groups(j - 18)
        kstep(j % 2, nxt, groups, True, first=(j == 0), ng=5)
        if (j - ramp + 1) % dq == 0:
            for x in cbar(): a(x)
        if j in (5, 11, 17): stamp(a, 8 + (j - 5) // 6, st)
    stamp(a, 11, st)
    OW = 24
    WFR = [[8, 12, 16], [20, 160, 164]]
    a(f"""
    s_setprio {wprio}
    v_readfirstlane_b32 s57, v{FEP}
    v_mov_b32 v5, v{W2A}
    v_mul_u32_u24 v6, {36*192}, v1
    v_add_u32 v6, v6, v5
    v_lshlrev_b32 v7, 3, v4
    v_lshl_add_u32 v7, v1, 9, v7
    v_and_b32 v11, 7, v0
    v_lshlrev_b32 v11, 4, v11
    s_lshl_b32 s34, s{TK}, 6
    s_lshl_b32 s3, s{LW}, 3
    s_add_u32 s34, s34, s3               ; (tk*2)*32 + 8w
    s_lshr_b32 s39, s{TK}, 2
    s_lshl_b32 s39, s39, 5
    s_add_u32 s39, s39, s3
    s_lshl_b32 s39, s39, 4
    s_add_u32 s39, s39, {OFL_OFF}
    s_lshl_b32 s35, s34, 8
    s_add_u32 s35, s35, {OT_OFF}
    s_lshl_b32 s34, s34, 10
    s_add_u32 s34, s34, {OM_OFF}
    s_add_u32 s36, s34, 32768
    s_add_u32 s37, s35, 8192
    s_add_u32 s32, s34, 4096
    s_add_u32 s33, s36, 4096
    s_lshl_b32 s3, s{LW}, 6
    v_add_u32 v3, s3, v0
    s_mul_i32 s38, s{TK}, {64*1280}
    s_mul_i32 s3, s{CB}, 192
    s_add_u32 s38, s38, s3
    s_cmp_eq_u32 s{CB}, 6
    s_cselect_b32 s27, 8, 12
    """)
    srd(a, SWU, 92, 2048 * 1280)
    srd(a, SW2, 96, 2048 * 1280)
    a.label(L("drain"))
    a(f"""
    s_cmp_ge_u32 s{NB}, 16
    s_cbranch_scc1 {L('drained')}
    s_barrier
    s_add_u32 s{NB}, s{NB}, 1
    s_branch {L('drain')}
    """)
    a.label(L("drained"))
    poll("o", 11, 39)
    stamp(a, 12, st)
    steps = [("m", 0), ("m", 1), ("m", 2), ("m", 3), ("t", 0), ("m", 4), ("m", 5), ("m", 6), ("m", 7), ("t", 1)]
    def o_load(j):
        k, i = steps[j]; b = OW + 8 * (j % 5)
        if k == "m":
            for tt in range(2):
                so = (34, 36)[tt] if i < 4 else (32, 33)[tt]
                vm.issue(f"buffer_load_dwordx4 {vr(b+4*tt,4)}, v2, {sr(SO,4)}, s{so} offen offset:{(i%4)*1024}{ldsc}", f"o{j}")
        else:
            for tt in range(2):
                for q in range(2):
                    vm.issue(f"buffer_load_dwordx2 {vr(b+4*tt+2*q,2)}, v7, {sr(SO,4)}, s{(35,37)[tt]} offen offset:{i*1024+q*256}{ldsc}", f"o{j}")
    def wo_rd(j):
        k, i = steps[j]; out = []
        for ct in range(3):
            for half in range(2):
                if k == "m": ad, off = 5, 20 * i * 192 + half * 1536 + ct * 64
                else: ad, off = 6, (80 * i + 16 + 20 * half) * 192 + ct * 64
                out.append(f"ds_read_b64_tr_b16 {vr(WFR[j%2][ct]+2*half,2)}, v{ad} offset:{off}")
        return out
    for j in range(5): o_load(j)
    for x in wo_rd(0): a(x)
    GO, LO, LO2, WR = 40, 43, 46, 49
    for j in range(10):
        vm.wait(f"o{j}", extra="lgkmcnt(0)")
        nxt = wo_rd(j + 1) if j + 1 < 10 else []
        b = OW + 8 * (j % 5)
        n = 0
        for ct in range(3):
            for tt in range(2):
                acc = ACC + 16 * (ct * 2 + tt)
                a(f"v_mfma_f32_32x32x16_bf16 {vr(acc,16)}, {vr(WFR[j%2][ct],4)}, {vr(b+4*tt,4)}, {vr(acc,16)}")
                if n < 3:
                    for x in nxt[2*n:2*n+2]: a(x)
                n += 1
        if j + 5 < 10: o_load(j + 5)
        if j == 6:
            for n in range(3):
                a(f"""
                v_add_u32 v36, {256*n}, v3
                v_mul_u32_u24 v37, 0xaab, v36
                v_lshrrev_b32 v37, 15, v37           ; token
                v_mul_u32_u24 v38, 12, v37
                v_sub_u32 v36, v36, v38              ; g
                v_mul_u32_u24 v38, 1280, v37
                v_lshl_add_u32 v38, v36, 4, v38
                v_cmp_gt_u32 vcc, s27, v36
                v_mov_b32 v39, 0x7f000000
                v_cndmask_b32 v38, v39, v38, vcc
                """)
                vm.issue(f"buffer_load_dwordx4 {vr(24+4*n,4)}, v38, {sr(SWU,4)}, s38 offen", "x")
        if j == 8:
            for n in range(3):
                a(f"""
                v_add_u32 v36, {256*n}, v3
                v_mul_u32_u24 v37, 0xaab, v36
                v_lshrrev_b32 v37, 15, v37
                v_mul_u32_u24 v38, 12, v37
                v_sub_u32 v36, v36, v38
                v_mul_u32_u24 v38, 1280, v37
                v_lshl_add_u32 v{GO+n}, v36, 4, v38
                v_cmp_gt_u32 vcc, s27, v36
                v_mul_u32_u24 v38, 400, v37
                v_cndmask_b32 v{GO+n}, v39, v{GO+n}, vcc
                v_lshl_add_u32 v{LO+n}, v36, 5, v38
                v_add_u32 v{LO+n}, {FB}, v{LO+n}
                v_add_u32 v{LO2+n}, 61440, v{LO+n}
                """)
            a(f"""
            v_mul_u32_u24 v{WR}, 400, v4
            v_lshl_add_u32 v{WR}, v1, 4, v{WR}
            v_add_u32 v{WR}, s15, v{WR}
            v_mov_b32 v{FEP+32}, s57
            v_mov_b32 v{JA+32}, {SYNC+52}
            s_lshl_b32 s3, s{LW}, 2
            s_add_u32 s3, s3, {SYNC+32}
            v_mov_b32 v{FSA+32}, s3
            v_and_b32 v{FPA+32}, 3, v0
            v_lshlrev_b32 v{FPA+32}, 2, v{FPA+32}
            v_add_u32 v{FPA+32}, {SYNC+32}, v{FPA+32}
            """)
    stamp(a, 13, st)
    for ct in range(3):
        for tt in range(2):
            for j in range(4):
                a(f"ds_write_b128 v{WR}, {vr(ACC+16*(ct*2+tt)+4*j,4)} offset:{tt*12800 + ct*128 + j*32}")
    for x in farrive(32) + fcheck(32): a(x)
    for n in range(3):
        for w in range(4):
            ad = f"v{LO+n}" if w < 2 else f"v{LO2+n}"
            for hf in range(2):
                a(f"ds_read_b128 {vr(ACC+32*n+8*w+4*hf,4)}, {ad} offset:{(w%2)*30720 + hf*16}")
    vm.wait_all()
    for n in range(3):
        a(f"s_waitcnt lgkmcnt({min(15, 8*(2-n))})")
        b = ACC + 32 * n; x = 24 + 4 * n
        for i in range(0, 8, 2):
            a(f"v_pk_add_f32 {vr(b+i,2)}, {vr(b+i,2)}, {vr(b+8+i,2)}")
            a(f"v_pk_add_f32 {vr(b+16+i,2)}, {vr(b+16+i,2)}, {vr(b+24+i,2)}")
            a(f"v_lshlrev_b32 v{b+8+i}, 16, v{x+i//2}")
            a(f"v_and_b32 v{b+9+i}, 0xffff0000, v{x+i//2}")
            a(f"v_pk_add_f32 {vr(b+i,2)}, {vr(b+i,2)}, {vr(b+16+i,2)}")
            a(f"v_pk_add_f32 {vr(b+i,2)}, {vr(b+i,2)}, {vr(b+8+i,2)}")
            a(f"v_cvt_pk_bf16_f32 v{x+i//2}, v{b+i}, v{b+i+1}")
        a(f"buffer_store_dwordx4 {vr(x,4)}, v{GO+n}, {sr(SW2,4)}, s38 offen{osc}")
    a(f"""
    s_or_b32 s3, s2, s{LW}
    s_cmp_lg_u32 s3, 0
    s_cbranch_scc1 {L('nrst')}
    s_load_dwordx2 s[52:53], s[0:1], 64
    v_mov_b32 v36, 0
    s_waitcnt lgkmcnt(0)
    """)
    srd(a, SXN, 52, 256)
    a(f"""
    s_mov_b64 exec, 1
    buffer_store_dword v36, v36, {sr(SXN,4)}, 0 offen sc1
    s_mov_b64 exec, -1
    """)
    a.label(L("nrst"))
    if fixdur:
        a.label(L("fd_l"))
        a(f"""
        s_memrealtime s[52:53]
        s_waitcnt lgkmcnt(0)
        s_sub_u32 s52, s52, s{NONCE}
        s_cmp_lt_u32 s52, {fixdur}
        s_cbranch_scc1 {L('fd_l')}
        """)
    stamp(a, 14, st)
    if st: a("s_waitcnt vmcnt(0)")
    stamp(a, 15, st)
    st = st_save
    stamp_flush(a, 12 if upst else 16, st, W, SO)
    a("s_endpgm")
    for t, o in fspins:
        a.label(L(t + "s"))
        a(f"""
        s_sleep 1
        ds_read_b32 v{FPL+o}, v{FPA+o}
        """)
        if o:
            for x in jread(o) + ["s_waitcnt lgkmcnt(0)"] + jtest(o): a(x)
        a(f"""
        s_waitcnt lgkmcnt(0)
        v_cmp_lt_u32 vcc, v{FPL+o}, v{FEP+o}
        s_nop 1
        s_cbranch_vccnz {L(t+'s')}
        s_branch {L(t+'r')}
        """)
    a.label(L("gsync"))
    a(f"""
    ds_read_b32 v{JV}, v{JA} offset:12
    v_add_u32 v{FEP}, 1, v{FEP}
    s_waitcnt vmcnt(10) lgkmcnt(0)
    v_readfirstlane_b32 s3, v{JV}
    s_cmp_eq_u32 s{LW}, 0
    s_cselect_b32 s3, s3, 0
    s_cmp_eq_u32 s3, 0
    s_cbranch_scc1 {L('gs1')}
    ds_write_b32 v{JA}, v{FEP} offset:16        ; SW_AT
    """)
    a.label(L("gs1"))
    a(f"ds_write_b32 v{FSA}, v{FEP}")
    a.label(L("gs2"))
    a(f"""
    ds_read_b32 v{FPL}, v{FPA}
    ds_read_b32 v{JV}, v{JA} offset:16
    s_waitcnt lgkmcnt(0)
    v_cmp_lt_u32 vcc, v{FPL}, v{FEP}
    s_cbranch_vccnz {L('gs2')}
    v_cmp_le_u32 vcc, v{JV}, v{FEP}
    s_setprio {gprio}
    s_cbranch_vccnz {L('gs4')}
    s_cmp_gt_u32 s13, {11-ng}
    s_cbranch_scc1 {L('gback')}
    """)
    a.label(L("gs3"))
    a(f"""
    s_sleep 1
    ds_read_b32 v{JV}, v{JA} offset:12
    s_waitcnt lgkmcnt(0)
    v_cmp_gt_u32 vcc, 33, v{JV}
    s_cbranch_vccnz {L('gs3')}
    """)
    a.label(L("gs4"))
    a(f"""
    s_mov_b32 s{MD}, 16
    s_setprio {fprio}
    s_branch {L('gback')}
    """)
    a.label(L("pf2"))
    srd(a, SW2, 52, 1536 * 1280)
    srd(a, SXN, 94, 640 * 1280)
    a(f"""
    s_sub_u32 s3, s2, 224
    s_lshl_b32 s3, s3, 2
    s_add_u32 s3, s3, s{LW}
    s_lshl_b32 s3, s3, 10
    s_mov_b32 s13, s3
    """)
    for i in range(15):
        a(f"buffer_load_dwordx4 {vr(64+4*i,4)}, v2, {sr(SW2,4)}, s3 offen"); a("s_add_u32 s3, s3, 131072")
        if i % 5 == 4:
            for x in cbar(): a(x)
    for i in range(7):
        a(f"buffer_load_dwordx4 {vr(124+4*i,4)}, v2, {sr(SXN,4)}, s13 offen"); a("s_add_u32 s13, s13, 131072")
        if i == 3:
            for x in cbar(): a(x)
    a("s_endpgm")
    a.label(L("fidle"))
    a("s_waitcnt lgkmcnt(0)")
    for _ in range(12 if b11 else 11): a("s_barrier")
    get_nonce(12)
    a(f"s_branch {L('pa_r')}")
    a.label(L("help"))
    HW = 28; SXH = 20; SD = 24
    a(f"""
    s_setprio {hprio}
    s_sub_u32 s{HW}, s{W}, 4
    s_memrealtime s[40:41]
    s_load_dwordx2 s[44:45], s[0:1], 16
    s_load_dwordx4 s[48:51], s[0:1], 32
    s_load_dwordx2 s[46:47], s[0:1], 48
    v_and_b32 v1, 7, v0
    v_lshrrev_b32 v2, 3, v0
    s_lshl_b32 s3, s{HW}, 3
    v_add_u32 v2, s3, v2                 ; g 0..31
    s_lshl_b32 s29, s{TB}, 7
    s_lshl_b32 s3, s{CG}, 3
    s_add_u32 s29, s29, s3
    v_add_u32 v3, s29, v1                ; token
    v_mul_u32_u24 v4, 1280, v3
    v_lshl_add_u32 v4, v2, 4, v4
    s_cmp_lt_u32 s{HW}, 2
    s_mov_b32 s30, 0x7f000000
    s_cselect_b32 s30, 0, s30
    v_add_u32 v5, s30, v4
    v_mov_b32 v6, 0
    s_waitcnt lgkmcnt(0)
    """)
    srd(a, SXH, 4, 2048 * 1280)
    srd(a, SD, 92, 256)
    ws_srd()
    a(f"""
    buffer_load_dwordx4 v[8:11], v4, {sr(SXH,4)}, 0 offen
    buffer_load_dwordx4 v[12:15], v4, {sr(SXH,4)}, 0 offen offset:512
    buffer_load_dwordx4 v[16:19], v5, {sr(SXH,4)}, 0 offen offset:1024
    """)
    def pf_touch(lo, nbytes, dst):
        nl = nbytes // 128
        per = (nl + 255) // 256
        pw = (per + 3) // 4
        srd(a, 52, lo, nbytes)
        a(f"""
        s_mul_i32 s3, s2, {4*pw}
        s_mul_i32 s31, s{HW}, {pw}
        s_add_u32 s3, s3, s31
        s_lshl_b32 s3, s3, 7
        s_mov_b64 exec, {(1 << pw) - 1}
        buffer_load_dword v{dst}, v58, s[52:55], s3 offen
        s_mov_b64 exec, -1
        """)
    a("v_lshlrev_b32 v58, 7, v0")
    if pfc:
        a(f"""
        s_cmp_lg_u32 s{HW}, 1
        s_cbranch_scc1 {L('npc')}
        s_getpc_b64 s[52:53]
        """)
        a.label(L("pc0"))
        a(f"""
        s_sub_u32 s52, s52, {L('pc0')}-{name}
        s_subb_u32 s53, s53, 0
        s_and_b32 s53, s53, 0xffff
        s_mov_b32 s54, {L('end')}-{name}
        s_mov_b32 s55, 0x00020000
        s_lshr_b32 s3, s2, 3
        s_lshl_b32 s3, s3, 10
        v_lshlrev_b32 v59, 4, v0
        buffer_load_dwordx4 v[60:63], v59, s[52:55], s3 offen
        """)
        a.label(L("npc"))
    if pf >= 1: pf_touch(6, 640 * 3840, 59)
    if pf == 2:
        pf_touch(48, 640 * 3072, 60); pf_touch(50, 640 * 3072, 61); pf_touch(46, 1536 * 1280, 62); pf_touch(44, 640 * 1280, 63)
    a(f"""
    s_or_b32 s3, s2, s{HW}
    s_cmp_lg_u32 s3, 0
    s_cbranch_scc1 {L('nononce')}
    s_or_b32 s40, s40, 1
    v_mov_b32 v7, s40
    s_mov_b64 exec, 1
    buffer_store_dword v7, v6, {sr(SD,4)}, 0 offen sc1
    s_mov_b64 exec, -1
    """)
    a.label(L("nononce"))
    a(f"""
    v_lshrrev_b32 v7, 5, v3
    v_mul_u32_u24 v7, 40960, v7
    v_lshl_add_u32 v7, v2, 9, v7
    v_and_b32 v20, 31, v3
    v_lshl_add_u32 v7, v20, 4, v7
    v_add_u32 v21, 16384, v7
    v_add_u32 v22, 32768, v7
    v_add_u32 v22, s30, v22
    s_lshl_b32 s3, s{HW}, 6
    v_lshl_add_u32 v23, v1, 3, s3
    v_add_u32 v23, {LNP}, v23
    v_lshlrev_b32 v24, 3, v1
    v_add_u32 v24, {LNP}, v24
    v_mov_b32 v26, 0
    v_mov_b32 v27, 0
    s_barrier
    s_waitcnt vmcnt(0)
    """)
    for i in range(12):
        a(f"""
        v_lshlrev_b32 v{32+2*i}, 16, v{8+i}
        v_and_b32 v{33+2*i}, 0xffff0000, v{8+i}
        v_add_f32 v26, v26, v{32+2*i}
        v_fmac_f32 v27, v{32+2*i}, v{32+2*i}
        v_add_f32 v26, v26, v{33+2*i}
        v_fmac_f32 v27, v{33+2*i}, v{33+2*i}
        """)
    for r in (26, 27):
        a(f"""
        v_add_f32_dpp v{r}, v{r}, v{r} row_ror:8 row_mask:0xf bank_mask:0xf
        v_mov_b32 v28, v{r}
        v_permlane16_swap_b32 v{r}, v28
        v_add_f32 v{r}, v{r}, v28
        v_mov_b32 v28, v{r}
        v_permlane32_swap_b32 v{r}, v28
        v_add_f32 v{r}, v{r}, v28
        """)
    a(f"""
    ds_write_b64 v23, v[26:27]
    s_waitcnt lgkmcnt(0)
    s_barrier
    ds_read_b64 v[26:27], v24
    ds_read_b64 v[28:29], v24 offset:64
    ds_read_b64 v[30:31], v24 offset:128
    ds_read_b64 v[56:57], v24 offset:192
    buffer_load_dword v25, v6, {sr(SD,4)}, 0 offen sc1
    s_waitcnt lgkmcnt(0)
    v_add_f32 v26, v26, v28
    v_add_f32 v27, v27, v29
    v_add_f32 v30, v30, v56
    v_add_f32 v31, v31, v57
    v_add_f32 v26, v26, v30
    v_add_f32 v27, v27, v31
    v_mul_f32 v26, {f2u(1/640):#x}, v26          ; mean
    v_mul_f32 v27, {f2u(1/640):#x}, v27
    v_fma_f32 v27, -v26, v26, v27                ; var
    v_max_f32 v27, 0, v27
    v_cvt_pk_bf16_f32 v28, v26, v27
    v_lshlrev_b32 v26, 16, v28
    v_and_b32 v27, 0xffff0000, v28
    v_add_f32 v27, {f2u(1e-5):#x}, v27
    v_cvt_pk_bf16_f32 v27, v27, v27
    v_and_b32 v27, 0xffff0000, v27
    v_sqrt_f32 v27, v27
    v_cvt_pk_bf16_f32 v27, v27, v27
    v_and_b32 v27, 0xffff0000, v27
    v_rcp_f32 v27, v27                           ; rstd
    s_mov_b32 s31, {XN_OFF}
    v_mul_f32 v28, v26, v27
    """)
    for q in range(3):
        for i in range(4 * q, 4 * q + 4):
            a(f"""
            v_fma_f32 v{32+2*i}, v{32+2*i}, v27, -v28
            v_fma_f32 v{33+2*i}, v{33+2*i}, v27, -v28
            v_cvt_pk_bf16_f32 v{8+i}, v{32+2*i}, v{33+2*i}
            """)
        a(f"buffer_store_dwordx4 {vr(8+4*q,4)}, v{(7,21,22)[q]}, {sr(SO,4)}, s31 offen sc1")
    a(f"""
    s_cmp_lg_u32 s{HW}, 0
    s_cbranch_scc1 {L('nostat')}
    v_lshlrev_b32 v29, 3, v3
    s_mov_b32 s31, {STG_OFF}
    s_mov_b64 exec, 0xff
    buffer_store_dwordx2 v[26:27], v29, {sr(SO,4)}, s31 offen sc1
    s_mov_b64 exec, -1
    """)
    a.label(L("nostat"))
    if pf == 3:
        pf_touch(48, 640 * 3072, 60); pf_touch(50, 640 * 3072, 61); pf_touch(46, 1536 * 1280, 62); pf_touch(44, 640 * 1280, 63)
    a(f"""
    s_barrier
    s_barrier
    s_mov_b32 s13, 0x100000
    """)
    a.label(L("nn_l"))
    a(f"""
    s_waitcnt vmcnt(0)
    v_readfirstlane_b32 s{NONCE}, v25
    s_sub_u32 s13, s13, 1
    s_cmp_eq_u32 s13, 0
    s_cbranch_scc1 {L('nn_r')}
    s_cmp_lg_u32 s{NONCE}, 0
    s_cbranch_scc1 {L('nn_r')}
    buffer_load_dword v25, v6, {sr(SD,4)}, 0 offen sc1
    s_branch {L('nn_l')}
    """)
    a.label(L("nn_r"))
    a(f"""
    s_lshl_b32 s31, s{TB}, 8
    s_add_u32 s31, s31, {FA_OFF}
    s_lshl_b32 s3, s{CG}, 4
    s_add_u32 s33, s3, s31
    """)
    signal(84, 4, 33, 28)
    a(f"""
    v_mov_b32 v26, {SYNC+60}
    ds_write_b32 v26, v25
    v_and_b32 v27, 15, v0
    v_lshlrev_b32 v27, 4, v27
    s_mov_b32 s31, {FA_OFF}
    v_mov_b32 v28, s{TB}
    v_mov_b32 v29, s{CG}
    v_cmp_gt_u32 vcc, 32, v0
    v_cndmask_b32 v28, v29, v28, vcc
    v_lshl_add_u32 v27, v28, 8, v27
    s_waitcnt lgkmcnt(0)
    s_barrier
    s_barrier
    s_barrier
    s_cmp_lg_u32 s{HW}, 0
    s_cbranch_scc1 {L('hrest')}
    buffer_load_dword v28, v27, {sr(SO,4)}, s31 offen sc1
    s_barrier
    s_mov_b32 s13, 0x100000
    """)
    a.label(L("ha_l"))
    a(f"""
    s_waitcnt vmcnt(0)
    v_cmp_ne_u32 vcc, s{NONCE}, v28
    s_sub_u32 s13, s13, 1
    s_cmp_eq_u32 s13, 0
    s_cbranch_scc1 {L('ha_r')}
    s_cbranch_vccz {L('ha_r')}
    buffer_load_dword v28, v27, {sr(SO,4)}, s31 offen sc1
    s_branch {L('ha_l')}
    """)
    a.label(L("ha_r"))
    a(f"""
    s_lshl_b32 s3, s{TB}, 10
    s_add_u32 s3, s3, {STG_OFF}
    v_lshlrev_b32 v30, 4, v0
    buffer_load_dwordx4 v[32:35], v30, {sr(SO,4)}, s3 offen sc1
    v_lshlrev_b32 v29, 3, v0
    v_add_u32 v29, {ST_M}, v29
    s_barrier
    s_barrier
    s_waitcnt vmcnt(0)
    ds_write2_b32 v29, v32, v34 offset0:0 offset1:1
    ds_write2_b32 v29, v33, v35 offset0:128 offset1:129
    s_waitcnt lgkmcnt(0)
    s_branch {L('h10')}
    """)
    a.label(L("hrest"))
    a("""
    s_barrier
    s_barrier
    s_barrier
    """)
    a.label(L("h10"))
    if pfh:
        srd(a, SXH, 46, 1536 * 1280); srd(a, SD, 44, 640 * 1280)
        a(f"""
        s_lshl_b32 s3, s2, 2
        s_add_u32 s3, s3, s{HW}
        s_lshl_b32 s3, s3, 10
        s_add_u32 s31, s3, 0x100000
        v_lshlrev_b32 v30, 4, v0
        """)
    a("s_barrier")
    if pfh:
        a(f"""
        buffer_load_dwordx4 v[144:147], v30, {sr(SXH,4)}, s3 offen
        buffer_load_dwordx4 v[148:151], v30, {sr(SXH,4)}, s31 offen
        buffer_load_dwordx4 v[152:155], v30, {sr(SD,4)}, s3 offen
        """)
    if b11: a("s_barrier")
    a(f"s_branch {L('att')}")
    a.label(L("mfma"))
    TW, FW = 28, 29
    XA = 2
    WA = 10
    SEL = 12
    CS = 48
    BUF = [16, 32, 128, 144]
    ACC = 64
    a(f"""
    s_setprio 2
    s_lshr_b32 s{TW}, s{W}, 1
    s_and_b32 s{FW}, s{W}, 1
    v_and_b32 v56, 31, v0
    v_lshrrev_b32 v57, 5, v0            ; h
    v_bfe_u32 v52, v0, 1, 3             ; f
    s_lshl_b32 s3, s{TW}, 13            ; tw*64*128
    v_lshl_add_u32 v53, v56, 7, s3
    """)
    for ks in range(4):
        a(f"""
        v_or_b32 v54, {2*ks}, v57
        v_xor_b32 v54, v54, v52
        v_lshl_add_u32 v{XA+ks}, v54, 4, v53
        """)
    a(f"""
    v_bfe_u32 v54, v0, 2, 2             ; r
    v_lshl_add_u32 v55, v57, 3, v54     ; 8h+r
    v_lshlrev_b32 v55, 8, v55
    s_lshl_b32 s35, s{FW}, 1
    s_or_b32 s35, s35, s{TW}
    v_xor_b32 v54, s35, v54
    v_lshl_add_u32 v55, v54, 6, v55
    v_bfe_u32 v54, v0, 4, 1
    v_lshl_add_u32 v55, v54, 5, v55
    v_and_b32 v53, 3, v0
    v_lshl_add_u32 v55, v53, 3, v55
    v_add_u32 v{WA}, 0x4000, v55
    v_xor_b32 v{WA+1}, 64, v{WA}
    v_bfe_u32 v53, v0, 2, 1
    v_cmp_eq_u32 vcc, v53, v54
    v_mov_b32 v53, 0x3f803f80
    v_cndmask_b32 v{SEL}, 0, v53, vcc
    v_mov_b32 v{SEL+1}, v{SEL}
    v_mov_b32 v{SEL+2}, v{SEL}
    v_mov_b32 v{SEL+3}, v{SEL}
    """)
    for i in range(4): a(f"v_mov_b32 v{CS+i}, 0")
    for i in range(4): a(f"v_mfma_f32_32x32x16_bf16 {vr(ACC+16*i,16)}, {vr(CS,4)}, {vr(CS,4)}, 0")
    a("s_waitcnt lgkmcnt(0)")
    ws_srd()
    a("s_mov_b32 s36, 0")
    a(f"""
    s_cmp_eq_u32 s{CG}, 15
    s_cbranch_scc1 {L('mpf')}
    """)

    def reads(buf, par, ks):
        b = BUF[buf]; o = par * 32768
        wo = o + ks * 4096
        return [
            f"ds_read_b64_tr_b16 {vr(b+8,2)}, v{WA} offset:{wo}",
            f"ds_read_b64_tr_b16 {vr(b+10,2)}, v{WA} offset:{wo+1024}",
            f"ds_read_b128 {vr(b,4)}, v{XA+ks} offset:{o}",
            f"ds_read_b128 {vr(b+4,4)}, v{XA+ks} offset:{o+4096}",
            f"ds_read_b64_tr_b16 {vr(b+12,2)}, v{WA+1} offset:{wo}",
            f"ds_read_b64_tr_b16 {vr(b+14,2)}, v{WA+1} offset:{wo+1024}",
        ]
    def mf(buf, fi, ti, vmode):
        b = BUF[buf]; acc = ACC + 16 * (fi * 2 + ti)
        wv = vr(b + 8 + 4 * fi, 4); xv = vr(b + 4 * ti, 4)
        A, B = (xv, wv) if vmode else (wv, xv)
        return f"v_mfma_f32_32x32x16_bf16 {vr(acc,16)}, {A}, {B}, {vr(acc,16)}"
    def csm(cur):
        return f"v_mfma_f32_16x16x32_bf16 {vr(CS,4)}, {vr(SEL,4)}, {vr(BUF[cur]+8,4)}, {vr(CS,4)}"
    def kstep(cur, rd, vmode, pre=(), wait=6):
        a(f"s_waitcnt lgkmcnt({wait})")
        a(mf(cur, 0, 0, vmode))
        for x in pre: a(x)
        [a(x) for x in rd[0:2]]
        a(mf(cur, 0, 1, vmode)); [a(x) for x in rd[2:4]]
        a(mf(cur, 1, 0, vmode)); [a(x) for x in rd[4:6]]
        a(mf(cur, 1, 1, vmode))
        a(csm(cur))
    def mainloop(vmode, tag):
        a("s_mov_b32 s30, 10")
        a(".p2align 6")
        a.label(L("loop" + tag))
        if p1st:
            for k in range(1, 11):
                a(f"s_cmp_lg_u32 s30, {11-k}"); a(f"s_cbranch_scc1 {L('ps'+tag+str(k))}"); stamp(a, k, p1st); a.label(L("ps" + tag + str(k)))
        tg = [f"v_add_u32 v{r}, s37, v{r}" for r in list(range(XA, XA + 4)) + [WA, WA + 1]]
        kstep(0, reads(2, 0, 2), vmode, pre=["s_add_u32 s38, s36, 32768", "s_cmp_eq_u32 s38, 98304", "s_cselect_b32 s38, 0, s38", "s_sub_u32 s37, s38, s36", "s_mov_b32 s36, s38"])
        kstep(1, reads(3, 0, 3), vmode)
        a(f"s_cmp_eq_u32 s30, 1")
        a(f"s_cbranch_scc1 {L('fin'+tag)}")
        kstep(2, reads(0, 0, 0), vmode, pre=["s_barrier"] + tg, wait=0)
        kstep(3, reads(1, 0, 1), vmode)
        a(f"""
        s_sub_u32 s30, s30, 1
        s_branch {L('loop'+tag)}
        """)
        a.label(L("fin" + tag))
        kstep(2, [], vmode)
        a("s_waitcnt lgkmcnt(0)")
        a(csm(3))
        for fi in range(2):
            for ti in range(2): a(mf(3, fi, ti, vmode))
        a(f"""
        s_lshl_b32 s3, s35, 7
        v_lshl_add_u32 v55, v56, 2, s3
        v_add_u32 v55, {ST_CS}, v55
        ds_write_b32 v55, v{CS}
        s_waitcnt lgkmcnt(0)
        s_barrier
        """)
    stamp(a, 1, st)
    a("s_barrier")
    stamp(a, 2, st)
    for x in reads(0, 0, 0) + reads(1, 0, 1): a(x)
    a(f"""
    s_cmp_ge_u32 s{CG}, 10
    s_cbranch_scc1 {L('vpath')}
    """)
    a(f"""
    s_cmp_lt_u32 s{CG}, 5
    s_cselect_b32 s31, {f2u(QSCALE):#x}, 1.0
    s_cselect_b32 s32, 0, 5
    s_cselect_b32 s33, {QK_OFF}, {QK_OFF+QK_TYPE}
    s_sub_u32 s32, s{CG}, s32           ; cgt
    s_lshl_b32 s32, s32, 4
    s_lshl_b32 s3, s35, 2
    s_add_u32 s32, s32, s3
    s_lshl_b32 s32, s32, 15
    s_add_u32 s33, s33, s32
    s_lshl_b32 s3, s{TB}, 2
    s_lshl_b32 s32, s{TW}, 1
    s_add_u32 s3, s3, s32
    s_lshl_b32 s3, s3, 9                ; toktile*512
    s_add_u32 s33, s33, s3
    v_lshlrev_b32 v58, 4, v0
    s_lshl_b32 s3, s{TW}, 8
    v_lshl_add_u32 v59, v56, 2, s3
    v_add_u32 v59, {ST_M}, v59
    s_lshl_b32 s3, s35, 7
    v_lshl_add_u32 v60, v57, 4, s3
    v_add_u32 v60, {ST_CS}, v60
    v_xor_b32 v61, 128, v60
    """)
    mainloop(False, "qk")
    stamp(a, 3, st)
    a(f"""
    ds_read_b32 v2, v59
    ds_read_b32 v4, v59 offset:512
    ds_read_b32 v6, v59 offset:128
    ds_read_b32 v8, v59 offset:640
    """)
    for j in range(4): a(f"ds_read_b128 {vr(16+4*j,4)}, v60 offset:{32*j}")
    for j in range(4): a(f"ds_read_b128 {vr(32+4*j,4)}, v61 offset:{32*j}")
    a(f"""
    s_waitcnt lgkmcnt(4)
    v_mul_f32 v4, s31, v4
    v_mul_f32 v8, s31, v8
    """)
    for fi in range(2):
        if fi == 1: a("s_waitcnt lgkmcnt(0)")
        a(f"s_xor_b32 s34, s33, {fi*4*32768}")
        cs = 16 + 16 * fi
        for j in range(4):
            dst = ACC + 32 * fi + 4 * j
            for ti in range(2):
                acc = ACC + 16 * (fi * 2 + ti)
                m = 2 + 4 * ti; rs = 4 + 4 * ti
                for p in range(2):
                    r = acc + 4 * j + 2 * p
                    a(f"v_pk_fma_f32 {vr(r,2)}, {vr(cs+4*j+2*p,2)}, {vr(m,2)}, {vr(r,2)} op_sel_hi:[1,0,1] neg_lo:[0,1,0] neg_hi:[0,1,0]")
                for p in range(2):
                    r = acc + 4 * j + 2 * p
                    a(f"v_pk_mul_f32 {vr(r,2)}, {vr(r,2)}, {vr(rs,2)} op_sel_hi:[1,0]")
                for p in range(2):
                    r = acc + 4 * j + 2 * p
                    a(f"v_cvt_pk_bf16_f32 v{dst+2*ti+p}, v{r}, v{r+1}")
            a(f"buffer_store_dwordx4 {vr(dst,4)}, v58, {sr(SO,4)}, s34 offen{qsc}")
            if j < 3: a(f"s_add_u32 s34, s34, 32768")
    a(f"s_branch {L('pub')}")
    a.label(L("vpath"))
    a(f"""
    s_sub_u32 s32, s{CG}, 10
    s_lshl_b32 s32, s32, 2
    s_add_u32 s32, s32, s35
    s_lshl_b32 s32, s32, 9
    s_lshl_b32 s33, s{TB}, 2
    s_lshl_b32 s3, s{TW}, 1
    s_add_u32 s33, s33, s3              ; toktile
    s_mul_i32 s33, s33, 40960
    s_add_u32 s33, s33, {VT_OFF}
    v_mul_u32_u24 v58, 10240, v57
    v_lshl_add_u32 v58, v56, 4, v58
    s_lshl_b32 s3, s{TW}, 8
    v_lshl_add_u32 v59, v57, 4, s3
    v_add_u32 v59, {ST_M}, v59
    """)
    mainloop(True, "v")
    stamp(a, 3, st)

    MR = [16, 128]; RR = [32, 144]
    a(f"""
    v_xor_b32 v55, 128, v55
    ds_read_b32 v4, v55
    v_mov_b32 v2, v{CS}
    """)
    for ti in range(2):
        for j in range(4): a(f"ds_read_b128 {vr(MR[ti]+4*j,4)}, v59 offset:{128*ti+32*j}")
        for j in range(4): a(f"ds_read_b128 {vr(RR[ti]+4*j,4)}, v59 offset:{512+128*ti+32*j}")
    for ti in range(2):
        a(f"s_waitcnt lgkmcnt({8 if ti == 0 else 0})")
        for fi in range(2):
            acc = ACC + 16 * (fi * 2 + ti)
            a(f"""
            s_xor_b32 s34, s32, {fi*512}
            s_add_u32 s34, s34, s33
            s_add_u32 s34, s34, {ti*40960}
            """)
            for kb in range(2):
                for p in range(4):
                    r = acc + 8 * kb + 2 * p
                    a(f"v_pk_fma_f32 {vr(r,2)}, {vr(MR[ti]+8*kb+2*p,2)}, {vr(2+2*fi,2)}, {vr(r,2)} op_sel_hi:[1,0,1] neg_lo:[0,1,0] neg_hi:[0,1,0]")
                for p in range(4):
                    r = acc + 8 * kb + 2 * p
                    a(f"v_pk_mul_f32 {vr(r,2)}, {vr(r,2)}, {vr(RR[ti]+8*kb+2*p,2)}")
                for p in range(4):
                    r = acc + 8 * kb + 2 * p
                    a(f"v_cvt_pk_bf16_f32 v{acc+8*kb+p}, v{r}, v{r+1}")
                a(f"buffer_store_dwordx4 {vr(acc+8*kb,4)}, v58, {sr(SO,4)}, s34 offen{qsc}")
                if kb == 0: a("s_add_u32 s34, s34, 20480")
    a.label(L("pub"))
    if b11: a("s_barrier")
    stamp(a, 4, st)
    get_nonce(2)
    a(f"""
    s_lshl_b32 s3, s{CG}, 4
    s_add_u32 s3, s3, s{TB}
    s_lshl_b32 s3, s3, 4
    s_add_u32 s39, s3, {FQ_OFF}
    s_waitcnt vmcnt(0)
    """)
    signal(80, 4, 39, 2)
    a(f"s_branch {L('att')}")
    a.label(L("mpf"))
    if pfall:
        a(f"""
        s_load_dwordx4 s[40:43], s[0:1], 32
        s_load_dwordx2 s[44:45], s[0:1], 48
        s_load_dwordx2 s[46:47], s[0:1], 16
        s_lshl_b32 s3, s{TB}, 2
        s_add_u32 s3, s3, s{W}
        s_lshl_b32 s31, s3, 10
        v_lshlrev_b32 v2, 4, v0
        s_waitcnt lgkmcnt(0)
        """)
        srd(a, 20, 40, 640 * 3072); srd(a, 24, 42, 640 * 3072); srd(a, 48, 44, 1536 * 1280); srd(a, 52, 46, 640 * 1280)
        for _ in range(pfd): a("s_barrier")
        def ploop(tag, sa, sb):
            a(f"s_add_u32 s3, s31, {0 if pf0 else (15-pfn)*131072}"); a(f"s_mov_b32 s30, {pfn}")
            a.label(L(tag))
            for i in range(2):
                a(f"buffer_load_dwordx4 {vr(64+8*i,4)}, v2, {sr(sa,4)}, s3 offen")
                a(f"buffer_load_dwordx4 {vr(68+8*i,4)}, v2, {sr(sb,4)}, s3 offen")
                a("s_add_u32 s3, s3, 65536")
            a(f"""
            s_sub_u32 s30, s30, 1
            s_cmp_lg_u32 s30, 0
            s_cbranch_scc1 {L(tag)}
            """)
        ploop("pl1", 20, 24)
        for _ in range(11 - pfd): a("s_barrier")
        if b11: a("s_barrier")
        a("s_waitcnt vmcnt(0)")
        get_nonce(2)
        a(f"s_branch {L('att')}")
    srd(a, 20, 6, 640 * 3840 if pfw else 0)
    a(f"""
    s_lshl_b32 s3, s{TB}, 2
    s_add_u32 s3, s3, s{W}
    s_lshl_b32 s3, s3, 10
    s_add_u32 s3, s3, {64*3840}
    v_lshlrev_b32 v2, 4, v0
    """)
    for i in range(34):
        a(f"buffer_load_dwordx4 {vr(64+4*(i%16),4)}, v2, s[20:23], s3 offen")
        a("s_add_u32 s3, s3, 65536")
        if i == 5:
            for _ in range(4): a("s_barrier")
        if i in (9, 13, 17, 21, 25, 29, 33): a("s_barrier")
    if b11: a("s_barrier")
    a("s_waitcnt vmcnt(0)")
    get_nonce(2)
    a.label(L("att"))
    a("s_setprio 2")
    stamp(a, 5, st)
    HEAD, QB = 10, 11
    KA, VA = 2, 3
    M = [4, 5]
    QM = [8, 16]; QT = [12, 20]
    KM = [24, 32]; KT = [28, 36]
    V = [40, 48]
    P = [56, 64]
    S = [72, 88]
    O = [104, 120]
    KD, VD, EP, SA, PA, PL, SG, SGA = 136, 137, 138, 139, 140, 141, 142, 143
    QG, KH, MODE, CNT = 24, 25, 26, 27
    a(f"""
    s_and_b32 s3, s2, 7
    s_lshl_b32 s3, s3, 2
    s_bfe_u32 s{HEAD}, s2, 0x20003
    s_add_u32 s{HEAD}, s{HEAD}, s3
    s_lshr_b32 s{QB}, s2, 5
    s_lshr_b32 s3, s{HEAD}, 1
    s_mul_i32 s3, s3, 5
    s_and_b32 s13, s{HEAD}, 1           ; odd
    s_mul_i32 s14, s13, 3
    s_add_u32 s20, s3, s14
    s_add_u32 s21, s20, 1
    s_add_u32 s22, s3, 2
    s_lshl_b32 s20, s20, 15
    s_lshl_b32 s21, s21, 15
    s_lshl_b32 s22, s22, 15
    s_and_b32 s{QG}, s{W}, 3
    s_lshr_b32 s{KH}, s{W}, 2
    s_cmp_eq_u32 s{QG}, 0
    s_cselect_b32 s32, s20, s21
    s_cmp_eq_u32 s{QG}, 2
    s_cselect_b32 s32, s22, s32
    s_lshl_b32 s3, s{KH}, 14
    s_add_u32 s32, s32, s3
    s_add_u32 s32, s32, {QK_OFF+QK_TYPE}
    s_lshl_b32 s3, s{KH}, 6
    s_add_u32 s3, s3, s{QG}
    s_mul_i32 s3, s3, 20480
    s_mul_i32 s33, s{HEAD}, 320
    s_add_u32 s33, s33, s3
    s_add_u32 s33, s33, {VT_OFF}
    s_lshl_b32 s34, s{KH}, 13
    s_lshl_b32 s3, s{QG}, 10
    s_add_u32 s34, s34, s3
    s_mul_i32 s35, s{QB}, {rot_kv*1024}
    s_and_b32 s35, s35, 0x3fff
    v_lshlrev_b32 v{KD}, 4, v0
    v_lshrrev_b32 v7, 5, v0             ; h
    v_mul_u32_u24 v{VD}, 10240, v7
    v_and_b32 v1, 31, v0
    v_lshl_add_u32 v{VD}, v1, 4, v{VD}
    s_lshl_b32 s28, s{QB}, 3
    s_lshl_b32 s3, s{QG}, 1
    s_add_u32 s28, s28, s3
    s_add_u32 s28, s28, s{KH}
    v_lshlrev_b32 v6, 3, v0
    """)
    nkv = [0]
    def kv_issue():
        t = f"kv{nkv[0]}"; nkv[0] += 1
        return [f"s_mul_i32 s36, s35, 80",
                f"s_add_u32 s36, s36, s33",
                f"s_add_u32 m0, s34, 3072",
                "s_mov_b32 exec_lo, 0x000fffff",
                "s_mov_b32 exec_hi, 0x000fffff",
                f"buffer_load_dwordx4 v{VD}, {sr(SO,4)}, s36 offen{ldsc} lds",
                "s_mov_b64 exec, -1",
                f"s_cmp_eq_u32 s{QG}, 3",
                f"s_cbranch_scc1 {L(t)}",
                "s_mov_b32 m0, s34",
                "s_add_u32 s36, s32, s35",
                f"buffer_load_dwordx4 v{KD}, {sr(SO,4)}, s36 offen{ldsc} lds",
                f"{L(t)}:",
                f"s_xor_b32 s34, s34, {KV_SLOT}",
                "s_add_u32 s35, s35, 1024",
                "s_and_b32 s35, s35, 0x3fff"]
    def fill_rows():
        t = S[0]
        a(f"""
        v_lshrrev_b32 v{t+4}, 4, v0
        v_lshlrev_b32 v{t+4}, 9, v{t+4}
        v_and_b32 v{t+5}, 15, v0
        v_min_u32 v{t+5}, 11, v{t+5}
        v_lshl_add_u32 v{t+4}, v{t+5}, 4, v{t+4}
        s_lshr_b32 s3, s{W}, 1
        s_lshl_b32 s3, s3, 13
        s_and_b32 s36, s{W}, 1
        s_lshl_b32 s36, s36, 11
        s_add_u32 s3, s3, s36
        v_add_u32 v{t+4}, s3, v{t+4}
        v_cmp_eq_u32 vcc, 0, v{t+5}
        v_mov_b32 v{t+6}, 0x3f803f80
        v_cndmask_b32 v{t}, 0, v{t+6}, vcc
        v_mov_b32 v{t+1}, v{t}
        v_mov_b32 v{t+2}, v{t}
        v_mov_b32 v{t+3}, v{t}
        ds_write_b128 v{t+4}, {vr(t,4)} offset:{3072+320}
        """)
    fill_rows()
    a(f"""
    s_lshl_b32 s3, s{KH}, 13
    v_add_u32 v{VA}, s3, v{KD}
    v_mov_b32 v{KT[0]+2}, 0x3f803f80
    v_mov_b32 v{KT[0]+3}, 0x3f80
    v_mov_b32 v{KT[1]+2}, 0x3f803f80
    v_mov_b32 v{KT[1]+3}, 0x3f80
    v_mov_b32 v{EP}, 0
    s_lshl_b32 s3, s{W}, 2
    s_add_u32 s3, s3, {SYNC}
    v_mov_b32 v{SA}, s3
    v_and_b32 v{PA}, 7, v0
    v_lshlrev_b32 v{PA}, 2, v{PA}
    v_add_u32 v{PA}, {SYNC}, v{PA}
    v_mov_b32 v{SG}, 32
    v_mov_b32 v{SGA}, {SYNC+52}
    s_mov_b32 s{MODE}, 0
    """)
    nsb = [0]
    def arrive():
        return [f"v_add_u32 v{EP}, 1, v{EP}", f"ds_write_b32 v{SA}, v{EP}", f"ds_read_b32 v{PL}, v{PA}"]
    spins = []
    def check():
        t = f"sb{nsb[0]}"; nsb[0] += 1
        spins.append(t)
        return ["s_waitcnt lgkmcnt(0)", f"v_cmp_lt_u32 vcc, v{PL}, v{EP}", f"s_cbranch_vccnz {L(t+'s')}", f"{L(t+'r')}:"]
    def swbar():
        for x in arrive() + check(): a(x)
    a(f"""
    s_cmp_lg_u32 s{W}, {99 if nopoll else 0}
    s_cbranch_scc1 {L('pq_r')}
    """)
    a(f"""
    s_lshr_b32 s3, s{HEAD}, 1
    s_mul_i32 s3, s3, 40
    s_lshr_b32 s29, s3, 7
    s_add_u32 s30, s3, 39
    s_lshr_b32 s30, s30, 7
    s_sub_u32 s30, s30, s29              ; 0 or 1
    s_lshl_b32 s30, s30, 8
    s_lshl_b32 s29, s29, 8
    s_add_u32 s29, s29, {FQ_OFF}
    v_and_b32 v{S[1]}, 15, v0
    v_lshlrev_b32 v{S[1]}, 4, v{S[1]}
    v_bfe_u32 v{S[1]+1}, v0, 4, 1
    v_mul_u32_u24 v{S[1]+1}, s30, v{S[1]+1}
    v_add_u32 v{S[1]}, v{S[1]}, v{S[1]+1}
    v_mul_u32_u24 v{S[1]+1}, 1280, v7
    v_add_u32 v{S[1]+1}, v{S[1]}, v{S[1]+1}        ; + type k / v
    s_mov_b32 s31, 0x100000
    """)
    a.label(L("pq_l"))
    a(f"""
    buffer_load_dword v{S[1]+4}, v{S[1]+1}, {sr(SO,4)}, s29 offen offset:1280 sc1
    buffer_load_dword v{S[1]+5}, v{S[1]}, {sr(SO,4)}, s29 offen sc1
    s_sub_u32 s31, s31, 1
    s_cmp_eq_u32 s31, 0
    s_cbranch_scc1 {L('pq_r')}
    s_waitcnt vmcnt(0)
    v_xor_b32 v{S[1]+4}, s{NONCE}, v{S[1]+4}
    v_xor_b32 v{S[1]+5}, s{NONCE}, v{S[1]+5}
    v_or_b32 v{S[1]+4}, v{S[1]+4}, v{S[1]+5}
    v_cmp_ne_u32 vcc, 0, v{S[1]+4}
    s_cbranch_vccz {L('pq_r')}
    s_sleep {qslp}
    s_branch {L('pq_l')}
    """)
    a.label(L("pq_r"))
    swbar()
    a(f"ds_write_b32 v{SGA}, v{SG} offset:12")
    stamp(a, 6, st)
    for x in kv_issue(): a(x)
    for i in range(2):
        a(f"""
        s_xor_b32 s3, s28, {i}
        s_and_b32 s29, s3, 1
        s_lshl_b32 s29, s29, 3
        s_lshr_b32 s3, s3, 1
        s_lshl_b32 s3, s3, 10
        s_add_u32 s3, s3, s29
        s_add_u32 s29, s3, s20
        s_add_u32 s30, s3, s21
        s_add_u32 s31, s3, s22
        buffer_load_dwordx2 {vr(QM[i],2)}, v{KD}, {sr(SO,4)}, s29 offen{ldsc}
        buffer_load_dwordx2 {vr(QM[i]+2,2)}, v{KD}, {sr(SO,4)}, s30 offen{ldsc}
        buffer_load_dwordx2 {vr(QT[i],2)}, v{KD}, {sr(SO,4)}, s31 offen{ldsc}
        """)
    def rdK(b, t):
        return [f"ds_read2_b64 {vr(KM[b],4)}, v{VA} offset0:{t} offset1:{128+t}",
                f"ds_read_b64 {vr(KT[b],2)}, v{VA} offset:{2048+8*t}"]
    def rdV(b, t):
        return [f"ds_read_b128 {vr(V[b],4)}, v{VA} offset:{3072+t*2048}",
                f"ds_read_b128 {vr(V[b]+4,4)}, v{VA} offset:{3072+t*2048+1024}"]
    def qk(kb, q):
        return [f"v_mfma_f32_32x32x16_bf16 {vr(S[q],16)}, {vr(KM[kb],4)}, {vr(QM[q],4)}, 0",
                f"v_mfma_f32_32x32x16_bf16 {vr(S[q],16)}, {vr(KT[kb],4)}, {vr(QT[q],4)}, {vr(S[q],16)}"]
    def pv(vb, q):
        return [f"v_mfma_f32_32x32x16_bf16 {vr(O[q],16)}, {vr(V[vb],4)}, {vr(P[q],4)}, {vr(O[q],16)}",
                f"v_mfma_f32_32x32x16_bf16 {vr(O[q],16)}, {vr(V[vb]+4,4)}, {vr(P[q]+4,4)}, {vr(O[q],16)}"]
    def rowmax(q, dst, init):
        s = S[q]
        if init:
            a(f"v_max3_f32 v{dst}, v{s}, v{s+1}, v{s+2}"); rest = list(range(3, 16))
        else:
            rest = list(range(16))
        while len(rest) >= 2:
            a(f"v_max3_f32 v{dst}, v{dst}, v{s+rest[0]}, v{s+rest[1]}"); rest = rest[2:]
        if rest: a(f"v_max_f32 v{dst}, v{dst}, v{s+rest[0]}")
    def set_shift():
        a("v_cmp_eq_u32 vcc, 0, v7")
        for i in range(2):
            a(f"""
            v_mov_b32 v1, v{M[i]}
            v_permlane32_swap_b32 v{M[i]}, v1
            v_max_f32 v{M[i]}, v{M[i]}, v1
            v_sub_f32 v1, 0, v{M[i]}
            v_and_b32 v6, 0xffff0000, v1
            v_sub_f32 v1, v1, v6
            v_and_b32 v{P[0]}, 0xffff0000, v1
            v_sub_f32 v1, v1, v{P[0]}
            v_lshrrev_b32 v6, 16, v6
            v_or_b32 v6, v6, v{P[0]}
            v_lshrrev_b32 v1, 16, v1
            v_cndmask_b32 v{QT[i]+2}, 0, v6, vcc
            v_cndmask_b32 v{QT[i]+3}, 0, v1, vcc
            """)
    a("s_setprio 2")
    a("s_waitcnt vmcnt(0) lgkmcnt(0)")
    swbar()
    a(f"v_mov_b32 v1, 33"); a(f"ds_write_b32 v{SGA}, v1 offset:12")
    stamp(a, 7, st)
    for x in rdK(0, 0): a(x)
    for x in kv_issue(): a(x)
    a("v_cmp_eq_u32 vcc, s13, v7")
    for i in range(2):
        a(f"""
        v_cndmask_b32 v{QT[i]}, 0, v{QT[i]}, vcc
        v_cndmask_b32 v{QT[i]+1}, 0, v{QT[i]+1}, vcc
        v_mov_b32 v{QT[i]+2}, 0
        v_mov_b32 v{QT[i]+3}, 0
        """)
    a("s_waitcnt lgkmcnt(0)")
    for x in qk(0, 0) + qk(0, 1): a(x)
    def zero_state():
        for i in range(16):
            a(f"v_mov_b32 v{O[0]+i}, 0"); a(f"v_mov_b32 v{O[1]+i}, 0")
    zero_state()
    rowmax(0, M[0], True); rowmax(1, M[1], True)
    set_shift()
    a.label(L("restart"))
    for x in rdK(1, 1) + rdV(0, 0): a(x)
    for x in qk(0, 0): a(x)
    for i in range(8):
        a(f"v_mov_b32 v{P[1]+i}, 0"); a(f"v_mov_b32 v{V[1]+i}, 0")
    a(f"s_mov_b32 s{CNT}, 16")
    def phase(q, mf, extra=None, pre=None):
        extra = extra or {}
        for g in range(4):
            if pre and g in pre:
                for x in pre[g]: a(x)
            a(mf[g])
            for x in extra.get(g, []): a(x)
            for i in range(4): a(f"v_exp_f32 v{S[q]+4*g+i}, v{S[q]+4*g+i}")
            for i in range(2): a(f"v_cvt_pk_bf16_f32 v{P[q]+2*g+i}, v{S[q]+4*g+2*i}, v{S[q]+4*g+2*i+1}")
    a(".p2align 6")
    a.label(L("loop"))
    if epst:
        for k in range(1, 16):
            a(f"s_cmp_lg_u32 s{CNT}, {17-k}"); a(f"s_cbranch_scc1 {L('es'+str(k))}"); stamp(a, k, epst); a.label(L("es" + str(k)))
    pres = [{}, {0: ["s_waitcnt lgkmcnt(0)"]}]
    exs = [{}, {0: rdV(1, 1)}]
    if lowat: pres[lowat[0]].setdefault(lowat[1], []).insert(0, "s_setprio 1")
    phase(0, qk(0, 1) + pv(1, 1), pre=pres[0], extra=exs[0])
    phase(1, qk(1, 0) + pv(0, 0), pre=pres[1], extra=exs[1])
    skipkv = [f"s_cmp_le_u32 s{CNT}, 2", f"s_cbranch_scc1 {L('nokv')}"] + kv_issue() + [f"{L('nokv')}:"]
    phase(0, qk(1, 1) + pv(0, 1),
          pre={0: ["s_waitcnt vmcnt(0) lgkmcnt(0)", "s_barrier", "s_setprio 2", f"v_xor_b32 v{VA}, {KV_SLOT}, v{VA}"]},
          extra={0: rdK(0, 0), 1: skipkv})
    phase(1, qk(0, 0) + pv(1, 0), pre={0: ["s_waitcnt lgkmcnt(0)"]}, extra={0: rdK(1, 1), 1: rdV(0, 0)})
    a(f"""
    s_sub_u32 s{CNT}, s{CNT}, 1
    s_cmp_lg_u32 s{CNT}, 0
    s_cbranch_scc1 {L('loop')}
    """)
    for x in pv(1, 1): a(x)
    stamp(a, 8, st)
    a(f"""
    s_lshl_b32 s3, s{W}, 12
    v_add_u32 v6, s3, v{KD}
    v_mov_b32 v1, 0x5d800000
    s_lshl_b32 s3, s28, 5
    s_add_u32 s3, s3, s{HEAD}
    s_lshl_b32 s29, s3, 10
    s_add_u32 s29, s29, {OM_OFF}
    s_lshl_b32 s37, s3, 8
    s_add_u32 s37, s37, {OT_OFF}
    s_lshl_b32 s38, s{QB}, 5
    s_add_u32 s38, s38, s{HEAD}
    s_lshl_b32 s38, s38, 4
    s_add_u32 s38, s38, {OFL_OFF}
    s_waitcnt lgkmcnt(0)
    v_cmp_nle_f32 vcc, v{O[0]+8}, v1
    v_cmp_nle_f32 s[30:31], v{O[1]+8}, v1
    ds_write_b128 v6, {vr(O[1],4)} offset:{EX_OFF}
    ds_write_b128 v6, {vr(O[1]+4,4)} offset:{EX_OFF+1024}
    ds_write_b128 v6, {vr(O[1]+8,4)} offset:{EX_OFF+2048}
    ds_write_b32 v6, v{M[1]} offset:{EX_OFF+3072}
    s_or_b32 s30, s31, vcc_hi
    v_mov_b32 v1, {SYNC+48}
    s_cmp_eq_u32 s30, 0
    s_cbranch_scc1 {L('noflag')}
    v_mov_b32 v{P[0]}, 1
    ds_write_b32 v1, v{P[0]}
    """)
    a.label(L("noflag"))
    swbar()
    a(f"""
    ds_read_b32 v1, v1
    v_xor_b32 v6, 0x4000, v6
    ds_read_b32 v{S[0]+12}, v6 offset:{EX_OFF+3072}
    ds_read_b128 {vr(S[0]+8,4)}, v6 offset:{EX_OFF+2048}
    ds_read_b128 {vr(S[0],4)}, v6 offset:{EX_OFF}
    ds_read_b128 {vr(S[0]+4,4)}, v6 offset:{EX_OFF+1024}
    s_waitcnt lgkmcnt(3)
    v_readfirstlane_b32 s30, v1
    v_max_f32 v1, v{M[0]}, v{S[0]+12}
    v_sub_f32 v{P[0]}, v{M[0]}, v1
    v_sub_f32 v{P[0]+1}, v{S[0]+12}, v1
    s_andn2_b32 s30, s30, s{MODE}
    s_cmp_lg_u32 s30, 0
    s_cbranch_scc1 {L('slow')}
    v_exp_f32 v{P[0]}, v{P[0]}
    v_exp_f32 v{P[0]+1}, v{P[0]+1}
    s_waitcnt lgkmcnt(2)
    v_mul_f32 v1, v{O[0]+8}, v{P[0]}
    v_fmac_f32 v1, v{S[0]+8}, v{P[0]+1}
    v_mov_b32 v6, v1
    v_permlane32_swap_b32 v1, v6
    v_rcp_f32 v6, v6
    v_lshlrev_b32 v1, 3, v0
    v_mul_f32 v{P[0]}, v{P[0]}, v6
    v_mul_f32 v{P[0]+1}, v{P[0]+1}, v6
    s_waitcnt lgkmcnt(0)
    """)
    for i in range(12): a(f"v_mul_f32 v{O[0]+i}, v{O[0]+i}, v{P[0]}")
    for i in range(12): a(f"v_fmac_f32 v{O[0]+i}, v{S[0]+i}, v{P[0]+1}")
    for i in range(6):
        a(f"v_cvt_pk_bf16_f32 v{S[1]+i}, v{O[0]+2*i}, v{O[0]+2*i+1}")
    a(f"""
    buffer_store_dwordx4 {vr(S[1],4)}, v{KD}, {sr(SO,4)}, s29 offen sc1
    s_mov_b32 exec_hi, 0
    buffer_store_dwordx2 {vr(S[1]+4,2)}, v1, {sr(SO,4)}, s37 offen sc1
    """)
    stamp(a, 9, st)
    a(f"""
    s_waitcnt vmcnt(0)
    """)
    signal(76, 8, 38, P[0])
    stamp(a, 10, st)
    stamp_flush(a, 11, st, W, SO)
    stamp_flush(a, 16, epst or p1st, W, SO)
    a("s_endpgm")
    a.label(L("slow"))
    a(f"""
    s_mov_b32 s{MODE}, 1
    s_waitcnt lgkmcnt(0)
    """)
    swbar()
    fill_rows()
    for i in range(2):
        a(f"v_mov_b32 v{QT[i]+2}, 0"); a(f"v_mov_b32 v{QT[i]+3}, 0"); a(f"v_mov_b32 v{M[i]}, 0xff800000")
    for x in kv_issue(): a(x)
    a(f"s_mov_b32 s{CNT}, 16")
    a.label(L("maxloop"))
    a("s_waitcnt vmcnt(0) lgkmcnt(0)")
    swbar()
    for x in kv_issue(): a(x)
    for x in rdK(0, 0) + rdK(1, 1): a(x)
    a(f"v_xor_b32 v{VA}, {KV_SLOT}, v{VA}")
    a("s_waitcnt lgkmcnt(0)")
    for t in range(2):
        for x in qk(t, 0) + qk(t, 1): a(x)
        rowmax(0, M[0], False); rowmax(1, M[1], False)
    a(f"""
    s_sub_u32 s{CNT}, s{CNT}, 1
    s_cmp_lg_u32 s{CNT}, 0
    s_cbranch_scc1 {L('maxloop')}
    """)
    set_shift()
    zero_state()
    a("s_waitcnt vmcnt(0)")
    swbar()
    a(f"ds_write_b32 v{SGA}, v{SG}")
    for x in kv_issue(): a(x)
    for x in rdK(0, 0): a(x)
    a("s_waitcnt lgkmcnt(0)")
    a(f"s_branch {L('restart')}")
    for t in spins:
        a.label(L(t + "s"))
        a(f"""
        s_sleep {slp}
        ds_read_b32 v{PL}, v{PA}
        s_waitcnt lgkmcnt(0)
        v_cmp_lt_u32 vcc, v{PL}, v{EP}
        s_nop 1
        s_cbranch_vccnz {L(t+'s')}
        s_branch {L(t+'r')}
        """)
    a.label(L("end"))
    a("s_endpgm")
    return kernel_text(name, a.text(), 168, 102)
```

```python
from asmlib import *
from layout import *
from k1 import srd, stamp, stamp_flush
from k2 import row192

KV_SLOT = 16384
EX_OFF = 0
FB = 32768
USLOT = 41024
UW1 = 16384
UW3D = 12288 + 32
SYNC = FB + 3 * USLOT
ST_M = SYNC + 320
ST_CS = ST_M + 1024
LNP = ST_M + 1536
FK_LDS = LNP + 256
NONCE = 99

def gen_fk(name, st=False, lowat=(1, 1), fprio=0, sprio=3, dprio=0, slp=1, sigat=(1, 0), sigw=4, ldsc=' sc1', gprio=1, qslp=2, upst=False, qsc=' sc1', fpause=2, nopoll=False, pf=0, dq=3, ptry=3, pfw=False, epst=False, p1st=False, wprio=1, b11=True, rup=(0, 0), pf2=True, tcb=(True,), rp1=(0, 0, 0), hprio=3, lst=False, peel=2, ramp=1, ng=4, pfall=True, pfd=4, pfn=12, pfh=False, pfc=False, pf0=True, osc='', fixdur=0, rtb=(5, 4, 2), tfirst=True, sfold=True, epoll=True, rot_dn=(0, 0)):
    a = Asm()
    L = lambda s: f"{name}_{s}"
    rot_up = (0, 0); rot_kv = 0; nomem = False
    TB, CG, W = 10, 11, 12
    SO = 16
    stamp(a, 0, st or epst or p1st or lst)
    a(f"""
    s_load_dwordx4 s[4:7], s[0:1], 0
    s_load_dwordx4 s[92:95], s[0:1], 64
    s_cmp_ge_u32 s2, 256
    s_cbranch_scc1 {L('end')}
    v_lshrrev_b32 v1, 6, v0
    v_and_b32 v0, 63, v0
    s_and_b32 s3, s2, 3
    s_lshl_b32 s3, s3, 2
    v_readfirstlane_b32 s{W}, v1
    s_bfe_u32 s15, s2, 0x20003
    s_add_u32 s{TB}, s3, s15
    s_bfe_u32 s3, s2, 0x10002
    s_lshl_b32 s3, s3, 3
    s_lshr_b32 s{CG}, s2, 5
    s_add_u32 s{CG}, s{CG}, s3
    s_mov_b32 s{SO+2}, {WS_USED}
    s_mov_b32 s{SO+3}, 0x00020000
    s_cmp_lt_u32 s{W}, 4
    s_cbranch_scc1 {L('mfma')}
    s_cmp_lt_u32 s{W}, 8
    s_cbranch_scc1 {L('help')}
    """)
    def ws_srd():
        a(f"s_mov_b32 s{SO}, s94"); a(f"s_and_b32 s{SO+1}, s95, 0xffff")
    nsig = [0]
    def signal(cnt_off, n, soff, t0, issue=None):
        t = f"sg{nsig[0]}"; nsig[0] += 1
        a(f"""
        s_mov_b64 exec, 1
        v_mov_b32 v{t0}, {SYNC+cnt_off}
        v_mov_b32 v{t0+1}, 1
        ds_add_rtn_u32 v{t0+1}, v{t0}, v{t0+1}
        v_mov_b32 v{t0}, 0
        v_mov_b32 v{t0+2}, s{NONCE}
        s_waitcnt lgkmcnt(0)
        v_cmp_eq_u32 vcc, {n-1}, v{t0+1}
        s_cbranch_vccz {L(t)}
        """)
        a(f"buffer_store_dword v{t0+2}, v{t0}, {sr(SO,4)}, s{soff} offen sc1")
        a.label(L(t))
        a("s_mov_b64 exec, -1")
    def get_nonce(tmp):
        a(f"""
        v_mov_b32 v{tmp}, {SYNC+60}
        ds_read_b32 v{tmp}, v{tmp}
        s_waitcnt lgkmcnt(0)
        v_readfirstlane_b32 s{NONCE}, v{tmp}
        """)
    vm = VM(a)
    LW = 24
    SX, SW = 48, 20
    SWU, SXN, SW2 = 40, 44, 48
    TBU, FBK, TK, CB = 4, 5, 6, 7
    UP = 5; DN = 8
    XA, WA, HA, W2A, H2, FEP, FSA, FPA, FPL, JA, JV = 13, 14, 15, 16, 17, 18, 19, 20, 21, 22, 23
    NB = 59; DS = 57
    FBUF = [24, 44]
    ACC = 64
    LX, LWV = 160, 164
    a(f"""
    s_load_dwordx4 s[52:55], s[0:1], 32
    s_setprio 3
    s_sub_u32 s{LW}, s{W}, 8
    v_lshrrev_b32 v1, 3, v0             ; lane>>3
    v_lshrrev_b32 v2, 4, v0             ; lane>>4
    v_and_b32 v3, 7, v0
    v_xor_b32 v3, v3, v2
    s_lshl_b32 s3, s{TB}, 7
    s_lshl_b32 s29, s{LW}, 5
    s_add_u32 s3, s3, s29
    v_add_u32 v1, s3, v1
    v_mul_u32_u24 v1, 1280, v1
    v_lshl_add_u32 v{LX}, v3, 4, v1
    v_xor_b32 v3, 4, v3
    v_lshl_add_u32 v{LX+1}, v3, 4, v1
    v_add_u32 v{LX+1}, {8*1280-1024}, v{LX+1}
    v_add_u32 v{LX+2}, {16*1280-2048}, v{LX}
    v_add_u32 v{LX+3}, {16*1280-2048}, v{LX+1}
    s_lshl_b32 s3, s{LW}, 4
    v_add_u32 v1, s3, v2
    v_mul_u32_u24 v1, 3840, v1
    v_and_b32 v3, 15, v0
    v_lshlrev_b32 v2, 2, v2
    v_xor_b32 v3, v3, v2
    v_lshl_add_u32 v{LWV}, v3, 4, v1
    s_lshl_b32 s3, s{CG}, 8
    v_add_u32 v{LWV}, s3, v{LWV}
    v_add_u32 v{LWV+1}, {4*3840-1024}, v{LWV}
    v_add_u32 v{LWV+2}, {8*3840-2048}, v{LWV}
    v_add_u32 v{LWV+3}, {12*3840-3072}, v{LWV}
    s_lshl_b32 s34, s{LW}, 12
    s_mov_b32 s8, s34
    s_add_u32 s9, s34, 98304
    s_lshr_b32 s3, s2, 5
    s_mul_i32 s3, s3, {rp1[0]}
    s_mul_i32 s32, s15, {rp1[1]}
    s_add_u32 s32, s32, s3
    s_and_b32 s3, s2, {3 if rp1[2] == 9 else 7}
    s_mul_i32 s3, s3, {5 if rp1[2] == 9 else rp1[2]}
    s_lshr_b32 s3, s3, {1 if rp1[2] == 9 else 0}
    s_add_u32 s32, s32, s3
    s_mul_i32 s3, s{TB}, {rtb[0]}
    s_lshr_b32 s3, s3, {rtb[1]}
    s_mul_i32 s3, s3, {rtb[2]}
    s_add_u32 s32, s32, s3
    s_mul_i32 s3, s32, 205
    s_lshr_b32 s3, s3, 11
    s_mul_i32 s3, s3, 10
    s_sub_u32 s32, s32, s3
    s_mul_i32 s33, s32, {64*3840}
    s_lshl_b32 s32, s32, 7
    s_waitcnt lgkmcnt(0)
    """)
    srd(a, SX, 4, 2048 * 1280)
    srd(a, SW, 6, 640 * 3840)
    a(f"""
    s_cmp_eq_u32 s{CG}, 15
    s_cselect_b32 s{SX+2}, 0, s{SX+2}
    s_cselect_b32 s{SW+2}, 0, s{SW+2}
    """)
    def issue(tag=None):
        iss = (lambda t: vm.issue(t, tag)) if tag else a
        a(f"s_add_u32 m0, s34, 16384")
        for i in range(4): iss(f"buffer_load_dwordx4 v{LWV+i}, {sr(SW,4)}, s33 offen offset:{i*1024} lds")
        a(f"s_mov_b32 m0, s34")
        for i in range(4): iss(f"buffer_load_dwordx4 v{LX+i}, {sr(SX,4)}, s32 offen offset:{i*1024} lds")
        a(f"""
        s_add_u32 s34, s34, 32768
        s_cmp_eq_u32 s34, s9
        s_cselect_b32 s34, s8, s34
        s_add_u32 s32, s32, 128
        s_add_u32 s33, s33, {64*3840}
        s_cmp_eq_u32 s32, 1280
        s_cselect_b32 s32, 0, s32
        s_cselect_b32 s33, 0, s33
        """)
    issue()
    ws_srd()
    a(f"""
    s_lshr_b32 s25, s{LW}, 1
    s_and_b32 s26, s{LW}, 1
    v_lshlrev_b32 v2, 4, v0             ; lane*16
    v_lshrrev_b32 v1, 5, v0             ; h
    v_and_b32 v4, 31, v0
    v_mov_b32 v{FEP}, 0
    s_lshl_b32 s3, s{LW}, 2
    s_add_u32 s3, s3, {SYNC+32}
    v_mov_b32 v{FSA}, s3
    ds_write_b32 v{FSA}, v{FEP}
    v_mov_b32 v11, {SYNC+48}
    ds_write_b32 v11, v{FEP}
    ds_write_b32 v11, v{FEP} offset:4
    ds_write_b32 v11, v{FEP} offset:16
    v_mov_b32 v12, -1
    ds_write_b32 v11, v12 offset:20
    ds_write_b32 v11, v{FEP} offset:24
    ds_write_b32 v11, v{FEP} offset:28
    ds_write_b32 v11, v{FEP} offset:32
    ds_write_b32 v11, v{FEP} offset:36
    v_and_b32 v11, 7, v0
    v_lshlrev_b32 v11, 2, v11
    v_add_u32 v11, {SYNC}, v11
    ds_write_b32 v11, v{FEP}
    """)
    b = a
    row192(b, UP, 3072, 11, 12)
    b(f"""
    s_mov_b32 s{TBU}, s{CG}
    s_mov_b32 s{FBK}, s{TB}
    s_lshl_b32 s36, s{TBU}, 2
    s_add_u32 s36, s36, s{LW}
    s_mul_i32 s36, s36, 40960
    s_add_u32 s36, s36, {XN_OFF}
    s_mul_i32 s37, s{FBK}, 192
    s_mul_i32 s3, s25, {2*16*3072}
    s_add_u32 s37, s37, s3               ; W cursor
    s_mov_b32 s28, s36
    s_add_u32 s29, s36, 40960
    s_mov_b32 s30, s37
    s_lshr_b32 s3, s2, 5
    s_mul_i32 s3, s3, {rup[0]}
    s_bfe_u32 s31, s2, 0x20003
    s_mul_i32 s31, s31, {rup[1]}
    s_add_u32 s31, s31, s3
    s_mul_i32 s3, s31, 26
    s_lshr_b32 s3, s3, 8
    s_mul_i32 s3, s3, 10
    s_sub_u32 s31, s31, s3
    s_lshl_b32 s3, s31, 12
    s_add_u32 s36, s36, s3
    s_mul_i32 s3, s31, {64*3072}
    s_add_u32 s37, s37, s3
    s_lshl_b32 s38, s{LW}, 12
    s_add_u32 s38, s38, {FB}
    s_mul_i32 s39, s26, {UW3D}
    s_mul_i32 s3, s25, 6144
    s_add_u32 s39, s39, s3
    s_add_u32 s39, s39, {FB+UW1}
    s_mov_b32 s{DS}, {2*USLOT}
    s_cmp_eq_u32 s26, 0
    s_cselect_b32 s{SWU}, s52, s54
    s_cselect_b32 s{SWU+1}, s53, s55
    s_and_b32 s{SWU+1}, s{SWU+1}, 0xffff
    s_mov_b32 s{SWU+2}, {640*3072}
    s_mov_b32 s{SWU+3}, 0x00020000
    s_mov_b32 s{SXN}, s{SO}
    s_mov_b32 s{SXN+1}, s{SO+1}
    s_mov_b32 s{SXN+2}, {WS_USED}
    s_mov_b32 s{SXN+3}, 0x00020000
    v_and_b32 v{FPA}, 3, v0
    v_lshlrev_b32 v{FPA}, 2, v{FPA}
    v_add_u32 v{FPA}, {SYNC+32}, v{FPA}
    """)
    row192(b, DN, 1280, 11, 12)
    b(f"""
    s_lshl_b32 s3, s25, 13
    s_add_u32 s3, s3, {FB+2*USLOT}
    v_add_u32 v{XA}, s3, v2
    v_bfe_u32 v11, v0, 2, 2              ; r
    v_lshl_add_u32 v12, v1, 3, v11       ; 8h+r
    v_mul_u32_u24 v12, 192, v12
    v_and_b32 v22, 3, v0
    v_lshl_add_u32 v12, v22, 3, v12
    v_bfe_u32 v23, v0, 4, 1              ; m
    v_mul_u32_u24 v3, {UW3D}, v23
    v_add_u32 v12, v12, v3
    s_mul_i32 s3, s26, 96
    s_add_u32 s3, s3, {FB+UW1+2*USLOT}
    v_add_u32 v{WA}, s3, v12
    s_mul_i32 s15, s{LW}, 30720
    s_add_u32 s15, s15, {FB}
    v_add_u32 v{HA}, s15, v2
    v_lshl_add_u32 v12, v1, 2, v11       ; 4h+r
    v_mul_u32_u24 v12, 192, v12
    v_lshl_add_u32 v12, v22, 3, v12
    v_lshl_add_u32 v12, v23, 5, v12
    v_add_u32 v{W2A}, s15, v12
    v_add_u32 v{H2}, {96*1024-1024}, v2
    s_mov_b32 s14, {2*USLOT}
    v_mov_b32 v{JA}, {SYNC+52}
    s_mov_b32 s{NB}, 0
    v_and_b32 v11, 15, v0
    v_lshlrev_b32 v11, 4, v11
    s_lshl_b32 s35, s{TBU}, 8
    s_add_u32 s35, s35, {FA_OFF}
    """)
    for i in range(4): a(f"v_mov_b32 v{24+i}, 0")
    for i in range(6): a(f"v_mfma_f32_32x32x16_bf16 {vr(ACC+16*i,16)}, v[24:27], v[24:27], 0")
    a(f"""
    s_cmp_eq_u32 s{CG}, 15
    s_cbranch_scc1 {L('fidle')}
    s_mov_b32 s13, 8
    """)
    if lst:
        for k in range(8):
            issue()
            a("s_waitcnt vmcnt(8) lgkmcnt(0)")
            stamp(a, 2 * k + 1, lst) if k < 7 else None
            a("s_barrier")
            stamp(a, 2 * k + 2, lst) if k < 7 else stamp(a, 15, lst)
        stamp_flush(a, 16, lst, W, SO)
        a(f"s_mov_b32 s{SO+2}, {WS_USED}"); a("v_lshlrev_b32 v2, 4, v0"); a("v_lshrrev_b32 v1, 5, v0"); a("s_waitcnt vmcnt(0)")
    else:
        a.label(L("lloop"))
        issue()
        a(f"""
        s_waitcnt vmcnt(8) lgkmcnt(0)
        s_barrier
        s_sub_u32 s13, s13, 1
        s_cmp_lg_u32 s13, 0
        s_cbranch_scc1 {L('lloop')}
        """)
    get_nonce(12)
    vm.q = ["p8"] * 8
    issue("p9")
    vm.wait("p8")
    a("s_barrier")
    a.label(L("pa_r"))
    def f_dmas(tag):
        g = []
        for k in range(2):
            for p in range(3):
                it = [(tag, f"buffer_load_dwordx4 v{UP+p}, {sr(SWU,4)}, s{37 if k == 0 else 58} offen offset:{p*1024} lds")]
                if p == 0:
                    it = ([f"s_add_u32 m0, s39, s{DS}"] if k == 0 else [f"s_add_u32 m0, m0, 3072", f"s_add_u32 s58, s37, {16*3072}"]) + it
                g.append(it)
        for ks in range(4):
            it = [(tag, f"buffer_load_dwordx4 v2, {sr(SXN,4)}, s36 offen offset:{ks*1024}{ldsc} lds")]
            if ks == 0: it = [f"s_add_u32 m0, s38, s{DS}"] + it
            g.append(it)
        g[-1] = g[-1] + ["s_add_u32 s36, s36, 4096", f"s_add_u32 s37, s37, {64*3072}", "s_cmp_eq_u32 s36, s29",
                         "s_cselect_b32 s36, s28, s36", "s_cselect_b32 s37, s30, s37",
                         f"s_sub_u32 s{DS}, s{DS}, {USLOT}", f"s_cselect_b32 s{DS}, {2*USLOT}, s{DS}"]
        return g
    def emit_group(grp, track=True):
        for x in grp:
            if isinstance(x, tuple):
                if track: vm.issue(x[1], x[0])
                else: a(x[1])
            else: a(x)
    for g in f_dmas("f0"): emit_group(g)
    vm.wait("p9")
    def do_pause():
        if fpause:
            a.label(L("fp_l"))
            a(f"""
            s_sleep 2
            ds_read_b32 v{JV}, v{JA} offset:{12 if fpause == 1 else 28}
            s_waitcnt lgkmcnt(0)
            v_cmp_gt_u32 vcc, {1 if fpause == 1 else 4}, v{JV}
            s_cmp_eq_u32 s{CG}, 15
            s_cbranch_scc1 {L('fp_r')}
            s_cbranch_vccnz {L('fp_l')}
            """)
            a.label(L("fp_r"))
    if peel:
        a(f"""
        s_cmp_eq_u32 s{CG}, 15
        s_cbranch_scc1 {L('f9a')}
        s_barrier
        """)
        a.label(L("f9a"))
        for g in f_dmas("f1"): emit_group(g)
        a(f"""
        s_cmp_eq_u32 s{CG}, 15
        s_cbranch_scc1 {L('f9')}
        s_barrier
        s_barrier
        """)
        a.label(L("f9"))
        a(f"s_setprio {gprio}")
    else:
        a(f"""
        s_cmp_eq_u32 s{CG}, 15
        s_cbranch_scc1 {L('f9')}
        s_barrier
        s_barrier
        s_barrier
        """)
        a.label(L("f9"))
        do_pause()
        a(f"s_setprio {gprio}")
        for g in f_dmas("f1"): emit_group(g)
    fspins = []
    def farrive(o=0):
        return [f"v_add_u32 v{FEP+o}, 1, v{FEP+o}", f"ds_write_b32 v{FSA+o}, v{FEP+o}", f"ds_read_b32 v{FPL+o}, v{FPA+o}"]
    def fcheck(o=0):
        t = f"fb{len(fspins)}"; fspins.append((t, o))
        return ["s_waitcnt lgkmcnt(0)", f"v_cmp_lt_u32 vcc, v{FPL+o}, v{FEP+o}", f"s_cbranch_vccnz {L(t+'s')}", f"{L(t+'r')}:"]
    njoin = [0]
    def jread(o=0): return [f"ds_read_b32 v{JV+o}, v{JA+o}"]
    def jtest(o=0):
        t = f"j{njoin[0]}"; njoin[0] += 1
        return [f"v_cmp_lt_u32 vcc, s{NB}, v{JV+o}", f"s_cbranch_vccz {L(t)}", "s_barrier", f"s_add_u32 s{NB}, s{NB}, 1", f"{L(t)}:"]
    MD = 56
    ncb = [0]
    def cbar():
        t = f"cb{ncb[0]}"; ncb[0] += 1
        return [f"s_cmp_ge_u32 s{NB}, s{MD}", f"s_cbranch_scc1 {L(t)}", "s_barrier", f"s_add_u32 s{NB}, s{NB}, 1", f"{L(t)}:"]
    a(f"s_mov_b32 s{MD}, 0")
    vm.wait("f0")
    for x in farrive() + fcheck(): a(x)
    stamp(a, 1, st)
    def up_reads(b, ks):
        f = FBUF[b]; out = []
        out.append(f"ds_read_b128 {vr(f,4)}, v{XA} offset:{ks*1024}")
        for ft in range(3):
            for half in range(2):
                out.append(f"ds_read_b64_tr_b16 {vr(f+8+4*ft+2*half,2)}, v{WA} offset:{ks*3072 + half*768 + ft*32}")
            if ft == 0: out.append(f"ds_read_b128 {vr(f+4,4)}, v{XA} offset:{4096+ks*1024}")
        return out
    def mfmas(b, first=False):
        f = FBUF[b]; out = []
        for ft in range(3):
            for tt in range(2):
                acc = ACC + 16 * (ft * 2 + tt)
                c = "0" if first else vr(acc, 16)
                out.append(f"v_mfma_f32_32x32x16_bf16 {vr(acc,16)}, {vr(f+8+4*ft,4)}, {vr(f+4*tt,4)}, {c}")
        return out
    def kstep(b, nxt, groups, track, first=False, ng=4, join=False):
        a("s_waitcnt lgkmcnt(0)")
        m = mfmas(b, first)
        for i in range(6):
            a(m[i])
            if join and i == 0:
                for x in jtest(): a(x)
            if join and i == 5:
                for x in jread(): a(x)
            if i < 4:
                for x in nxt[2*i:2*i+2]: a(x)
            if i >= 6 - ng and groups: emit_group(groups.pop(0), track)
    for x in up_reads(0, 0): a(x)
    a("s_mov_b32 s13, 10")
    def adv_rd():
        a(f"""
        s_sub_u32 s3, s14, {USLOT}
        s_cselect_b32 s3, {2*USLOT}, s3
        s_sub_u32 s27, s3, s14
        s_mov_b32 s14, s3
        v_add_u32 v{XA}, s27, v{XA}
        v_add_u32 v{WA}, s27, v{WA}
        """)
    if peel == 1:
        for ks in range(3): kstep(ks % 2, up_reads((ks + 1) % 2, ks + 1), [], False)
        do_pause()
        for g in f_dmas("f"): emit_group(g, False)
        a(f"s_branch {L('upmid')}")
    if peel == 2:
        if not pfall:
            a(f"""
            s_cmp_eq_u32 s{CG}, 15
            s_cbranch_scc1 {L('uploop')}
            """)
        for ks in range(3): kstep(ks % 2, up_reads((ks + 1) % 2, ks + 1), [], False)
        adv_rd()
        a("s_waitcnt vmcnt(0) lgkmcnt(0)")
        for x in farrive() + fcheck(): a(x)
        m_ = mfmas(1); nx_ = up_reads(0, 0)
        for i in range(6):
            a(m_[i])
            for x in nx_[2*i:2*i+2]: a(x)
        for ks in range(3): kstep(ks % 2, up_reads((ks + 1) % 2, ks + 1), [], False)
        a.label(L("fq_l"))
        a(f"""
        s_sleep 1
        ds_read_b32 v{JV}, v{JA} offset:12
        s_waitcnt lgkmcnt(0)
        v_cmp_gt_u32 vcc, 33, v{JV}
        s_cbranch_vccnz {L('fq_l')}
        s_setprio 3
        """)
        for g in f_dmas("f") + f_dmas("f"): emit_group(g, False)
        a(f"""
        s_mov_b32 s{MD}, 16
        s_mov_b32 s13, 9
        s_branch {L('upmid')}
        """)
    a(".p2align 6")
    a.label(L("uploop"))
    if upst:
        for k in range(1, 10):
            a(f"s_cmp_lg_u32 s13, {10-k}"); a(f"s_cbranch_scc1 {L('us'+str(k))}"); stamp(a, 1 + k, st); a.label(L("us" + str(k)))
    a(f"""
    s_cmp_le_u32 s13, 2
    s_cselect_b32 s{SWU+2}, 0, s{SWU+2}
    s_cselect_b32 s{SXN+2}, 0, s{SXN+2}
    """)
    groups = f_dmas("f")
    for ks in range(3): kstep(ks % 2, up_reads((ks + 1) % 2, ks + 1), groups, False, ng=(4, 3, 3)[ks])
    assert not groups
    a.label(L("upmid"))
    m = mfmas(1)
    a(f"""
    s_sub_u32 s3, s14, {USLOT}
    s_cselect_b32 s3, {2*USLOT}, s3
    s_sub_u32 s27, s3, s14
    s_mov_b32 s14, s3
    s_setprio 3
    v_add_u32 v{XA}, s27, v{XA}
    v_add_u32 v{WA}, s27, v{WA}
    s_cmp_eq_u32 s{MD}, 0
    s_cbranch_scc1 {L('gsync')}
    s_setprio {fprio}
    s_waitcnt vmcnt(10) lgkmcnt(0)
    s_barrier
    s_add_u32 s{NB}, s{NB}, 1
    """)
    a.label(L("gback"))
    nx = up_reads(0, 0)
    for i in range(6):
        a(m[i])
        for x in nx[2*i:2*i+2]: a(x)
    a(f"""
    s_sub_u32 s13, s13, 1
    s_cmp_lg_u32 s13, 0
    s_cbranch_scc1 {L('uploop')}
    """)
    st_save = st
    if upst:
        stamp(a, 11, st); st = False
    stamp(a, 2, st)
    a(f"""
    s_setprio {sprio}
    s_load_dwordx2 s[52:53], s[0:1], 48
    s_load_dwordx2 s[92:93], s[0:1], 0
    s_load_dwordx2 s[94:95], s[0:1], 16
    s_load_dwordx2 s[96:97], s[0:1], 56
    s_mov_b32 s{SWU}, {f2u(1.4426950408889634**2 if sfold else -1.4426950408889634):#x}
    s_lshl_b32 s3, s{TBU}, 2
    s_lshl_b32 s36, s25, 1
    s_add_u32 s3, s3, s36
    s_mul_i32 s36, s3, 96                ; toktile*96
    s_mul_i32 s3, s{FBK}, 6
    s_add_u32 s36, s36, s3
    s_mul_i32 s3, s26, 3
    s_add_u32 s36, s36, s3
    s_lshl_b32 s36, s36, 10
    s_add_u32 s36, s36, {H_OFF}
    s_add_u32 s37, s36, {96*1024}
    s_waitcnt lgkmcnt(0)
    """)
    vm.q = ["z"] * 10
    srd(a, SW2, 52, 1536 * 1280)
    for ft in range(3):
        for tt in range(2):
            n = ft * 2 + tt
            g = ACC + 16 * n; u = g + 8
            T = 24 + 8 * (n % 2)
            if sfold:
                for i in range(8): a(f"v_exp_f32 v{T+i}, -v{g+i}")
                for i in range(8): a(f"v_mul_f32 v{g+i}, v{g+i}, v{u+i}")
                for i in range(8): a(f"v_fma_f32 v{T+i}, v{T+i}, s{SWU}, s{SWU}")
            else:
                for i in range(8): a(f"v_mul_f32 v{T+i}, s{SWU}, v{g+i}")
                for i in range(8): a(f"v_exp_f32 v{T+i}, v{T+i}")
                for i in range(8): a(f"v_mul_f32 v{g+i}, v{g+i}, v{u+i}")
                for i in range(8): a(f"v_add_f32 v{T+i}, 1.0, v{T+i}")
            for i in range(8): a(f"v_rcp_f32 v{T+i}, v{T+i}")
            for i in range(8): a(f"v_mul_f32 v{g+i}, v{g+i}, v{T+i}")
            for i in range(4): a(f"v_cvt_pk_bf16_f32 v{u+i}, v{g+2*i}, v{g+2*i+1}")
            vm.issue(f"buffer_store_dwordx4 {vr(u,4)}, v2, {sr(SO,4)}, s{36+tt} offen offset:{ft*1024} sc1", "hs")
    stamp(a, 3, st)
    vm.wait("z")
    for x in farrive(): a(x)
    a(f"""
    s_lshl_b32 s3, s{TBU}, 4
    s_add_u32 s3, s3, s{FBK}
    s_lshl_b32 s3, s3, 4
    s_add_u32 s55, s3, {FLG_OFF}
    v_mov_b32 v11, 0
    v_mov_b32 v12, s{NONCE}
    s_lshr_b32 s3, s2, 3
    s_cmp_ge_u32 s3, 28
    s_cselect_b32 s{SW2+2}, 0, s{SW2+2}
    s_lshr_b32 s{CB}, s3, 2
    s_and_b32 s3, s3, 3
    s_and_b32 s{TK}, s2, 7
    s_lshl_b32 s{TK}, s{TK}, 2
    s_add_u32 s{TK}, s{TK}, s3
    s_mul_i32 s30, s{LW}, {24*16*1280}
    s_mul_i32 s3, s{CB}, 192
    s_add_u32 s30, s30, s3
    s_add_u32 s31, s30, {24*16*1280}
    s_mul_i32 s28, s{TK}, 192
    s_mul_i32 s3, s{LW}, 24
    s_add_u32 s28, s28, s3
    s_lshl_b32 s28, s28, 10
    s_add_u32 s28, s28, {H_OFF}
    s_add_u32 s29, s28, {24*1024}
    s_mul_i32 s58, s{CB}, {rot_dn[0]}
    s_and_b32 s3, s{TK}, 3
    s_mul_i32 s3, s3, {rot_dn[1]}
    s_add_u32 s58, s58, s3
    s_mul_i32 s3, s58, 171
    s_lshr_b32 s3, s3, 12
    s_mul_i32 s3, s3, 24
    s_sub_u32 s58, s58, s3
    s_lshl_b32 s36, s58, 10
    s_add_u32 s36, s36, s28              ; h cursor
    s_mul_i32 s37, s58, {16*1280}
    s_add_u32 s37, s37, s30              ; w2 cursor
    s_lshr_b32 s3, s{TK}, 1
    s_lshl_b32 s3, s3, 8
    s_lshl_b32 s39, s{LW}, 6
    s_add_u32 s39, s39, s3
    s_add_u32 s39, s39, {FLG_OFF}
    """)
    for x in fcheck(): a(x)
    def w2_groups(j, adv=True):
        o = (j % 6) * 5120; g = []
        for p in range(3):
            it = [(f"d{j}", f"buffer_load_dwordx4 v{DN+p}, {sr(SW2,4)}, s37 offen offset:{p*1024} lds")]
            if p == 0: it = [f"s_add_u32 m0, s15, {o}"] + it
            if p == 2 and adv: it += [f"s_add_u32 s37, s37, {16*1280}", "s_cmp_eq_u32 s37, s31", "s_cselect_b32 s37, s30, s37"]
            g.append(it)
        return g
    def h_groups(j, both=False):
        o = (j % 6) * 5120 + 3072
        adv = ["s_add_u32 s36, s36, 1024", "s_cmp_eq_u32 s36, s29", "s_cselect_b32 s36, s28, s36"]
        if both: adv = [f"s_add_u32 s37, s37, {16*1280}"] + adv + ["s_cselect_b32 s37, s30, s37"]
        return [[f"s_add_u32 m0, s15, {o}", (f"d{j}", f"buffer_load_dwordx4 v2, {sr(SO,4)}, s36 offen{ldsc} lds")],
                [(f"d{j}", f"buffer_load_dwordx4 v{H2}, {sr(SO,4)}, s36 offen offset:1024{ldsc} lds")] + adv]
    for j in range(2):
        for gg in w2_groups(j): emit_group(gg)
    a(f"s_setprio {dprio}")
    if tcb[0]:
        for x in cbar(): a(x)
    a("s_setprio 3")
    vm.wait("hs")
    signal(72, 4, 55, 24, lambda t: vm.issue(t, "fl"))
    stamp(a, 4, st)
    a(f"""
    s_lshr_b32 s3, s2, 3
    s_cmp_ge_u32 s3, 28
    s_cbranch_scc1 {L('pf2' if (pf2 and not pfh) else 'end')}
    """)
    for j in range(2, 4):
        for gg in w2_groups(j): emit_group(gg)
    def poll(tag, voff, soff):
        a(f"s_mov_b32 s13, 0x100000")
        a.label(L("poll" + tag))
        a(f"""
        buffer_load_dword v12, v{voff}, {sr(SO,4)}, s{soff} offen sc1
        s_sub_u32 s13, s13, 1
        s_cmp_eq_u32 s13, 0
        s_cbranch_scc1 {L('polled'+tag)}
        """)
        for x in jread() + ["s_waitcnt lgkmcnt(0)"] + jtest(): a(x)
        a(f"""
        s_waitcnt vmcnt(0)
        v_cmp_ne_u32 vcc, s{NONCE}, v12
        s_nop 4
        s_cbranch_vccnz {L('poll'+tag)}
        """)
        a.label(L("polled" + tag))
        vm.wait_all()
    a(f"""
    v_and_b32 v11, 3, v0
    v_lshlrev_b32 v11, 4, v11
    """)
    srd(a, SXN, 94, 640 * 1280)
    a(f"""
    s_mul_i32 s38, s{LW}, {160*1280}
    s_mul_i32 s3, s{CB}, 192
    s_add_u32 s38, s38, s3
    """)
    stamp(a, 5, st)
    a(f"s_mov_b32 s{MD}, 16")
    a(f"s_mov_b32 s13, 0x100000")
    a.label(L("hp_l"))
    a(f"buffer_load_dword v12, v11, {sr(SO,4)}, s39 offen sc1")
    for x in cbar(): a(x)
    a(f"""
    s_sub_u32 s13, s13, 1
    s_cmp_eq_u32 s13, 0
    s_cbranch_scc1 {L('hp_r')}
    s_waitcnt vmcnt(0)
    v_cmp_ne_u32 vcc, s{NONCE}, v12
    s_cbranch_vccz {L('hp_r')}
    buffer_load_dword v12, v11, {sr(SO,4)}, s39 offen sc1
    s_waitcnt vmcnt(0)
    v_cmp_ne_u32 vcc, s{NONCE}, v12
    s_cbranch_vccnz {L('hp_l')}
    """)
    a.label(L("hp_r"))
    vm.wait_all()
    stamp(a, 6, st)
    for j in range(6):
        if j >= 4:
            for gg in w2_groups(j): emit_group(gg)
        for g in h_groups(j): emit_group(g)
    a(f"s_setprio {dprio}")
    def wo_groups(i):
        g = []
        for n in range(5 * i, 5 * i + 5):
            p = n % 3
            it = [(f"w{n}", f"buffer_load_dwordx4 v{DN+p}, {sr(SXN,4)}, s38 offen offset:{p*1024} lds")]
            if p == 0 or n == 5 * i: it = [f"s_add_u32 m0, s15, {(n-p)*1024}"] + it
            if p == 2: it.append(f"s_add_u32 s38, s38, {16*1280}")
            g.append(it)
        return g
    def dn_reads(b, j):
        f = FBUF[b]; o = (j % 6) * 5120; out = []
        out.append(f"ds_read_b128 {vr(f,4)}, v{HA} offset:{o+3072}")
        for ct in range(3):
            for half in range(2):
                out.append(f"ds_read_b64_tr_b16 {vr(f+8+4*ct+2*half,2)}, v{W2A} offset:{o + half*1536 + ct*64}")
            if ct == 0: out.append(f"ds_read_b128 {vr(f+4,4)}, v{HA} offset:{o+4096}")
        return out
    vm.wait("d0")
    stamp(a, 7, st)
    for x in dn_reads(0, 0): a(x)
    for j in range(24):
        nxt = []
        if j + 1 < 24:
            vm.wait(f"d{j+1}")
            nxt = dn_reads((j + 1) % 2, j + 1)
        groups = (w2_groups(j + 6, adv=False) + h_groups(j + 6, both=True)) if j + 6 < 24 else wo_groups(j - 18)
        kstep(j % 2, nxt, groups, True, first=(j == 0), ng=5)
        if (j - ramp + 1) % dq == 0:
            for x in cbar(): a(x)
        if j in (5, 11, 17): stamp(a, 8 + (j - 5) // 6, st)
        if j == 2:
            a(f"""
            v_and_b32 v11, 7, v0
            v_lshlrev_b32 v11, 4, v11
            s_lshl_b32 s3, s{LW}, 3
            s_lshr_b32 s39, s{TK}, 2
            s_lshl_b32 s39, s39, 5
            s_add_u32 s39, s39, s3
            s_lshl_b32 s39, s39, 4
            s_add_u32 s39, s39, {OFL_OFF}
            """)
        if j == 22 and epoll:
            vm.issue(f"buffer_load_dword v12, v11, {sr(SO,4)}, s39 offen sc1", "of")
    stamp(a, 11, st)
    OW = 24
    WFR = [[8, 12, 16], [20, 160, 164]]
    a(f"""
    s_setprio {wprio}
    v_readfirstlane_b32 s57, v{FEP}
    v_mov_b32 v5, v{W2A}
    v_mul_u32_u24 v6, {36*192}, v1
    v_add_u32 v6, v6, v5
    v_lshlrev_b32 v7, 3, v4
    v_lshl_add_u32 v7, v1, 9, v7
    s_lshl_b32 s34, s{TK}, 6
    s_lshl_b32 s3, s{LW}, 3
    s_add_u32 s34, s34, s3               ; (tk*2)*32 + 8w
    s_lshl_b32 s35, s34, 8
    s_add_u32 s35, s35, {OT_OFF}
    s_lshl_b32 s34, s34, 10
    s_add_u32 s34, s34, {OM_OFF}
    s_add_u32 s36, s34, 32768
    s_add_u32 s37, s35, 8192
    s_add_u32 s32, s34, 4096
    s_add_u32 s33, s36, 4096
    s_lshl_b32 s3, s{LW}, 6
    v_add_u32 v3, s3, v0
    s_mul_i32 s38, s{TK}, {64*1280}
    s_mul_i32 s3, s{CB}, 192
    s_add_u32 s38, s38, s3
    s_cmp_eq_u32 s{CB}, 6
    s_cselect_b32 s27, 8, 12
    """)
    srd(a, SWU, 92, 2048 * 1280)
    srd(a, SW2, 96, 2048 * 1280)
    a.label(L("drain"))
    a(f"""
    s_cmp_ge_u32 s{NB}, 16
    s_cbranch_scc1 {L('drained')}
    s_barrier
    s_add_u32 s{NB}, s{NB}, 1
    s_branch {L('drain')}
    """)
    a.label(L("drained"))
    if epoll:
        vm.wait("of")
        a(f"""
        v_cmp_ne_u32 vcc, s{NONCE}, v12
        s_cbranch_vccz {L('oready')}
        """)
        q_save = list(vm.q)
    poll("o", 11, 39)
    if epoll:
        a.label(L("oready"))
        vm.q = q_save
    stamp(a, 12, st)
    steps = [("m", 0), ("m", 1), ("m", 2), ("m", 3), ("t", 0), ("m", 4), ("m", 5), ("m", 6), ("m", 7), ("t", 1)]
    def o_load(j):
        k, i = steps[j]; b = OW + 8 * (j % 5)
        if k == "m":
            for tt in range(2):
                so = (34, 36)[tt] if i < 4 else (32, 33)[tt]
                vm.issue(f"buffer_load_dwordx4 {vr(b+4*tt,4)}, v2, {sr(SO,4)}, s{so} offen offset:{(i%4)*1024}{ldsc}", f"o{j}")
        else:
            for tt in range(2):
                for q in range(2):
                    vm.issue(f"buffer_load_dwordx2 {vr(b+4*tt+2*q,2)}, v7, {sr(SO,4)}, s{(35,37)[tt]} offen offset:{i*1024+q*256}{ldsc}", f"o{j}")
    def wo_rd(j):
        k, i = steps[j]; out = []
        for ct in range(3):
            for half in range(2):
                if k == "m": ad, off = 5, 20 * i * 192 + half * 1536 + ct * 64
                else: ad, off = 6, (80 * i + 16 + 20 * half) * 192 + ct * 64
                out.append(f"ds_read_b64_tr_b16 {vr(WFR[j%2][ct]+2*half,2)}, v{ad} offset:{off}")
        return out
    for j in range(5): o_load(j)
    assert not any(t in vm.q for t in ("w0", "w1", "w2", "w3"))
    for x in wo_rd(0): a(x)
    GO, LO, LO2, WR = 40, 43, 46, 49
    for j in range(10):
        vm.wait(f"o{j}", extra="lgkmcnt(0)")
        nxt = wo_rd(j + 1) if j + 1 < 10 else []
        b = OW + 8 * (j % 5)
        n = 0
        for ct in range(3):
            for tt in range(2):
                acc = ACC + 16 * (ct * 2 + tt)
                a(f"v_mfma_f32_32x32x16_bf16 {vr(acc,16)}, {vr(WFR[j%2][ct],4)}, {vr(b+4*tt,4)}, {vr(acc,16)}")
                if n < 3:
                    for x in nxt[2*n:2*n+2]: a(x)
                n += 1
        if j + 5 < 10: o_load(j + 5)
        if j == 6:
            for n in range(3):
                a(f"""
                v_add_u32 v36, {256*n}, v3
                v_mul_u32_u24 v37, 0xaab, v36
                v_lshrrev_b32 v37, 15, v37           ; token
                v_mul_u32_u24 v38, 12, v37
                v_sub_u32 v36, v36, v38              ; g
                v_mul_u32_u24 v38, 1280, v37
                v_lshl_add_u32 v38, v36, 4, v38
                v_cmp_gt_u32 vcc, s27, v36
                v_mov_b32 v39, 0x7f000000
                v_cndmask_b32 v38, v39, v38, vcc
                """)
                vm.issue(f"buffer_load_dwordx4 {vr(24+4*n,4)}, v38, {sr(SWU,4)}, s38 offen", "x")
        if j == 8:
            for n in range(3):
                a(f"""
                v_add_u32 v36, {256*n}, v3
                v_mul_u32_u24 v37, 0xaab, v36
                v_lshrrev_b32 v37, 15, v37
                v_mul_u32_u24 v38, 12, v37
                v_sub_u32 v36, v36, v38
                v_mul_u32_u24 v38, 1280, v37
                v_lshl_add_u32 v{GO+n}, v36, 4, v38
                v_cmp_gt_u32 vcc, s27, v36
                v_mul_u32_u24 v38, 400, v37
                v_cndmask_b32 v{GO+n}, v39, v{GO+n}, vcc
                v_lshl_add_u32 v{LO+n}, v36, 5, v38
                v_add_u32 v{LO+n}, {FB}, v{LO+n}
                v_add_u32 v{LO2+n}, 61440, v{LO+n}
                """)
            a(f"""
            v_mul_u32_u24 v{WR}, 400, v4
            v_lshl_add_u32 v{WR}, v1, 4, v{WR}
            v_add_u32 v{WR}, s15, v{WR}
            v_mov_b32 v{FEP+32}, s57
            v_mov_b32 v{JA+32}, {SYNC+52}
            s_lshl_b32 s3, s{LW}, 2
            s_add_u32 s3, s3, {SYNC+32}
            v_mov_b32 v{FSA+32}, s3
            v_and_b32 v{FPA+32}, 3, v0
            v_lshlrev_b32 v{FPA+32}, 2, v{FPA+32}
            v_add_u32 v{FPA+32}, {SYNC+32}, v{FPA+32}
            """)
    stamp(a, 13, st)
    for ct in range(3):
        for tt in range(2):
            for j in range(4):
                a(f"ds_write_b128 v{WR}, {vr(ACC+16*(ct*2+tt)+4*j,4)} offset:{tt*12800 + ct*128 + j*32}")
    for x in farrive(32) + fcheck(32): a(x)
    for n in range(3):
        for w in range(4):
            ad = f"v{LO+n}" if w < 2 else f"v{LO2+n}"
            for hf in range(2):
                a(f"ds_read_b128 {vr(ACC+32*n+8*w+4*hf,4)}, {ad} offset:{(w%2)*30720 + hf*16}")
    vm.wait_all()
    for n in range(3):
        a(f"s_waitcnt lgkmcnt({min(15, 8*(2-n))})")
        b = ACC + 32 * n; x = 24 + 4 * n
        for i in range(0, 8, 2):
            a(f"v_pk_add_f32 {vr(b+i,2)}, {vr(b+i,2)}, {vr(b+8+i,2)}")
            a(f"v_pk_add_f32 {vr(b+16+i,2)}, {vr(b+16+i,2)}, {vr(b+24+i,2)}")
            a(f"v_lshlrev_b32 v{b+8+i}, 16, v{x+i//2}")
            a(f"v_and_b32 v{b+9+i}, 0xffff0000, v{x+i//2}")
            a(f"v_pk_add_f32 {vr(b+i,2)}, {vr(b+i,2)}, {vr(b+16+i,2)}")
            a(f"v_pk_add_f32 {vr(b+i,2)}, {vr(b+i,2)}, {vr(b+8+i,2)}")
            a(f"v_cvt_pk_bf16_f32 v{x+i//2}, v{b+i}, v{b+i+1}")
        a(f"buffer_store_dwordx4 {vr(x,4)}, v{GO+n}, {sr(SW2,4)}, s38 offen{osc}")
    a(f"""
    s_or_b32 s3, s2, s{LW}
    s_cmp_lg_u32 s3, 0
    s_cbranch_scc1 {L('nrst')}
    s_load_dwordx2 s[52:53], s[0:1], 64
    v_mov_b32 v36, 0
    s_waitcnt lgkmcnt(0)
    """)
    srd(a, SXN, 52, 256)
    a(f"""
    s_mov_b64 exec, 1
    buffer_store_dword v36, v36, {sr(SXN,4)}, 0 offen sc1
    s_mov_b64 exec, -1
    """)
    a.label(L("nrst"))
    if fixdur:
        a.label(L("fd_l"))
        a(f"""
        s_memrealtime s[52:53]
        s_waitcnt lgkmcnt(0)
        s_sub_u32 s52, s52, s{NONCE}
        s_cmp_lt_u32 s52, {fixdur}
        s_cbranch_scc1 {L('fd_l')}
        """)
    stamp(a, 14, st)
    if st: a("s_waitcnt vmcnt(0)")
    stamp(a, 15, st)
    st = st_save
    stamp_flush(a, 12 if upst else 16, st, W, SO)
    a("s_endpgm")
    for t, o in fspins:
        a.label(L(t + "s"))
        a(f"""
        s_sleep 1
        ds_read_b32 v{FPL+o}, v{FPA+o}
        """)
        if o:
            for x in jread(o) + ["s_waitcnt lgkmcnt(0)"] + jtest(o): a(x)
        a(f"""
        s_waitcnt lgkmcnt(0)
        v_cmp_lt_u32 vcc, v{FPL+o}, v{FEP+o}
        s_nop 1
        s_cbranch_vccnz {L(t+'s')}
        s_branch {L(t+'r')}
        """)
    a.label(L("gsync"))
    a(f"""
    ds_read_b32 v{JV}, v{JA} offset:12
    v_add_u32 v{FEP}, 1, v{FEP}
    s_waitcnt vmcnt(10) lgkmcnt(0)
    v_readfirstlane_b32 s3, v{JV}
    s_cmp_eq_u32 s{LW}, 0
    s_cselect_b32 s3, s3, 0
    s_cmp_eq_u32 s3, 0
    s_cbranch_scc1 {L('gs1')}
    ds_write_b32 v{JA}, v{FEP} offset:16        ; SW_AT
    """)
    a.label(L("gs1"))
    a(f"ds_write_b32 v{FSA}, v{FEP}")
    a.label(L("gs2"))
    a(f"""
    ds_read_b32 v{FPL}, v{FPA}
    ds_read_b32 v{JV}, v{JA} offset:16
    s_waitcnt lgkmcnt(0)
    v_cmp_lt_u32 vcc, v{FPL}, v{FEP}
    s_cbranch_vccnz {L('gs2')}
    v_cmp_le_u32 vcc, v{JV}, v{FEP}
    s_setprio {gprio}
    s_cbranch_vccnz {L('gs4')}
    s_cmp_gt_u32 s13, {11-ng}
    s_cbranch_scc1 {L('gback')}
    """)
    a.label(L("gs3"))
    a(f"""
    s_sleep 1
    ds_read_b32 v{JV}, v{JA} offset:12
    s_waitcnt lgkmcnt(0)
    v_cmp_gt_u32 vcc, 33, v{JV}
    s_cbranch_vccnz {L('gs3')}
    """)
    a.label(L("gs4"))
    a(f"""
    s_mov_b32 s{MD}, 16
    s_setprio {fprio}
    s_branch {L('gback')}
    """)
    a.label(L("pf2"))
    srd(a, SW2, 52, 1536 * 1280)
    srd(a, SXN, 94, 640 * 1280)
    a(f"""
    s_sub_u32 s3, s2, 224
    s_lshl_b32 s3, s3, 2
    s_add_u32 s3, s3, s{LW}
    s_lshl_b32 s3, s3, 10
    s_mov_b32 s13, s3
    """)
    for i in range(15):
        a(f"buffer_load_dwordx4 {vr(64+4*i,4)}, v2, {sr(SW2,4)}, s3 offen"); a("s_add_u32 s3, s3, 131072")
        if i % 5 == 4:
            for x in cbar(): a(x)
    for i in range(7):
        a(f"buffer_load_dwordx4 {vr(124+4*i,4)}, v2, {sr(SXN,4)}, s13 offen"); a("s_add_u32 s13, s13, 131072")
        if i == 3:
            for x in cbar(): a(x)
    a("s_endpgm")
    a.label(L("fidle"))
    a("s_waitcnt lgkmcnt(0)")
    for _ in range(12 if b11 else 11): a("s_barrier")
    get_nonce(12)
    a(f"s_branch {L('pa_r')}")
    a.label(L("help"))
    HW = 28; SXH = 20; SD = 24
    a(f"""
    s_setprio {hprio}
    s_sub_u32 s{HW}, s{W}, 4
    s_memrealtime s[40:41]
    s_load_dwordx2 s[44:45], s[0:1], 16
    s_load_dwordx4 s[48:51], s[0:1], 32
    s_load_dwordx2 s[46:47], s[0:1], 48
    v_and_b32 v1, 7, v0
    v_lshrrev_b32 v2, 3, v0
    s_lshl_b32 s3, s{HW}, 3
    v_add_u32 v2, s3, v2                 ; g 0..31
    s_lshl_b32 s29, s{TB}, 7
    s_lshl_b32 s3, s{CG}, 3
    s_add_u32 s29, s29, s3
    v_add_u32 v3, s29, v1                ; token
    v_mul_u32_u24 v4, 1280, v3
    v_lshl_add_u32 v4, v2, 4, v4
    s_cmp_lt_u32 s{HW}, 2
    s_mov_b32 s30, 0x7f000000
    s_cselect_b32 s30, 0, s30
    v_add_u32 v5, s30, v4
    v_mov_b32 v6, 0
    s_waitcnt lgkmcnt(0)
    """)
    srd(a, SXH, 4, 2048 * 1280)
    srd(a, SD, 92, 256)
    ws_srd()
    a(f"""
    buffer_load_dwordx4 v[8:11], v4, {sr(SXH,4)}, 0 offen
    buffer_load_dwordx4 v[12:15], v4, {sr(SXH,4)}, 0 offen offset:512
    buffer_load_dwordx4 v[16:19], v5, {sr(SXH,4)}, 0 offen offset:1024
    """)
    def pf_touch(lo, nbytes, dst):
        nl = nbytes // 128
        per = (nl + 255) // 256
        pw = (per + 3) // 4
        srd(a, 52, lo, nbytes)
        a(f"""
        s_mul_i32 s3, s2, {4*pw}
        s_mul_i32 s31, s{HW}, {pw}
        s_add_u32 s3, s3, s31
        s_lshl_b32 s3, s3, 7
        s_mov_b64 exec, {(1 << pw) - 1}
        buffer_load_dword v{dst}, v58, s[52:55], s3 offen
        s_mov_b64 exec, -1
        """)
    a("v_lshlrev_b32 v58, 7, v0")
    if pfc:
        a(f"""
        s_cmp_lg_u32 s{HW}, 1
        s_cbranch_scc1 {L('npc')}
        s_getpc_b64 s[52:53]
        """)
        a.label(L("pc0"))
        a(f"""
        s_sub_u32 s52, s52, {L('pc0')}-{name}
        s_subb_u32 s53, s53, 0
        s_and_b32 s53, s53, 0xffff
        s_mov_b32 s54, {L('end')}-{name}
        s_mov_b32 s55, 0x00020000
        s_lshr_b32 s3, s2, 3
        s_lshl_b32 s3, s3, 10
        v_lshlrev_b32 v59, 4, v0
        buffer_load_dwordx4 v[60:63], v59, s[52:55], s3 offen
        """)
        a.label(L("npc"))
    if pf >= 1: pf_touch(6, 640 * 3840, 59)
    if pf == 2:
        pf_touch(48, 640 * 3072, 60); pf_touch(50, 640 * 3072, 61); pf_touch(46, 1536 * 1280, 62); pf_touch(44, 640 * 1280, 63)
    a(f"""
    s_or_b32 s3, s2, s{HW}
    s_cmp_lg_u32 s3, 0
    s_cbranch_scc1 {L('nononce')}
    s_or_b32 s40, s40, 1
    v_mov_b32 v7, s40
    s_mov_b64 exec, 1
    buffer_store_dword v7, v6, {sr(SD,4)}, 0 offen sc1
    s_mov_b64 exec, -1
    """)
    a.label(L("nononce"))
    a(f"""
    v_lshrrev_b32 v7, 5, v3
    v_mul_u32_u24 v7, 40960, v7
    v_lshl_add_u32 v7, v2, 9, v7
    v_and_b32 v20, 31, v3
    v_lshl_add_u32 v7, v20, 4, v7
    v_add_u32 v21, 16384, v7
    v_add_u32 v22, 32768, v7
    v_add_u32 v22, s30, v22
    s_lshl_b32 s3, s{HW}, 6
    v_lshl_add_u32 v23, v1, 3, s3
    v_add_u32 v23, {LNP}, v23
    v_lshlrev_b32 v24, 3, v1
    v_add_u32 v24, {LNP}, v24
    v_mov_b32 v26, 0
    v_mov_b32 v27, 0
    s_barrier
    s_waitcnt vmcnt(0)
    """)
    for i in range(12):
        a(f"""
        v_lshlrev_b32 v{32+2*i}, 16, v{8+i}
        v_and_b32 v{33+2*i}, 0xffff0000, v{8+i}
        v_add_f32 v26, v26, v{32+2*i}
        v_fmac_f32 v27, v{32+2*i}, v{32+2*i}
        v_add_f32 v26, v26, v{33+2*i}
        v_fmac_f32 v27, v{33+2*i}, v{33+2*i}
        """)
    for r in (26, 27):
        a(f"""
        v_add_f32_dpp v{r}, v{r}, v{r} row_ror:8 row_mask:0xf bank_mask:0xf
        v_mov_b32 v28, v{r}
        v_permlane16_swap_b32 v{r}, v28
        v_add_f32 v{r}, v{r}, v28
        v_mov_b32 v28, v{r}
        v_permlane32_swap_b32 v{r}, v28
        v_add_f32 v{r}, v{r}, v28
        """)
    a(f"""
    ds_write_b64 v23, v[26:27]
    s_waitcnt lgkmcnt(0)
    s_barrier
    ds_read_b64 v[26:27], v24
    ds_read_b64 v[28:29], v24 offset:64
    ds_read_b64 v[30:31], v24 offset:128
    ds_read_b64 v[56:57], v24 offset:192
    buffer_load_dword v25, v6, {sr(SD,4)}, 0 offen sc1
    s_waitcnt lgkmcnt(0)
    v_add_f32 v26, v26, v28
    v_add_f32 v27, v27, v29
    v_add_f32 v30, v30, v56
    v_add_f32 v31, v31, v57
    v_add_f32 v26, v26, v30
    v_add_f32 v27, v27, v31
    v_mul_f32 v26, {f2u(1/640):#x}, v26          ; mean
    v_mul_f32 v27, {f2u(1/640):#x}, v27
    v_fma_f32 v27, -v26, v26, v27                ; var
    v_max_f32 v27, 0, v27
    v_cvt_pk_bf16_f32 v28, v26, v27
    v_lshlrev_b32 v26, 16, v28
    v_and_b32 v27, 0xffff0000, v28
    v_add_f32 v27, {f2u(1e-5):#x}, v27
    v_cvt_pk_bf16_f32 v27, v27, v27
    v_and_b32 v27, 0xffff0000, v27
    v_sqrt_f32 v27, v27
    v_cvt_pk_bf16_f32 v27, v27, v27
    v_and_b32 v27, 0xffff0000, v27
    v_rcp_f32 v27, v27                           ; rstd
    s_mov_b32 s31, {XN_OFF}
    v_mul_f32 v30, {f2u(1.4426950408889634 if sfold else 1.0):#x}, v27
    v_mul_f32 v28, v26, v30
    """)
    for q in range(3):
        for i in range(4 * q, 4 * q + 4):
            a(f"""
            v_fma_f32 v{32+2*i}, v{32+2*i}, v30, -v28
            v_fma_f32 v{33+2*i}, v{33+2*i}, v30, -v28
            v_cvt_pk_bf16_f32 v{8+i}, v{32+2*i}, v{33+2*i}
            """)
        a(f"buffer_store_dwordx4 {vr(8+4*q,4)}, v{(7,21,22)[q]}, {sr(SO,4)}, s31 offen sc1")
    a(f"""
    s_cmp_lg_u32 s{HW}, 0
    s_cbranch_scc1 {L('nostat')}
    v_lshlrev_b32 v29, 3, v3
    s_mov_b32 s31, {STG_OFF}
    s_mov_b64 exec, 0xff
    buffer_store_dwordx2 v[26:27], v29, {sr(SO,4)}, s31 offen sc1
    s_mov_b64 exec, -1
    """)
    a.label(L("nostat"))
    if pf == 3:
        pf_touch(48, 640 * 3072, 60); pf_touch(50, 640 * 3072, 61); pf_touch(46, 1536 * 1280, 62); pf_touch(44, 640 * 1280, 63)
    a(f"""
    s_barrier
    s_barrier
    s_mov_b32 s13, 0x100000
    """)
    a.label(L("nn_l"))
    a(f"""
    s_waitcnt vmcnt(0)
    v_readfirstlane_b32 s{NONCE}, v25
    s_sub_u32 s13, s13, 1
    s_cmp_eq_u32 s13, 0
    s_cbranch_scc1 {L('nn_r')}
    s_cmp_lg_u32 s{NONCE}, 0
    s_cbranch_scc1 {L('nn_r')}
    buffer_load_dword v25, v6, {sr(SD,4)}, 0 offen sc1
    s_branch {L('nn_l')}
    """)
    a.label(L("nn_r"))
    a(f"""
    s_lshl_b32 s31, s{TB}, 8
    s_add_u32 s31, s31, {FA_OFF}
    s_lshl_b32 s3, s{CG}, 4
    s_add_u32 s33, s3, s31
    """)
    signal(84, 4, 33, 28)
    a(f"""
    v_mov_b32 v26, {SYNC+60}
    ds_write_b32 v26, v25
    v_and_b32 v27, 15, v0
    v_lshlrev_b32 v27, 4, v27
    s_mov_b32 s31, {FA_OFF}
    v_mov_b32 v28, s{TB}
    v_mov_b32 v29, s{CG}
    v_cmp_gt_u32 vcc, 32, v0
    v_cndmask_b32 v28, v29, v28, vcc
    v_lshl_add_u32 v27, v28, 8, v27
    s_waitcnt lgkmcnt(0)
    s_barrier
    s_barrier
    s_barrier
    s_cmp_lg_u32 s{HW}, 0
    s_cbranch_scc1 {L('hrest')}
    buffer_load_dword v28, v27, {sr(SO,4)}, s31 offen sc1
    s_barrier
    s_mov_b32 s13, 0x100000
    """)
    a.label(L("ha_l"))
    a(f"""
    s_waitcnt vmcnt(0)
    v_cmp_ne_u32 vcc, s{NONCE}, v28
    s_sub_u32 s13, s13, 1
    s_cmp_eq_u32 s13, 0
    s_cbranch_scc1 {L('ha_r')}
    s_cbranch_vccz {L('ha_r')}
    buffer_load_dword v28, v27, {sr(SO,4)}, s31 offen sc1
    s_branch {L('ha_l')}
    """)
    a.label(L("ha_r"))
    a(f"""
    s_lshl_b32 s3, s{TB}, 10
    s_add_u32 s3, s3, {STG_OFF}
    v_lshlrev_b32 v30, 4, v0
    buffer_load_dwordx4 v[32:35], v30, {sr(SO,4)}, s3 offen sc1
    v_lshlrev_b32 v29, 3, v0
    v_add_u32 v29, {ST_M}, v29
    s_barrier
    s_barrier
    s_waitcnt vmcnt(0)
    ds_write2_b32 v29, v32, v34 offset0:0 offset1:1
    ds_write2_b32 v29, v33, v35 offset0:128 offset1:129
    s_waitcnt lgkmcnt(0)
    s_branch {L('h10')}
    """)
    a.label(L("hrest"))
    a("""
    s_barrier
    s_barrier
    s_barrier
    """)
    a.label(L("h10"))
    if pfh:
        srd(a, SXH, 46, 1536 * 1280); srd(a, SD, 44, 640 * 1280)
        a(f"""
        s_lshl_b32 s3, s2, 2
        s_add_u32 s3, s3, s{HW}
        s_lshl_b32 s3, s3, 10
        s_add_u32 s31, s3, 0x100000
        v_lshlrev_b32 v30, 4, v0
        """)
    a("s_barrier")
    if pfh:
        a(f"""
        buffer_load_dwordx4 v[144:147], v30, {sr(SXH,4)}, s3 offen
        buffer_load_dwordx4 v[148:151], v30, {sr(SXH,4)}, s31 offen
        buffer_load_dwordx4 v[152:155], v30, {sr(SD,4)}, s3 offen
        """)
    if b11: a("s_barrier")
    a(f"s_branch {L('att')}")
    a.label(L("mfma"))
    TW, FW = 28, 29
    XA = 2
    WA = 10
    SEL = 12
    CS = 48
    BUF = [16, 32, 128, 144]
    ACC = 64
    a(f"""
    s_setprio 2
    s_lshr_b32 s{TW}, s{W}, 1
    s_and_b32 s{FW}, s{W}, 1
    v_and_b32 v56, 31, v0
    v_lshrrev_b32 v57, 5, v0            ; h
    v_bfe_u32 v52, v0, 1, 3             ; f
    s_lshl_b32 s3, s{TW}, 13            ; tw*64*128
    v_lshl_add_u32 v53, v56, 7, s3
    """)
    for ks in range(4):
        a(f"""
        v_or_b32 v54, {2*ks}, v57
        v_xor_b32 v54, v54, v52
        v_lshl_add_u32 v{XA+ks}, v54, 4, v53
        """)
    a(f"""
    v_bfe_u32 v54, v0, 2, 2             ; r
    v_lshl_add_u32 v55, v57, 3, v54     ; 8h+r
    v_lshlrev_b32 v55, 8, v55
    s_lshl_b32 s35, s{FW}, 1
    s_or_b32 s35, s35, s{TW}
    v_xor_b32 v54, s35, v54
    v_lshl_add_u32 v55, v54, 6, v55
    v_bfe_u32 v54, v0, 4, 1
    v_lshl_add_u32 v55, v54, 5, v55
    v_and_b32 v53, 3, v0
    v_lshl_add_u32 v55, v53, 3, v55
    v_add_u32 v{WA}, 0x4000, v55
    v_xor_b32 v{WA+1}, 64, v{WA}
    v_bfe_u32 v53, v0, 2, 1
    v_cmp_eq_u32 vcc, v53, v54
    v_mov_b32 v53, 0x3f803f80
    v_cndmask_b32 v{SEL}, 0, v53, vcc
    v_mov_b32 v{SEL+1}, v{SEL}
    v_mov_b32 v{SEL+2}, v{SEL}
    v_mov_b32 v{SEL+3}, v{SEL}
    """)
    for i in range(4): a(f"v_mov_b32 v{CS+i}, 0")
    for i in range(4): a(f"v_mfma_f32_32x32x16_bf16 {vr(ACC+16*i,16)}, {vr(CS,4)}, {vr(CS,4)}, 0")
    a("s_waitcnt lgkmcnt(0)")
    ws_srd()
    a("s_mov_b32 s36, 0")
    a(f"""
    s_cmp_eq_u32 s{CG}, 15
    s_cbranch_scc1 {L('mpf')}
    """)

    def reads(buf, par, ks):
        b = BUF[buf]; o = par * 32768
        wo = o + ks * 4096
        return [
            f"ds_read_b64_tr_b16 {vr(b+8,2)}, v{WA} offset:{wo}",
            f"ds_read_b64_tr_b16 {vr(b+10,2)}, v{WA} offset:{wo+1024}",
            f"ds_read_b128 {vr(b,4)}, v{XA+ks} offset:{o}",
            f"ds_read_b128 {vr(b+4,4)}, v{XA+ks} offset:{o+4096}",
            f"ds_read_b64_tr_b16 {vr(b+12,2)}, v{WA+1} offset:{wo}",
            f"ds_read_b64_tr_b16 {vr(b+14,2)}, v{WA+1} offset:{wo+1024}",
        ]
    def mf(buf, fi, ti, vmode):
        b = BUF[buf]; acc = ACC + 16 * (fi * 2 + ti)
        wv = vr(b + 8 + 4 * fi, 4); xv = vr(b + 4 * ti, 4)
        A, B = (xv, wv) if vmode else (wv, xv)
        return f"v_mfma_f32_32x32x16_bf16 {vr(acc,16)}, {A}, {B}, {vr(acc,16)}"
    def csm(cur):
        return f"v_mfma_f32_16x16x32_bf16 {vr(CS,4)}, {vr(SEL,4)}, {vr(BUF[cur]+8,4)}, {vr(CS,4)}"
    def kstep(cur, rd, vmode, pre=(), wait=6):
        a(f"s_waitcnt lgkmcnt({wait})")
        a(mf(cur, 0, 0, vmode))
        for x in pre: a(x)
        [a(x) for x in rd[0:2]]
        a(mf(cur, 0, 1, vmode)); [a(x) for x in rd[2:4]]
        a(mf(cur, 1, 0, vmode)); [a(x) for x in rd[4:6]]
        a(mf(cur, 1, 1, vmode))
        a(csm(cur))
    def mainloop(vmode, tag):
        a("s_mov_b32 s30, 10")
        a(".p2align 6")
        a.label(L("loop" + tag))
        if p1st:
            for k in range(1, 11):
                a(f"s_cmp_lg_u32 s30, {11-k}"); a(f"s_cbranch_scc1 {L('ps'+tag+str(k))}"); stamp(a, k, p1st); a.label(L("ps" + tag + str(k)))
        tg = [f"v_add_u32 v{r}, s37, v{r}" for r in list(range(XA, XA + 4)) + [WA, WA + 1]]
        kstep(0, reads(2, 0, 2), vmode, pre=["s_add_u32 s38, s36, 32768", "s_cmp_eq_u32 s38, 98304", "s_cselect_b32 s38, 0, s38", "s_sub_u32 s37, s38, s36", "s_mov_b32 s36, s38"])
        kstep(1, reads(3, 0, 3), vmode)
        a(f"s_cmp_eq_u32 s30, 1")
        a(f"s_cbranch_scc1 {L('fin'+tag)}")
        kstep(2, reads(0, 0, 0), vmode, pre=["s_barrier"] + tg, wait=0)
        kstep(3, reads(1, 0, 1), vmode)
        a(f"""
        s_sub_u32 s30, s30, 1
        s_branch {L('loop'+tag)}
        """)
        a.label(L("fin" + tag))
        kstep(2, [], vmode)
        a("s_waitcnt lgkmcnt(0)")
        a(csm(3))
        for fi in range(2):
            for ti in range(2): a(mf(3, fi, ti, vmode))
        a(f"""
        s_lshl_b32 s3, s35, 7
        v_lshl_add_u32 v55, v56, 2, s3
        v_add_u32 v55, {ST_CS}, v55
        ds_write_b32 v55, v{CS}
        s_waitcnt lgkmcnt(0)
        s_barrier
        """)
    stamp(a, 1, st)
    a("s_barrier")
    stamp(a, 2, st)
    for x in reads(0, 0, 0) + reads(1, 0, 1): a(x)
    a(f"""
    s_cmp_ge_u32 s{CG}, 10
    s_cbranch_scc1 {L('vpath')}
    """)
    a(f"""
    s_cmp_lt_u32 s{CG}, 5
    s_cselect_b32 s31, {f2u(QSCALE):#x}, 1.0
    s_cselect_b32 s32, 0, 5
    s_cselect_b32 s33, {QK_OFF}, {QK_OFF+QK_TYPE}
    s_sub_u32 s32, s{CG}, s32           ; cgt
    s_lshl_b32 s32, s32, 4
    s_lshl_b32 s3, s35, 2
    s_add_u32 s32, s32, s3
    s_lshl_b32 s32, s32, 15
    s_add_u32 s33, s33, s32
    s_lshl_b32 s3, s{TB}, 2
    s_lshl_b32 s32, s{TW}, 1
    s_add_u32 s3, s3, s32
    s_lshl_b32 s3, s3, 9                ; toktile*512
    s_add_u32 s33, s33, s3
    v_lshlrev_b32 v58, 4, v0
    s_lshl_b32 s3, s{TW}, 8
    v_lshl_add_u32 v59, v56, 2, s3
    v_add_u32 v59, {ST_M}, v59
    s_lshl_b32 s3, s35, 7
    v_lshl_add_u32 v60, v57, 4, s3
    v_add_u32 v60, {ST_CS}, v60
    v_xor_b32 v61, 128, v60
    """)
    mainloop(False, "qk")
    stamp(a, 3, st)
    a(f"""
    ds_read_b32 v2, v59
    ds_read_b32 v4, v59 offset:512
    ds_read_b32 v6, v59 offset:128
    ds_read_b32 v8, v59 offset:640
    """)
    for j in range(4): a(f"ds_read_b128 {vr(16+4*j,4)}, v60 offset:{32*j}")
    for j in range(4): a(f"ds_read_b128 {vr(32+4*j,4)}, v61 offset:{32*j}")
    a(f"""
    s_waitcnt lgkmcnt(4)
    v_mul_f32 v4, s31, v4
    v_mul_f32 v8, s31, v8
    """)
    for fi in range(2):
        if fi == 1: a("s_waitcnt lgkmcnt(0)")
        a(f"s_xor_b32 s34, s33, {fi*4*32768}")
        cs = 16 + 16 * fi
        for j in range(4):
            dst = ACC + 32 * fi + 4 * j
            for ti in range(2):
                acc = ACC + 16 * (fi * 2 + ti)
                m = 2 + 4 * ti; rs = 4 + 4 * ti
                for p in range(2):
                    r = acc + 4 * j + 2 * p
                    a(f"v_pk_fma_f32 {vr(r,2)}, {vr(cs+4*j+2*p,2)}, {vr(m,2)}, {vr(r,2)} op_sel_hi:[1,0,1] neg_lo:[0,1,0] neg_hi:[0,1,0]")
                for p in range(2):
                    r = acc + 4 * j + 2 * p
                    a(f"v_pk_mul_f32 {vr(r,2)}, {vr(r,2)}, {vr(rs,2)} op_sel_hi:[1,0]")
                for p in range(2):
                    r = acc + 4 * j + 2 * p
                    a(f"v_cvt_pk_bf16_f32 v{dst+2*ti+p}, v{r}, v{r+1}")
            a(f"buffer_store_dwordx4 {vr(dst,4)}, v58, {sr(SO,4)}, s34 offen{qsc}")
            if j < 3: a(f"s_add_u32 s34, s34, 32768")
    a(f"s_branch {L('pub')}")
    a.label(L("vpath"))
    a(f"""
    s_sub_u32 s32, s{CG}, 10
    s_lshl_b32 s32, s32, 2
    s_add_u32 s32, s32, s35
    s_lshl_b32 s32, s32, 9
    s_lshl_b32 s33, s{TB}, 2
    s_lshl_b32 s3, s{TW}, 1
    s_add_u32 s33, s33, s3              ; toktile
    s_mul_i32 s33, s33, 40960
    s_add_u32 s33, s33, {VT_OFF}
    v_mul_u32_u24 v58, 10240, v57
    v_lshl_add_u32 v58, v56, 4, v58
    s_lshl_b32 s3, s{TW}, 8
    v_lshl_add_u32 v59, v57, 4, s3
    v_add_u32 v59, {ST_M}, v59
    """)
    mainloop(True, "v")
    stamp(a, 3, st)

    MR = [16, 128]; RR = [32, 144]
    a(f"""
    v_xor_b32 v55, 128, v55
    ds_read_b32 v4, v55
    v_mov_b32 v2, v{CS}
    """)
    for ti in range(2):
        for j in range(4): a(f"ds_read_b128 {vr(MR[ti]+4*j,4)}, v59 offset:{128*ti+32*j}")
        for j in range(4): a(f"ds_read_b128 {vr(RR[ti]+4*j,4)}, v59 offset:{512+128*ti+32*j}")
    for ti in range(2):
        a(f"s_waitcnt lgkmcnt({8 if ti == 0 else 0})")
        for fi in range(2):
            acc = ACC + 16 * (fi * 2 + ti)
            a(f"""
            s_xor_b32 s34, s32, {fi*512}
            s_add_u32 s34, s34, s33
            s_add_u32 s34, s34, {ti*40960}
            """)
            for kb in range(2):
                for p in range(4):
                    r = acc + 8 * kb + 2 * p
                    a(f"v_pk_fma_f32 {vr(r,2)}, {vr(MR[ti]+8*kb+2*p,2)}, {vr(2+2*fi,2)}, {vr(r,2)} op_sel_hi:[1,0,1] neg_lo:[0,1,0] neg_hi:[0,1,0]")
                for p in range(4):
                    r = acc + 8 * kb + 2 * p
                    a(f"v_pk_mul_f32 {vr(r,2)}, {vr(r,2)}, {vr(RR[ti]+8*kb+2*p,2)}")
                for p in range(4):
                    r = acc + 8 * kb + 2 * p
                    a(f"v_cvt_pk_bf16_f32 v{acc+8*kb+p}, v{r}, v{r+1}")
                a(f"buffer_store_dwordx4 {vr(acc+8*kb,4)}, v58, {sr(SO,4)}, s34 offen{qsc}")
                if kb == 0: a("s_add_u32 s34, s34, 20480")
    a.label(L("pub"))
    if b11: a("s_barrier")
    stamp(a, 4, st)
    get_nonce(2)
    a(f"""
    s_lshl_b32 s3, s{CG}, 4
    s_add_u32 s3, s3, s{TB}
    s_lshl_b32 s3, s3, 4
    s_add_u32 s39, s3, {FQ_OFF}
    s_waitcnt vmcnt(0)
    """)
    signal(80, 4, 39, 2)
    a(f"s_branch {L('att')}")
    a.label(L("mpf"))
    if pfall:
        a(f"""
        s_load_dwordx4 s[40:43], s[0:1], 32
        s_load_dwordx2 s[44:45], s[0:1], 48
        s_load_dwordx2 s[46:47], s[0:1], 16
        s_lshl_b32 s3, s{TB}, 2
        s_add_u32 s3, s3, s{W}
        s_lshl_b32 s31, s3, 10
        v_lshlrev_b32 v2, 4, v0
        s_waitcnt lgkmcnt(0)
        """)
        srd(a, 20, 40, 640 * 3072); srd(a, 24, 42, 640 * 3072); srd(a, 48, 44, 1536 * 1280); srd(a, 52, 46, 640 * 1280)
        for _ in range(pfd): a("s_barrier")
        def ploop(tag, sa, sb):
            a(f"s_add_u32 s3, s31, {0 if pf0 else (15-pfn)*131072}"); a(f"s_mov_b32 s30, {pfn}")
            a.label(L(tag))
            for i in range(2):
                a(f"buffer_load_dwordx4 {vr(64+8*i,4)}, v2, {sr(sa,4)}, s3 offen")
                a(f"buffer_load_dwordx4 {vr(68+8*i,4)}, v2, {sr(sb,4)}, s3 offen")
                a("s_add_u32 s3, s3, 65536")
            a(f"""
            s_sub_u32 s30, s30, 1
            s_cmp_lg_u32 s30, 0
            s_cbranch_scc1 {L(tag)}
            """)
        ploop("pl1", 20, 24)
        for _ in range(11 - pfd): a("s_barrier")
        if b11: a("s_barrier")
        a("s_waitcnt vmcnt(0)")
        get_nonce(2)
        a(f"s_branch {L('att')}")
    srd(a, 20, 6, 640 * 3840 if pfw else 0)
    a(f"""
    s_lshl_b32 s3, s{TB}, 2
    s_add_u32 s3, s3, s{W}
    s_lshl_b32 s3, s3, 10
    s_add_u32 s3, s3, {64*3840}
    v_lshlrev_b32 v2, 4, v0
    """)
    for i in range(34):
        a(f"buffer_load_dwordx4 {vr(64+4*(i%16),4)}, v2, s[20:23], s3 offen")
        a("s_add_u32 s3, s3, 65536")
        if i == 5:
            for _ in range(4): a("s_barrier")
        if i in (9, 13, 17, 21, 25, 29, 33): a("s_barrier")
    if b11: a("s_barrier")
    a("s_waitcnt vmcnt(0)")
    get_nonce(2)
    a.label(L("att"))
    a("s_setprio 2")
    stamp(a, 5, st)
    HEAD, QB = 10, 11
    KA, VA = 2, 3
    M = [4, 5]
    QM = [8, 16]; QT = [12, 20]
    KM = [24, 32]; KT = [28, 36]
    V = [40, 48]
    P = [56, 64]
    S = [72, 88]
    O = [104, 120]
    KD, VD, EP, SA, PA, PL, SG, SGA = 136, 137, 138, 139, 140, 141, 142, 143
    QG, KH, MODE, CNT = 24, 25, 26, 27
    a(f"""
    s_and_b32 s3, s2, 7
    s_lshl_b32 s3, s3, 2
    s_bfe_u32 s{HEAD}, s2, 0x20003
    s_add_u32 s{HEAD}, s{HEAD}, s3
    s_lshr_b32 s{QB}, s2, 5
    s_lshr_b32 s3, s{HEAD}, 1
    s_mul_i32 s3, s3, 5
    s_and_b32 s13, s{HEAD}, 1           ; odd
    s_mul_i32 s14, s13, 3
    s_add_u32 s20, s3, s14
    s_add_u32 s21, s20, 1
    s_add_u32 s22, s3, 2
    s_lshl_b32 s20, s20, 15
    s_lshl_b32 s21, s21, 15
    s_lshl_b32 s22, s22, 15
    s_and_b32 s{QG}, s{W}, 3
    s_lshr_b32 s{KH}, s{W}, 2
    s_cmp_eq_u32 s{QG}, 0
    s_cselect_b32 s32, s20, s21
    s_cmp_eq_u32 s{QG}, 2
    s_cselect_b32 s32, s22, s32
    s_lshl_b32 s3, s{KH}, 14
    s_add_u32 s32, s32, s3
    s_add_u32 s32, s32, {QK_OFF+QK_TYPE}
    s_lshl_b32 s3, s{KH}, 6
    s_add_u32 s3, s3, s{QG}
    s_mul_i32 s3, s3, 20480
    s_mul_i32 s33, s{HEAD}, 320
    s_add_u32 s33, s33, s3
    s_add_u32 s33, s33, {VT_OFF}
    s_lshl_b32 s34, s{KH}, 13
    s_lshl_b32 s3, s{QG}, 10
    s_add_u32 s34, s34, s3
    s_mul_i32 s35, s{QB}, {rot_kv*1024}
    s_and_b32 s35, s35, 0x3fff
    v_lshlrev_b32 v{KD}, 4, v0
    v_lshrrev_b32 v7, 5, v0             ; h
    v_mul_u32_u24 v{VD}, 10240, v7
    v_and_b32 v1, 31, v0
    v_lshl_add_u32 v{VD}, v1, 4, v{VD}
    s_lshl_b32 s28, s{QB}, 3
    s_lshl_b32 s3, s{QG}, 1
    s_add_u32 s28, s28, s3
    s_add_u32 s28, s28, s{KH}
    v_lshlrev_b32 v6, 3, v0
    """)
    nkv = [0]
    def kv_issue():
        t = f"kv{nkv[0]}"; nkv[0] += 1
        return [f"s_mul_i32 s36, s35, 80",
                f"s_add_u32 s36, s36, s33",
                f"s_add_u32 m0, s34, 3072",
                "s_mov_b32 exec_lo, 0x000fffff",
                "s_mov_b32 exec_hi, 0x000fffff",
                f"buffer_load_dwordx4 v{VD}, {sr(SO,4)}, s36 offen{ldsc} lds",
                "s_mov_b64 exec, -1",
                f"s_cmp_eq_u32 s{QG}, 3",
                f"s_cbranch_scc1 {L(t)}",
                "s_mov_b32 m0, s34",
                "s_add_u32 s36, s32, s35",
                f"buffer_load_dwordx4 v{KD}, {sr(SO,4)}, s36 offen{ldsc} lds",
                f"{L(t)}:",
                f"s_xor_b32 s34, s34, {KV_SLOT}",
                "s_add_u32 s35, s35, 1024",
                "s_and_b32 s35, s35, 0x3fff"]
    def fill_rows():
        t = S[0]
        a(f"""
        v_lshrrev_b32 v{t+4}, 4, v0
        v_lshlrev_b32 v{t+4}, 9, v{t+4}
        v_and_b32 v{t+5}, 15, v0
        v_min_u32 v{t+5}, 11, v{t+5}
        v_lshl_add_u32 v{t+4}, v{t+5}, 4, v{t+4}
        s_lshr_b32 s3, s{W}, 1
        s_lshl_b32 s3, s3, 13
        s_and_b32 s36, s{W}, 1
        s_lshl_b32 s36, s36, 11
        s_add_u32 s3, s3, s36
        v_add_u32 v{t+4}, s3, v{t+4}
        v_cmp_eq_u32 vcc, 0, v{t+5}
        v_mov_b32 v{t+6}, 0x3f803f80
        v_cndmask_b32 v{t}, 0, v{t+6}, vcc
        v_mov_b32 v{t+1}, v{t}
        v_mov_b32 v{t+2}, v{t}
        v_mov_b32 v{t+3}, v{t}
        ds_write_b128 v{t+4}, {vr(t,4)} offset:{3072+320}
        """)
    fill_rows()
    a(f"""
    s_lshl_b32 s3, s{KH}, 13
    v_add_u32 v{VA}, s3, v{KD}
    v_mov_b32 v{KT[0]+2}, 0x3f803f80
    v_mov_b32 v{KT[0]+3}, 0x3f80
    v_mov_b32 v{KT[1]+2}, 0x3f803f80
    v_mov_b32 v{KT[1]+3}, 0x3f80
    v_mov_b32 v{EP}, 0
    s_lshl_b32 s3, s{W}, 2
    s_add_u32 s3, s3, {SYNC}
    v_mov_b32 v{SA}, s3
    v_and_b32 v{PA}, 7, v0
    v_lshlrev_b32 v{PA}, 2, v{PA}
    v_add_u32 v{PA}, {SYNC}, v{PA}
    v_mov_b32 v{SG}, 32
    v_mov_b32 v{SGA}, {SYNC+52}
    s_mov_b32 s{MODE}, 0
    """)
    nsb = [0]
    def arrive():
        return [f"v_add_u32 v{EP}, 1, v{EP}", f"ds_write_b32 v{SA}, v{EP}", f"ds_read_b32 v{PL}, v{PA}"]
    spins = []
    def check():
        t = f"sb{nsb[0]}"; nsb[0] += 1
        spins.append(t)
        return ["s_waitcnt lgkmcnt(0)", f"v_cmp_lt_u32 vcc, v{PL}, v{EP}", f"s_cbranch_vccnz {L(t+'s')}", f"{L(t+'r')}:"]
    def swbar():
        for x in arrive() + check(): a(x)
    a(f"""
    s_cmp_lg_u32 s{W}, {99 if nopoll else 0}
    s_cbranch_scc1 {L('pq_r')}
    """)
    a(f"""
    s_lshr_b32 s3, s{HEAD}, 1
    s_mul_i32 s3, s3, 40
    s_lshr_b32 s29, s3, 7
    s_add_u32 s30, s3, 39
    s_lshr_b32 s30, s30, 7
    s_sub_u32 s30, s30, s29              ; 0 or 1
    s_lshl_b32 s30, s30, 8
    s_lshl_b32 s29, s29, 8
    s_add_u32 s29, s29, {FQ_OFF}
    v_and_b32 v{S[1]}, 15, v0
    v_lshlrev_b32 v{S[1]}, 4, v{S[1]}
    v_bfe_u32 v{S[1]+1}, v0, 4, 1
    v_mul_u32_u24 v{S[1]+1}, s30, v{S[1]+1}
    v_add_u32 v{S[1]}, v{S[1]}, v{S[1]+1}
    v_mul_u32_u24 v{S[1]+1}, 1280, v7
    v_add_u32 v{S[1]+1}, v{S[1]}, v{S[1]+1}        ; + type k / v
    s_mov_b32 s31, 0x100000
    """)
    a.label(L("pq_l"))
    a(f"""
    buffer_load_dword v{S[1]+4}, v{S[1]+1}, {sr(SO,4)}, s29 offen offset:1280 sc1
    buffer_load_dword v{S[1]+5}, v{S[1]}, {sr(SO,4)}, s29 offen sc1
    s_sub_u32 s31, s31, 1
    s_cmp_eq_u32 s31, 0
    s_cbranch_scc1 {L('pq_r')}
    s_waitcnt vmcnt(0)
    v_xor_b32 v{S[1]+4}, s{NONCE}, v{S[1]+4}
    v_xor_b32 v{S[1]+5}, s{NONCE}, v{S[1]+5}
    v_or_b32 v{S[1]+4}, v{S[1]+4}, v{S[1]+5}
    v_cmp_ne_u32 vcc, 0, v{S[1]+4}
    s_cbranch_vccz {L('pq_r')}
    s_sleep {qslp}
    s_branch {L('pq_l')}
    """)
    a.label(L("pq_r"))
    swbar()
    a(f"ds_write_b32 v{SGA}, v{SG} offset:12")
    stamp(a, 6, st)
    for x in kv_issue(): a(x)
    for i in range(2):
        a(f"""
        s_xor_b32 s3, s28, {i}
        s_and_b32 s29, s3, 1
        s_lshl_b32 s29, s29, 3
        s_lshr_b32 s3, s3, 1
        s_lshl_b32 s3, s3, 10
        s_add_u32 s3, s3, s29
        s_add_u32 s29, s3, s20
        s_add_u32 s30, s3, s21
        s_add_u32 s31, s3, s22
        buffer_load_dwordx2 {vr(QM[i],2)}, v{KD}, {sr(SO,4)}, s29 offen{ldsc}
        buffer_load_dwordx2 {vr(QM[i]+2,2)}, v{KD}, {sr(SO,4)}, s30 offen{ldsc}
        buffer_load_dwordx2 {vr(QT[i],2)}, v{KD}, {sr(SO,4)}, s31 offen{ldsc}
        """)
    def rdK(b, t):
        return [f"ds_read2_b64 {vr(KM[b],4)}, v{VA} offset0:{t} offset1:{128+t}",
                f"ds_read_b64 {vr(KT[b],2)}, v{VA} offset:{2048+8*t}"]
    def rdV(b, t):
        return [f"ds_read_b128 {vr(V[b],4)}, v{VA} offset:{3072+t*2048}",
                f"ds_read_b128 {vr(V[b]+4,4)}, v{VA} offset:{3072+t*2048+1024}"]
    def qk(kb, q):
        if tfirst:
            return [f"v_mfma_f32_32x32x16_bf16 {vr(S[q],16)}, {vr(KT[kb],4)}, {vr(QT[q],4)}, 0",
                    f"v_mfma_f32_32x32x16_bf16 {vr(S[q],16)}, {vr(KM[kb],4)}, {vr(QM[q],4)}, {vr(S[q],16)}"]
        return [f"v_mfma_f32_32x32x16_bf16 {vr(S[q],16)}, {vr(KM[kb],4)}, {vr(QM[q],4)}, 0",
                f"v_mfma_f32_32x32x16_bf16 {vr(S[q],16)}, {vr(KT[kb],4)}, {vr(QT[q],4)}, {vr(S[q],16)}"]
    def pv(vb, q):
        return [f"v_mfma_f32_32x32x16_bf16 {vr(O[q],16)}, {vr(V[vb],4)}, {vr(P[q],4)}, {vr(O[q],16)}",
                f"v_mfma_f32_32x32x16_bf16 {vr(O[q],16)}, {vr(V[vb]+4,4)}, {vr(P[q]+4,4)}, {vr(O[q],16)}"]
    def rowmax(q, dst, init):
        s = S[q]
        if init:
            a(f"v_max3_f32 v{dst}, v{s}, v{s+1}, v{s+2}"); rest = list(range(3, 16))
        else:
            rest = list(range(16))
        while len(rest) >= 2:
            a(f"v_max3_f32 v{dst}, v{dst}, v{s+rest[0]}, v{s+rest[1]}"); rest = rest[2:]
        if rest: a(f"v_max_f32 v{dst}, v{dst}, v{s+rest[0]}")
    def set_shift():
        a("v_cmp_eq_u32 vcc, 0, v7")
        for i in range(2):
            a(f"""
            v_mov_b32 v1, v{M[i]}
            v_permlane32_swap_b32 v{M[i]}, v1
            v_max_f32 v{M[i]}, v{M[i]}, v1
            v_sub_f32 v1, 0, v{M[i]}
            v_and_b32 v6, 0xffff0000, v1
            v_sub_f32 v1, v1, v6
            v_and_b32 v{P[0]}, 0xffff0000, v1
            v_sub_f32 v1, v1, v{P[0]}
            v_lshrrev_b32 v6, 16, v6
            v_or_b32 v6, v6, v{P[0]}
            v_lshrrev_b32 v1, 16, v1
            v_cndmask_b32 v{QT[i]+2}, 0, v6, vcc
            v_cndmask_b32 v{QT[i]+3}, 0, v1, vcc
            """)
    a("s_setprio 2")
    a("s_waitcnt vmcnt(0) lgkmcnt(0)")
    swbar()
    a(f"v_mov_b32 v1, 33"); a(f"ds_write_b32 v{SGA}, v1 offset:12")
    stamp(a, 7, st)
    for x in rdK(0, 0): a(x)
    for x in kv_issue(): a(x)
    a("v_cmp_eq_u32 vcc, s13, v7")
    for i in range(2):
        a(f"""
        v_cndmask_b32 v{QT[i]}, 0, v{QT[i]}, vcc
        v_cndmask_b32 v{QT[i]+1}, 0, v{QT[i]+1}, vcc
        v_mov_b32 v{QT[i]+2}, 0
        v_mov_b32 v{QT[i]+3}, 0
        """)
    a("s_waitcnt lgkmcnt(0)")
    for x in qk(0, 0) + qk(0, 1): a(x)
    def zero_state():
        for i in range(16):
            a(f"v_mov_b32 v{O[0]+i}, 0"); a(f"v_mov_b32 v{O[1]+i}, 0")
    zero_state()
    rowmax(0, M[0], True); rowmax(1, M[1], True)
    set_shift()
    a.label(L("restart"))
    for x in rdK(1, 1) + rdV(0, 0): a(x)
    for x in qk(0, 0): a(x)
    for i in range(8):
        a(f"v_mov_b32 v{P[1]+i}, 0"); a(f"v_mov_b32 v{V[1]+i}, 0")
    a(f"s_mov_b32 s{CNT}, 16")
    def phase(q, mf, extra=None, pre=None):
        extra = extra or {}
        for g in range(4):
            if pre and g in pre:
                for x in pre[g]: a(x)
            a(mf[g])
            for x in extra.get(g, []): a(x)
            for i in range(4): a(f"v_exp_f32 v{S[q]+4*g+i}, v{S[q]+4*g+i}")
            for i in range(2): a(f"v_cvt_pk_bf16_f32 v{P[q]+2*g+i}, v{S[q]+4*g+2*i}, v{S[q]+4*g+2*i+1}")
    a(".p2align 6")
    a.label(L("loop"))
    if epst:
        for k in range(1, 16):
            a(f"s_cmp_lg_u32 s{CNT}, {17-k}"); a(f"s_cbranch_scc1 {L('es'+str(k))}"); stamp(a, k, epst); a.label(L("es" + str(k)))
    pres = [{}, {0: ["s_waitcnt lgkmcnt(0)"]}]
    exs = [{}, {0: rdV(1, 1)}]
    if lowat: pres[lowat[0]].setdefault(lowat[1], []).insert(0, "s_setprio 1")
    phase(0, qk(0, 1) + pv(1, 1), pre=pres[0], extra=exs[0])
    phase(1, qk(1, 0) + pv(0, 0), pre=pres[1], extra=exs[1])
    skipkv = [f"s_cmp_le_u32 s{CNT}, 2", f"s_cbranch_scc1 {L('nokv')}"] + kv_issue() + [f"{L('nokv')}:"]
    phase(0, qk(1, 1) + pv(0, 1),
          pre={0: ["s_waitcnt vmcnt(0) lgkmcnt(0)", "s_barrier", "s_setprio 2", f"v_xor_b32 v{VA}, {KV_SLOT}, v{VA}"]},
          extra={0: rdK(0, 0), 1: skipkv})
    phase(1, qk(0, 0) + pv(1, 0), pre={0: ["s_waitcnt lgkmcnt(0)"]}, extra={0: rdK(1, 1), 1: rdV(0, 0)})
    a(f"""
    s_sub_u32 s{CNT}, s{CNT}, 1
    s_cmp_lg_u32 s{CNT}, 0
    s_cbranch_scc1 {L('loop')}
    """)
    for x in pv(1, 1): a(x)
    stamp(a, 8, st)
    a(f"""
    s_lshl_b32 s3, s{W}, 12
    v_add_u32 v6, s3, v{KD}
    v_mov_b32 v1, 0x5d800000
    s_lshl_b32 s3, s28, 5
    s_add_u32 s3, s3, s{HEAD}
    s_lshl_b32 s29, s3, 10
    s_add_u32 s29, s29, {OM_OFF}
    s_lshl_b32 s37, s3, 8
    s_add_u32 s37, s37, {OT_OFF}
    s_lshl_b32 s38, s{QB}, 5
    s_add_u32 s38, s38, s{HEAD}
    s_lshl_b32 s38, s38, 4
    s_add_u32 s38, s38, {OFL_OFF}
    s_waitcnt lgkmcnt(0)
    v_cmp_nle_f32 vcc, v{O[0]+8}, v1
    v_cmp_nle_f32 s[30:31], v{O[1]+8}, v1
    ds_write_b128 v6, {vr(O[1],4)} offset:{EX_OFF}
    ds_write_b128 v6, {vr(O[1]+4,4)} offset:{EX_OFF+1024}
    ds_write_b128 v6, {vr(O[1]+8,4)} offset:{EX_OFF+2048}
    ds_write_b32 v6, v{M[1]} offset:{EX_OFF+3072}
    s_or_b32 s30, s31, vcc_hi
    v_mov_b32 v1, {SYNC+48}
    s_cmp_eq_u32 s30, 0
    s_cbranch_scc1 {L('noflag')}
    v_mov_b32 v{P[0]}, 1
    ds_write_b32 v1, v{P[0]}
    """)
    a.label(L("noflag"))
    swbar()
    a(f"""
    ds_read_b32 v1, v1
    v_xor_b32 v6, 0x4000, v6
    ds_read_b32 v{S[0]+12}, v6 offset:{EX_OFF+3072}
    ds_read_b128 {vr(S[0]+8,4)}, v6 offset:{EX_OFF+2048}
    ds_read_b128 {vr(S[0],4)}, v6 offset:{EX_OFF}
    ds_read_b128 {vr(S[0]+4,4)}, v6 offset:{EX_OFF+1024}
    s_waitcnt lgkmcnt(3)
    v_readfirstlane_b32 s30, v1
    v_max_f32 v1, v{M[0]}, v{S[0]+12}
    v_sub_f32 v{P[0]}, v{M[0]}, v1
    v_sub_f32 v{P[0]+1}, v{S[0]+12}, v1
    s_andn2_b32 s30, s30, s{MODE}
    s_cmp_lg_u32 s30, 0
    s_cbranch_scc1 {L('slow')}
    v_exp_f32 v{P[0]}, v{P[0]}
    v_exp_f32 v{P[0]+1}, v{P[0]+1}
    s_waitcnt lgkmcnt(2)
    v_mul_f32 v1, v{O[0]+8}, v{P[0]}
    v_fmac_f32 v1, v{S[0]+8}, v{P[0]+1}
    v_mov_b32 v6, v1
    v_permlane32_swap_b32 v1, v6
    v_rcp_f32 v6, v6
    v_lshlrev_b32 v1, 3, v0
    v_mul_f32 v{P[0]}, v{P[0]}, v6
    v_mul_f32 v{P[0]+1}, v{P[0]+1}, v6
    s_waitcnt lgkmcnt(0)
    """)
    for i in range(12): a(f"v_mul_f32 v{O[0]+i}, v{O[0]+i}, v{P[0]}")
    for i in range(12): a(f"v_fmac_f32 v{O[0]+i}, v{S[0]+i}, v{P[0]+1}")
    for i in range(6):
        a(f"v_cvt_pk_bf16_f32 v{S[1]+i}, v{O[0]+2*i}, v{O[0]+2*i+1}")
    a(f"""
    buffer_store_dwordx4 {vr(S[1],4)}, v{KD}, {sr(SO,4)}, s29 offen sc1
    s_mov_b32 exec_hi, 0
    buffer_store_dwordx2 {vr(S[1]+4,2)}, v1, {sr(SO,4)}, s37 offen sc1
    """)
    stamp(a, 9, st)
    a(f"""
    s_waitcnt vmcnt(0)
    """)
    signal(76, 8, 38, P[0])
    stamp(a, 10, st)
    stamp_flush(a, 11, st, W, SO)
    stamp_flush(a, 16, epst or p1st, W, SO)
    a("s_endpgm")
    a.label(L("slow"))
    a(f"""
    s_mov_b32 s{MODE}, 1
    s_waitcnt lgkmcnt(0)
    """)
    swbar()
    fill_rows()
    for i in range(2):
        a(f"v_mov_b32 v{QT[i]+2}, 0"); a(f"v_mov_b32 v{QT[i]+3}, 0"); a(f"v_mov_b32 v{M[i]}, 0xff800000")
    for x in kv_issue(): a(x)
    a(f"s_mov_b32 s{CNT}, 16")
    a.label(L("maxloop"))
    a("s_waitcnt vmcnt(0) lgkmcnt(0)")
    swbar()
    for x in kv_issue(): a(x)
    for x in rdK(0, 0) + rdK(1, 1): a(x)
    a(f"v_xor_b32 v{VA}, {KV_SLOT}, v{VA}")
    a("s_waitcnt lgkmcnt(0)")
    for t in range(2):
        for x in qk(t, 0) + qk(t, 1): a(x)
        rowmax(0, M[0], False); rowmax(1, M[1], False)
    a(f"""
    s_sub_u32 s{CNT}, s{CNT}, 1
    s_cmp_lg_u32 s{CNT}, 0
    s_cbranch_scc1 {L('maxloop')}
    """)
    set_shift()
    zero_state()
    a("s_waitcnt vmcnt(0)")
    swbar()
    a(f"ds_write_b32 v{SGA}, v{SG}")
    for x in kv_issue(): a(x)
    for x in rdK(0, 0): a(x)
    a("s_waitcnt lgkmcnt(0)")
    a(f"s_branch {L('restart')}")
    for t in spins:
        a.label(L(t + "s"))
        a(f"""
        s_sleep {slp}
        ds_read_b32 v{PL}, v{PA}
        s_waitcnt lgkmcnt(0)
        v_cmp_lt_u32 vcc, v{PL}, v{EP}
        s_nop 1
        s_cbranch_vccnz {L(t+'s')}
        s_branch {L(t+'r')}
        """)
    a.label(L("end"))
    a("s_endpgm")
    return kernel_text(name, a.text(), 168, 102)
```
